```python
import torch

def _softmax(x, axis=-1):
    return torch.softmax(x, dim=axis)
def _gelu(x):
    return torch.nn.functional.gelu(x, approximate="tanh")
def _silu(x):
    return torch.nn.functional.silu(x)
def _sigmoid(x):
    return torch.sigmoid(x)
def _layernorm(x, axis=-1, eps=1e-5):
    m = x.mean(dim=axis, keepdim=True)
    v = x.var(dim=axis, keepdim=True, unbiased=False)
    return (x - m) / torch.sqrt(v + eps)
def _scatter_add(tgt, idx, src, axis=0):
    return tgt.clone().index_add_(axis, idx, src)
def _segment_sum(src, seg, n):
    out = torch.zeros((n,) + src.shape[1:], dtype=src.dtype)
    return out.index_add_(0, seg, src)
def _pad(x, pw):
    flat = tuple(v for pair in reversed(pw) for v in pair)
    return torch.nn.functional.pad(x, flat)

kernel_name = 'sequential_preLN__ssm_conv_s4d__mixer_token_mlp__prompt'

def setup_inputs():

    _w = (lambda a: (lambda t: t.to(torch.bfloat16) if t.is_floating_point() else t)(torch.as_tensor(a)))
    def _A_setup():
        Bsz, L, D, N = 1, 2048, 640, 128
        return {
            "u": _w((lambda *s: torch.randn(*s, dtype=torch.bfloat16) * 0.05)(Bsz, L, D)),
            "log_A_real": _w((lambda *s: torch.randn(*s, dtype=torch.bfloat16) * 6.4)(D, N) * 0.5),
            "A_imag": _w((lambda *s: torch.randn(*s, dtype=torch.bfloat16) * 0.05)(D, N) * 3.14),
            "C_real": _w((lambda *s: torch.randn(*s, dtype=torch.bfloat16) * 0.05)(D, N) / N ** 0.5),
            "C_imag": _w((lambda *s: torch.randn(*s, dtype=torch.bfloat16) * 0.05)(D, N) / N ** 0.5),
            "log_dt": _w((lambda *s: torch.randn(*s, dtype=torch.bfloat16) * 0.05)(D) * 0.5 - 4.0),
            "D_skip": _w((lambda *s: torch.randn(*s, dtype=torch.bfloat16) * 0.05)(D)),
        }
    _A_in = _A_setup()

    def _B_setup():
        B, S, D, F = 1, 2048, 640, 1728
        return {
            "x": _w((lambda *s: torch.randn(*s, dtype=torch.bfloat16) * 0.05)(B, S, D)),
            "w1": _w((lambda *s: torch.randn(*s, dtype=torch.bfloat16) * 0.4)(S, F) * (S ** -0.5)),
            "b1": _w((lambda *s: torch.randn(*s, dtype=torch.bfloat16) * 12.8)(F) * 0.02),
            "w2": _w((lambda *s: torch.randn(*s, dtype=torch.bfloat16) * 0.2)(F, S) * (F ** -0.5)),
            "b2": _w((lambda *s: torch.randn(*s, dtype=torch.bfloat16) * 3.2)(S) * 0.02),
        }
    _B_in = _B_setup()

    return {
        "A_u": _A_in["u"],
        "A_log_A_real": _A_in["log_A_real"],
        "A_A_imag": _A_in["A_imag"],
        "A_C_real": _A_in["C_real"],
        "A_C_imag": _A_in["C_imag"],
        "A_log_dt": _A_in["log_dt"],
        "A_D_skip": _A_in["D_skip"],
        "B_x": _B_in["x"],
        "B_w1": _B_in["w1"],
        "B_b1": _B_in["b1"],
        "B_w2": _B_in["w2"],
        "B_b2": _B_in["b2"],
    }

def reference(A_u, A_log_A_real, A_A_imag, A_C_real, A_C_imag, A_log_dt, A_D_skip, B_x, B_w1, B_b1, B_w2, B_b2):
    def _A_ref(u, log_A_real, A_imag, C_real, C_imag, log_dt, D_skip):
        L = u.shape[1]
        dt = torch.exp(log_dt)
        A = -torch.exp(log_A_real) + 1j * A_imag
        C = (C_real + 1j * C_imag) * dt[:, None]
        pos = (lambda x, dt: x.to(dt))(torch.arange(L), log_dt.dtype)
        P = torch.exp((A * dt[:, None])[:, :, None] * pos[None, None, :])
        K = 2.0 * torch.einsum("dn,dnl->dl", C, P).real
        L2 = 2 * L
        u_t = (lambda x, *d: x.permute(*d))(u, 0, 2, 1)
        Kf = (lambda x, *a, **k: torch.fft.rfft(x.float(), *a, **k))(K, L2)
        Uf = (lambda x, *a, **k: torch.fft.rfft(x.float(), *a, **k))(u_t, L2)
        y = (lambda x, *a, **k: torch.fft.irfft(x, *a, **k).to(torch.bfloat16))(Uf * Kf[None, :, :], L2)[:, :, :L]
        y = (lambda x, *d: x.permute(*d))(y, 0, 2, 1)
        return y + u * D_skip[None, None, :]

    def _B_ref(x, w1, b1, w2, b2):
        B, S, D = x.shape
        h = _layernorm(x, axis=-1)
        u = torch.einsum("bsd,sf->bdf", h, w1) + b1
        u = _gelu(u)
        y = torch.einsum("bdf,fs->bds", u, w2) + b2
        return (lambda x, *d: x.permute(*d))(y, 0, 2, 1)

    x = A_u
    h = x + _A_ref(_layernorm(x, axis=-1), A_log_A_real, A_A_imag, A_C_real, A_C_imag, A_log_dt, A_D_skip)
    h2 = h + _B_ref(_layernorm(h, axis=-1), B_w1, B_b1, B_w2, B_b2)
    return h2
```

```python
class Asm:
    def __init__(self):
        self.lines = []
        self.launch = []
        self.desc = []
    def __call__(self, s):
        for ln in s.strip("\n").split("\n"):
            self.lines.append(ln)
    def kernel_begin(self, name):
        self(f".globl {name}\n.p2align 8\n.type {name},@function\n{name}:")
    def kernel_desc(self, name, vgpr, sgpr, accum=None, ieee=None, denorm32=None):
        if accum is None:
            accum = (vgpr + 3) // 4 * 4
        d = f""".amdhsa_kernel {name}
  .amdhsa_next_free_vgpr {vgpr}
  .amdhsa_next_free_sgpr {sgpr}
  .amdhsa_accum_offset {accum}
  .amdhsa_group_segment_fixed_size 0
  .amdhsa_kernarg_size 120
  .amdhsa_user_sgpr_count 2
  .amdhsa_user_sgpr_kernarg_segment_ptr 1
  .amdhsa_system_sgpr_workgroup_id_x 1
"""
        if denorm32 is not None:
            d += f"  .amdhsa_float_denorm_mode_32 {denorm32}\n"
        d += ".end_amdhsa_kernel"
        self.desc.append(d)
    def add_launch(self, name, grid, block, lds):
        self.launch.append(f"; @launch kernel={name} grid=({grid},1,1) block=({block},1,1) lds={lds}")
    def srd(self, d, base, nbytes, add=0):
        if add:
            self(f"  s_add_u32 s{d}, s{base}, {add}\n  s_addc_u32 s{d+1}, s{base+1}, 0")
        else:
            self(f"  s_mov_b32 s{d}, s{base}\n  s_mov_b32 s{d+1}, s{base+1}")
        self(f"  s_mov_b32 s{d+2}, {nbytes}\n  s_mov_b32 s{d+3}, 0x00020000")
    def text(self, header=""):
        out = []
        if header:
            out.append(header.rstrip("\n"))
        out += self.launch
        out.append('.amdgcn_target "amdgcn-amd-amdhsa--gfx950"')
        out.append(".text")
        out += self.lines
        out.append('.section .rodata,"a"')
        for d in self.desc:
            out.append(".p2align 6")
            out.append(d)
        return "\n".join(out) + "\n"

def vr(a, n):
    return f"v[{a}:{a+n-1}]" if n > 1 else f"v{a}"
def ar(a, n):
    return f"a[{a}:{a+n-1}]" if n > 1 else f"a{a}"
def sr(a, n):
    return f"s[{a}:{a+n-1}]" if n > 1 else f"s{a}"

import struct
def fbits(x):
    return "0x%08x" % struct.unpack("<I", struct.pack("<f", x))[0]

KA = dict(x=0, logA=8, Aim=16, Cre=24, Cim=32, logdt=40, Dsk=48, Bx=56, w1=64, b1=72, w2=80, b2=88, out=96, dbg=104, ws=112)
XS = 10368
UT_STRIDE = 4224
WS_UT = 0x0
WS_Y8 = 0x400000
WS_H = 0x800000
WS_HN8 = 0xC00000
WS_G8 = 0x1000000
WS_KIMG = 0x1400000
WS_ST1 = 0x1C00000
XT1 = 256 * 1280 + 128
XT2 = 216 * 1280 + 128
```

```python
from asmlib import *

def gen_gemm(A, which, R=8, NL=3, name=None, stamps=False, dbg=''):
    name = name or f"gemm{which}_kernel"
    if which == 1:
        WSTR, WBYTES, T, XOFF, XBLK = 3456, 2048 * 3456, 32, WS_HN8, 256
    else:
        WSTR, WBYTES, T, XOFF, XBLK = 4096, 1728 * 4096, 27, WS_G8, 216
    SLOT = 18432
    WOFF = 10240
    LDS = R * SLOT
    assert LDS <= 160 * 1024
    PER = 18 // NL
    assert PER * NL == 18 and PER * (R - 1) <= 63
    A.add_launch(name, 256, 64 * (4 + NL), LDS)
    A.kernel_begin(name)
    L = name
    nst = [0]
    def stamp():
        if stamps:
            A(f"  s_memtime s[{50+2*nst[0]}:{51+2*nst[0]}]")
            nst[0] += 1
    A(f"""
  s_cmp_ge_u32 s2, 256
  s_cbranch_scc1 {L}_done
  {'s_memtime s[48:49]' if stamps else ''}
  {'s_memrealtime s[70:71]' if stamps else ''}
  s_load_dwordx2 s[4:5], s[0:1], {KA['w1'] if which == 1 else KA['w2']}
  s_load_dwordx2 s[6:7], s[0:1], {KA['ws']}
  s_load_dwordx2 s[28:29], s[0:1], {KA['b1'] if which == 1 else KA['b2']}
  s_load_dwordx2 s[30:31], s[0:1], {KA['out']}
  v_lshrrev_b32 v1, 6, v0
  s_and_b32 s32, s2, 7                 ; xcd
  s_lshr_b32 s33, s2, 3                ; j
  v_readfirstlane_b32 s3, v1
  v_and_b32 v1, 63, v0                 ; lane
  s_and_b32 s34, s33, 7                ; j&7
  s_lshr_b32 s33, s33, 3               ; j>>3
  s_and_b32 s35, s32, 1
  s_lshl_b32 s35, s35, 2
  s_add_u32 s33, s33, s35              ; dtile (0..7)
  s_lshr_b32 s32, s32, 1               ; quarter
""")
    if which == 1:
        A(f"""
  s_cmp_ge_u32 s34, 7
  s_cbranch_scc1 {L}_done
  s_mul_i32 s32, s32, 7
  s_add_u32 s32, s32, s34
  s_cmp_ge_u32 s32, 27
  s_cbranch_scc1 {L}_done
""")
    else:
        A(f"""
  s_lshl_b32 s32, s32, 3
  s_add_u32 s32, s32, s34
""")
    A(f"""
  s_cmp_lt_u32 s3, 4
  s_cbranch_scc1 {L}_consumer
""")
    for ld in range(NL):
        if ld < NL - 1:
            A(f"  s_cmp_lg_u32 s3, {4 + ld}\n  s_cbranch_scc1 {L}_ld{ld+1}")
        slots = list(range(ld * PER, (ld + 1) * PER))
        base_i = slots[0]
        for k, i in enumerate(slots):
            rel = (i - base_i) * 1024
            useoff = rel if rel < 4096 else rel - 4096
            if i < 10:
                A(f"""
  v_add_u32 v10, {64*i}, v1
  v_mul_u32_u24 v11, 52429, v10
  v_lshrrev_b32 v11, 22, v11            ; p // 80
  v_mul_u32_u24 v12, 80, v11
  v_sub_u32 v12, v10, v12               ; p % 80
  v_mul_u32_u24 v11, {XS}, v11
  v_lshl_add_u32 v11, v12, 4, v11
  s_mul_i32 s36, s33, 1280
  s_add_u32 s36, s36, {4096 - useoff}
  v_add_u32 v{2+k}, s36, v11
""")
            else:
                j = i - 10
                A(f"""
  v_lshrrev_b32 v10, 3, v1
  v_mul_u32_u24 v10, {WSTR}, v10
  v_and_b32 v11, 7, v1
  v_lshrrev_b32 v12, 3, v1
  v_and_b32 v12, 2, v12
  v_xor_b32 v11, v11, v12
  {'v_xor_b32 v11, 4, v11' if (j & 1) else ''}
  v_lshl_add_u32 v10, v11, 4, v10
  s_lshl_b32 s36, s32, 7
  s_add_u32 s36, s36, {8 * j * WSTR + 4096 - useoff}
  v_add_u32 v{2+k}, s36, v10
""")
        A("  s_waitcnt lgkmcnt(0)")
        A(f"""
  s_sub_u32 s8, s4, 4096
  s_subb_u32 s9, s5, 0
  s_mov_b32 s10, {WBYTES + 4096}
  s_mov_b32 s11, 0x00020000
  s_add_u32 s12, s6, {XOFF - 4096}
  s_addc_u32 s13, s7, 0
  s_mov_b32 s14, {XBLK * XS + 4096}
  s_mov_b32 s15, 0x00020000
  s_mov_b32 s24, 0                     ; W soffset
  s_mov_b32 s25, 0                     ; X soffset
  s_mov_b32 s26, {base_i * 1024}
""")
        def issue_tile():
            for k, i in enumerate(slots):
                rel = (i - base_i) * 1024
                useoff = rel if rel < 4096 else rel - 4096
                if k == 0:
                    A("  s_mov_b32 m0, s26\n  s_nop 0")
                if rel == 4096:
                    A("  s_add_u32 m0, s26, 4096\n  s_nop 0")
                assert rel < 8192
                if i < 10:
                    A(f"  buffer_load_dwordx4 v{2+k}, s[12:15], s25 offen offset:{useoff} lds")
                else:
                    A(f"  buffer_load_dwordx4 v{2+k}, s[8:11], s24 offen offset:{useoff} lds")
            A(f"""
  s_add_u32 s24, s24, {64 * WSTR}
  s_add_u32 s25, s25, {8 * XS}
  s_add_u32 s26, s26, {SLOT}
  s_cmp_ge_u32 s26, {R * SLOT}
  s_cselect_b32 s37, {R * SLOT}, 0
  s_sub_u32 s26, s26, s37
""")
        A(f"  s_mov_b32 s27, {R - 1}\n{L}_ld{ld}_pro:")
        issue_tile()
        A(f"  s_sub_u32 s27, s27, 1\n  s_cmp_lg_u32 s27, 0\n  s_cbranch_scc1 {L}_ld{ld}_pro")
        A(f"  s_mov_b32 s27, {T - (R - 1)}\n{L}_ld{ld}_loop:")
        A(f"  s_waitcnt vmcnt({PER * (R - 2)})\n  s_barrier")
        issue_tile()
        A(f"  s_sub_u32 s27, s27, 1\n  s_cmp_lg_u32 s27, 0\n  s_cbranch_scc1 {L}_ld{ld}_loop")
        for k in range(R - 1):
            A(f"  s_waitcnt vmcnt({PER * (R - 2 - k)})\n  s_barrier")
        A("  s_endpgm")
        if ld < NL - 1:
            A(f"{L}_ld{ld+1}:")
    XF, WF, ACC = 32, 72, 88
    RED = 128
    A(f"{L}_consumer:")
    A(f"""
  s_and_b32 s38, s3, 1                 ; ks
  v_lshrrev_b32 v12, 4, v1             ; g
  s_lshl_b32 s36, s38, 2
  v_add_u32 v13, s36, v12              ; 4ks+g
  v_mul_u32_u24 v13, 1280, v13
  v_and_b32 v14, 15, v1
  v_lshl_add_u32 v2, v14, 4, v13
  v_bfe_u32 v13, v1, 2, 2              ; r
  v_lshl_add_u32 v14, v12, 3, v13      ; 8g+r
  v_lshlrev_b32 v14, 7, v14
  v_and_b32 v15, 3, v1
  v_lshl_add_u32 v14, v15, 3, v14
  s_lshl_b32 s36, s38, 12
  s_add_u32 s36, s36, {WOFF}
  v_add_u32 v14, s36, v14
  v_lshrrev_b32 v13, 1, v13
  v_and_b32 v12, 1, v12
  v_lshl_or_b32 v13, v12, 1, v13       ; p
  v_xor_b32 v15, s3, v13
  v_lshl_add_u32 v3, v15, 5, v14
  v_xor_b32 v15, 1, v15                ; partner's n
  v_lshl_add_u32 v4, v15, 5, v14
  s_waitcnt lgkmcnt(0)
""")
    if which == 1:
        A.srd(16, 6, 216 * XS, WS_G8)
        A.srd(20, 28, 1728 * 2)
        A(f"""
  v_lshrrev_b32 v12, 4, v1             ; g
  s_lshl_b32 s36, s32, 6
  s_lshl_b32 s37, s3, 4
  s_add_u32 s36, s36, s37              ; f0 = wtile*64 + 16w
  v_lshlrev_b32 v13, 2, v12
  v_add_u32 v13, s36, v13
  v_lshlrev_b32 v13, 1, v13            ; (f0+4g)*2
  buffer_load_dwordx2 v[16:17], v13, s[20:23], 0 offen
  s_lshr_b32 s36, s36, 3
  v_lshrrev_b32 v13, 1, v12
  v_add_u32 v13, s36, v13
  v_mul_u32_u24 v13, {XS}, v13
  v_and_b32 v14, 15, v1
  v_lshl_add_u32 v13, v14, 4, v13
  s_mul_i32 s36, s33, 1280
  v_add_u32 v13, s36, v13
  v_and_b32 v12, 1, v12
  v_lshl_add_u32 v7, v12, 8, v13
  v_lshl_add_u32 v8, v12, 3, v13
""")
    else:
        A.srd(16, 30, 2048 * 1280)
        A.srd(20, 6, 2048 * 1280, WS_H)
        A.srd(40, 28, 2048 * 2)
        A(f"""
  v_and_b32 v12, 15, v1
  s_lshl_b32 s36, s32, 6
  s_lshl_b32 s37, s3, 4
  s_add_u32 s36, s36, s37
  v_add_u32 v12, s36, v12              ; s
  v_lshlrev_b32 v13, 1, v12
  buffer_load_ushort v26, v13, s[40:43], 0 offen
  v_mul_u32_u24 v12, 1280, v12
  s_mul_i32 s36, s33, 160
  v_add_u32 v12, s36, v12
  v_lshrrev_b32 v13, 4, v1             ; g
  v_lshl_add_u32 v8, v13, 3, v12
  v_and_b32 v14, 1, v13
  v_lshl_add_u32 v12, v14, 5, v12      ; +(g&1)*32
  v_lshrrev_b32 v13, 1, v13
  v_lshl_add_u32 v7, v13, 4, v12       ; +(g>>1)*16
  buffer_load_dwordx4 v[16:19], v7, s[20:23], 0 offen
  buffer_load_dwordx4 v[20:23], v7, s[20:23], 0 offen offset:64
  buffer_load_dwordx2 v[24:25], v8, s[20:23], 0 offen offset:128
""")
    for k in range(40):
        A(f"  v_mov_b32 v{ACC+k}, 0")
    A("  s_mov_b32 s26, 0")
    stamp()
    def reads(st):
        A(f"""
  v_add_u32 v9, s26, v2
  v_add_u32 v10, s26, v3
  v_add_u32 v11, s26, v4
""")
        for j in range(2):
            for h in range(2):
                if 'r' not in dbg: A(f"  ds_read_b64_tr_b16 {vr(WF + st*8 + j*4 + h*2, 2)}, v{10+j} offset:{h*512}")
        for m in range(5):
            if 'r' not in dbg: A(f"  ds_read_b128 {vr(XF + st*20 + 4*m, 4)}, v9 offset:{256*m}")
        A(f"""
  s_add_u32 s26, s26, {SLOT}
  s_cmp_ge_u32 s26, {R * SLOT}
  s_cselect_b32 s37, {R * SLOT}, 0
  s_sub_u32 s26, s26, s37
""")
    def mfmas(st):
        if 'm' in dbg: return
        for m in range(5):
            for j in range(2):
                acc = ACC + (m * 2 + j) * 4
                xa = vr(XF + st * 20 + 4 * m, 4)
                wf = vr(WF + st * 8 + j * 4, 4)
                if which == 1:
                    A(f"  v_mfma_f32_16x16x32_bf16 {vr(acc,4)}, {wf}, {xa}, {vr(acc,4)}")
                else:
                    A(f"  v_mfma_f32_16x16x32_bf16 {vr(acc,4)}, {xa}, {wf}, {vr(acc,4)}")
    A("  s_barrier")
    stamp()
    if stamps: A("  s_waitcnt lgkmcnt(0)")
    reads(0)
    A("  s_waitcnt lgkmcnt(0)")
    npair = (T - 1) // 2
    A(f"  s_mov_b32 s27, {npair}\n{L}_cloop:")
    A("  s_barrier"); reads(1); mfmas(0); A("  s_waitcnt lgkmcnt(0)")
    A("  s_barrier"); reads(0); mfmas(1); A("  s_waitcnt lgkmcnt(0)")
    A(f"  s_sub_u32 s27, s27, 1\n  s_cmp_lg_u32 s27, 0\n  s_cbranch_scc1 {L}_cloop")
    last = 0
    if (T - 1) % 2:
        A("  s_barrier"); reads(1); mfmas(0); A("  s_waitcnt lgkmcnt(0)")
        last = 1
    mfmas(last)
    stamp()
    EX = ((T + 1) % R) * SLOT
    if EX + 20480 > LDS: EX = ((T + 3) % R) * SLOT
    assert EX + 20480 <= LDS
    A(f"""
  s_mul_i32 s36, s3, 5120
  s_add_u32 s36, s36, {EX}
  v_lshlrev_b32 v12, 4, v1
  v_add_u32 v13, s36, v12
  s_xor_b32 s36, s3, 1
  s_mul_i32 s36, s36, 5120
  s_add_u32 s36, s36, {EX}
  v_add_u32 v14, s36, v12
  s_nop 3
""")
    for m in range(5):
        A(f"  ds_write_b128 v13, {vr(ACC + (m*2+1)*4, 4)} offset:{m*1024}")
    A("  s_waitcnt lgkmcnt(0)")
    stamp()
    A("  s_barrier")
    stamp()
    for m in range(5):
        A(f"  ds_read_b128 {vr(RED + m*4, 4)}, v14 offset:{m*1024}")
    A("  s_waitcnt vmcnt(0)")
    if which == 1:
        A(f"""
  v_lshlrev_b32 v18, 16, v16
  v_and_b32 v19, 0xffff0000, v16
  v_lshlrev_b32 v20, 16, v17
  v_and_b32 v21, 0xffff0000, v17
  s_mov_b32 s36, {fbits(-2*0.7978845608028654*1.4426950408889634)}
  s_mov_b32 s37, {fbits(-2*0.7978845608028654*1.4426950408889634*0.044715)}
  v_mov_b32 v22, s36
""")
        for m in range(5):
            acc = ACC + m * 8
            for r in range(4):
                A(f"  v_add_f32 v{acc+r}, v{acc+r}, v{18+r}")
        for m in range(5):
            acc = ACC + m * 8
            t = acc + 4
            A(f"  s_waitcnt lgkmcnt({4-m})")
            for r in range(4): A(f"  v_add_f32 v{acc+r}, v{acc+r}, v{RED+m*4+r}")
            for r in range(4): A(f"  v_mul_f32 v{t+r}, v{acc+r}, v{acc+r}")
            for r in range(4): A(f"  v_fma_f32 v{t+r}, v{t+r}, s37, v22")
            for r in range(4): A(f"  v_mul_f32 v{t+r}, v{t+r}, v{acc+r}")
            for r in range(4): A(f"  v_exp_f32 v{t+r}, v{t+r}")
            for r in range(4): A(f"  v_add_f32 v{t+r}, 1.0, v{t+r}")
            for r in range(4): A(f"  v_rcp_f32 v{t+r}, v{t+r}")
            A("  s_nop 0")
            for r in range(4): A(f"  v_mul_f32 v{acc+r}, v{acc+r}, v{t+r}")
            o = XF + (m >> 1) * 4 + (m & 1) * 2
            A(f"  v_cvt_pk_bf16_f32 v{o}, v{acc}, v{acc+1}")
            A(f"  v_cvt_pk_bf16_f32 v{o+1}, v{acc+2}, v{acc+3}")
            if m & 1:
                b = XF + (m >> 1) * 4
                A(f"  s_nop 1\n  v_permlane16_swap_b32 v{b}, v{b+2}\n  v_permlane16_swap_b32 v{b+1}, v{b+3}")
                A(f"  buffer_store_dwordx4 {vr(b,4)}, v7, s[16:19], 0 offen offset:{512*(m>>1)}")
            elif m == 4:
                A(f"  buffer_store_dwordx2 {vr(o,2)}, v8, s[16:19], 0 offen offset:1024")
    else:
        A("  v_lshlrev_b32 v26, 16, v26")
        for m in range(5):
            acc = ACC + m * 8
            for r in range(4):
                A(f"  v_add_f32 v{acc+r}, v{acc+r}, v26")
        for m in range(5):
            acc = ACC + m * 8
            A(f"  s_waitcnt lgkmcnt({4-m})")
            for r in range(4): A(f"  v_add_f32 v{acc+r}, v{acc+r}, v{RED+m*4+r}")
            if m & 1:
                a0 = ACC + (m - 1) * 8
                A("  s_nop 1")
                for r in range(4):
                    A(f"  v_permlane16_swap_b32 v{a0+r}, v{acc+r}")
                hb = 16 + (m >> 1) * 4
                t = XF
                src = [a0, a0+1, a0+2, a0+3, acc, acc+1, acc+2, acc+3]
                for k in range(4):
                    A(f"  v_lshlrev_b32 v{t+2*k}, 16, v{hb+k}")
                    A(f"  v_and_b32 v{t+2*k+1}, 0xffff0000, v{hb+k}")
                for k in range(8):
                    A(f"  v_add_f32 v{t+k}, v{t+k}, v{src[k]}")
                o = XF + 8 + (m >> 1) * 4
                for k in range(4):
                    A(f"  v_cvt_pk_bf16_f32 v{o+k}, v{t+2*k}, v{t+2*k+1}")
                A(f"  buffer_store_dwordx4 {vr(o,4)}, v7, s[16:19], 0 offen offset:{64*(m>>1)}")
            elif m == 4:
                t = XF
                for k in range(2):
                    A(f"  v_lshlrev_b32 v{t+2*k}, 16, v{24+k}")
                    A(f"  v_and_b32 v{t+2*k+1}, 0xffff0000, v{24+k}")
                for k in range(4):
                    A(f"  v_add_f32 v{t+k}, v{t+k}, v{acc+k}")
                o = XF + 16
                for k in range(2):
                    A(f"  v_cvt_pk_bf16_f32 v{o+k}, v{t+2*k}, v{t+2*k+1}")
                A(f"  buffer_store_dwordx2 {vr(o,2)}, v8, s[16:19], 0 offen offset:128")
    if stamps:
        stamp()
        A("  s_waitcnt vmcnt(0)")
        stamp()
        A("  s_memrealtime s[72:73]")
        A("  s_waitcnt lgkmcnt(0)")
        A.srd(8, 6, 0x100000, 0x2000000 + (which - 1) * 0x10000)
        A(f"  s_lshl_b32 s36, s2, 2\n  s_add_u32 s36, s36, s3\n  s_lshl_b32 s36, s36, 6\n  v_mov_b32 v2, s36")
        for k in range(nst[0]):
            A(f"  s_sub_u32 s36, s{50+2*k}, s48\n  v_mov_b32 v3, s36\n  buffer_store_dword v3, v2, s[8:11], 0 offen offset:{4*k}")
        A(f"  s_sub_u32 s36, s72, s70\n  v_mov_b32 v3, s36\n  buffer_store_dword v3, v2, s[8:11], 0 offen offset:52")
        A(f"  v_mov_b32 v3, s70\n  buffer_store_dword v3, v2, s[8:11], 0 offen offset:60")
        A(f"  s_getreg_b32 s36, hwreg(HW_REG_XCC_ID)\n  v_mov_b32 v3, s36\n  buffer_store_dword v3, v2, s[8:11], 0 offen offset:56")
    A(f"{L}_done:\n  s_endpgm")
    A.kernel_desc(name, 152, 80)

if __name__ == "__main__":
    import sys
    R = int(sys.argv[1]); NL = int(sys.argv[2])
    A = Asm()
    st = int(sys.argv[3])
    dbg = sys.argv[5] if len(sys.argv) > 5 else ''
    gen_gemm(A, 1, R, NL, stamps=st, dbg=dbg)
    gen_gemm(A, 2, R, NL, stamps=st, dbg=dbg)
    if len(sys.argv) > 4: A.launch = A.launch + A.launch + [A.launch[1]]
    print(A.text())
```

```python
from asmlib import *
import kimg

LOG2E = 1.4426950408889634
def f32r(x):
    return struct.unpack("<f", struct.pack("<f", x))[0]

NLN = 128
def gen_k1(A, name="k1_kernel"):
    RS = 1312
    TGS = 544
    TG, TE, KFO = 0, 48 * TGS, 64 * TGS
    LDS = KFO + 768 * 4
    NWG = NLN + 640
    A.add_launch(name, NWG, 256, LDS)
    A.kernel_begin(name)
    L = name
    A(f"""
  s_cmp_ge_u32 s2, {NWG}
  s_cbranch_scc1 {L}_done
  s_cmp_ge_u32 s2, {NLN}
  s_cbranch_scc1 {L}_kgen
  ; ---------------- LN1 ----------------
  s_load_dwordx2 s[4:5], s[0:1], {KA['x']}
  s_load_dwordx2 s[6:7], s[0:1], {KA['ws']}
  s_and_b32 s16, s2, 7
  s_lshl_b32 s16, s16, 4
  s_lshr_b32 s17, s2, 3
  s_add_u32 s16, s16, s17
  s_lshl_b32 s16, s16, 4               ; t0
  v_lshrrev_b32 v1, 4, v0              ; row
  v_and_b32 v2, 15, v0                 ; q
  v_add_u32 v3, s16, v1
  v_mul_u32_u24 v3, 1280, v3
  v_lshl_add_u32 v3, v2, 4, v3
  s_waitcnt lgkmcnt(0)
""")
    A.srd(8, 4, 2048 * 1280)
    for i in range(5):
        A(f"  buffer_load_dwordx4 {vr(8+4*i,4)}, v3, s[8:11], 0 offen offset:{256*i}")
    A.srd(12, 6, 640 * UT_STRIDE, WS_UT)
    A.srd(20, 6, 2048 * 8, WS_ST1)
    A(f"""
  v_mul_u32_u24 v4, {RS}, v1
  v_lshl_add_u32 v4, v2, 4, v4
  v_bfe_u32 v5, v0, 4, 1               ; th
  v_bfe_u32 v6, v0, 2, 2               ; r
  v_lshl_add_u32 v5, v5, 3, v6
  v_mul_u32_u24 v5, {RS}, v5
  v_bfe_u32 v6, v0, 5, 1               ; cgl
  v_lshl_add_u32 v5, v6, 5, v5
  v_and_b32 v7, 3, v0
  v_lshl_add_u32 v5, v7, 3, v5
  v_lshrrev_b32 v7, 6, v0              ; wave
  v_mul_u32_u24 v72, 320, v7
  v_add_u32 v5, v5, v72
  v_mul_u32_u24 v72, 160, v7
  v_lshl_add_u32 v72, v6, 4, v72
  v_add_u32 v72, v72, v2
  v_mul_u32_u24 v72, {UT_STRIDE}, v72
  v_bfe_u32 v6, v0, 4, 1
  v_lshl_add_u32 v72, v6, 4, v72
  s_lshl_b32 s17, s16, 1
  s_add_u32 s17, s17, 128
  v_add_u32 v6, s17, v72
  v_add_u32 v7, s16, v1
  v_lshlrev_b32 v7, 3, v7
""")
    X = 32
    for i in range(5):
        A(f"  s_waitcnt vmcnt({4-i})")
        for k in range(4):
            A(f"  v_lshlrev_b32 v{X+8*i+2*k}, 16, v{8+4*i+k}")
            A(f"  v_and_b32 v{X+8*i+2*k+1}, 0xffff0000, v{8+4*i+k}")
        if i == 0:
            A(f"  v_pk_add_f32 v[72:73], {vr(X,2)}, {vr(X+2,2)}")
            A(f"  v_pk_add_f32 v[74:75], {vr(X+4,2)}, {vr(X+6,2)}")
        else:
            for k in range(4):
                a = 72 + 2 * (k & 1)
                A(f"  v_pk_add_f32 {vr(a,2)}, {vr(a,2)}, {vr(X+8*i+2*k,2)}")
    def rowsum(v):
        for sh in (8, 4, 2, 1):
            A(f"  s_nop 1\n  v_add_f32 v{v}, v{v}, v{v} row_ror:{sh}")
    A(f"""
  v_pk_add_f32 v[72:73], v[72:73], v[74:75]
  s_nop 0
  v_add_f32 v72, v72, v73
""")
    rowsum(72)
    A(f"  v_mul_f32 v72, {fbits(-1.0/640)}, v72     ; -mean")
    for k in range(20):
        A(f"  v_pk_add_f32 {vr(X+2*k,2)}, {vr(X+2*k,2)}, v[72:73] op_sel_hi:[1,0]")
    A(f"  v_pk_mul_f32 v[74:75], {vr(X,2)}, {vr(X,2)}")
    A(f"  v_pk_mul_f32 v[76:77], {vr(X+2,2)}, {vr(X+2,2)}")
    for k in range(2, 20):
        a = 74 + 2 * (k & 1)
        A(f"  v_pk_fma_f32 {vr(a,2)}, {vr(X+2*k,2)}, {vr(X+2*k,2)}, {vr(a,2)}")
    A(f"""
  v_pk_add_f32 v[74:75], v[74:75], v[76:77]
  s_nop 0
  v_add_f32 v74, v74, v75
""")
    rowsum(74)
    A(f"""
  v_mul_f32 v74, {fbits(1.0/640)}, v74      ; var
  v_cvt_pk_bf16_f32 v75, v74, -v72
  v_lshlrev_b32 v74, 16, v75
  v_and_b32 v78, 0xffff0000, v75            ; m_bf
  v_add_f32 v74, {fbits(1e-5)}, v74
  v_cvt_pk_bf16_f32 v74, v74, v74
  v_lshlrev_b32 v74, 16, v74
  v_sqrt_f32 v74, v74
  s_nop 0
  v_cvt_pk_bf16_f32 v74, v74, v74
  v_lshlrev_b32 v74, 16, v74
  v_rcp_f32 v79, v74                        ; rs
  v_sub_f32 v76, -v72, v78
  v_mul_f32 v76, v76, v79                   ; c
  v_mov_b32 v74, v79
""")
    for k in range(20):
        A(f"  v_pk_fma_f32 {vr(X+2*k,2)}, {vr(X+2*k,2)}, v[74:75], v[76:77] op_sel_hi:[1,0,0]")
    for k in range(20):
        A(f"  v_cvt_pk_f16_f32 v{8+k}, v{X+2*k}, v{X+2*k+1}")
        if k % 4 == 3:
            A(f"  ds_write_b128 v4, {vr(8+k-3,4)} offset:{256*(k//4)}")
    A(f"""
  v_cmp_eq_u32 vcc, 0, v2
  s_and_saveexec_b64 s[24:25], vcc
  buffer_store_dwordx2 v[78:79], v7, s[20:23], 0 offen
  s_mov_b64 exec, s[24:25]
  s_waitcnt lgkmcnt(0)
  s_barrier
""")
    for k in range(5):
        for h in range(2):
            A(f"  ds_read_b64_tr_b16 {vr(32+4*k+2*h,2)}, v5 offset:{64*k + 4*h*RS}")
    for k in range(5):
        A(f"  s_waitcnt lgkmcnt({8-2*k})")
        A(f"  s_mov_b32 s17, {32*k*UT_STRIDE}")
        A(f"  buffer_store_dwordx4 {vr(32+4*k,4)}, v6, s[12:15], s17 offen")
    A("  s_endpgm")
    Lhi = f32r(LOG2E); Llo = LOG2E - Lhi
    A(f"""
{L}_kgen:
  s_sub_u32 s16, s2, {NLN}                ; channel d
  s_load_dwordx4 s[4:7], s[0:1], {KA['logA']}
  s_load_dwordx4 s[8:11], s[0:1], {KA['Cre']}
  s_load_dwordx2 s[12:13], s[0:1], {KA['logdt']}
  s_load_dwordx2 s[14:15], s[0:1], {KA['ws']}
  s_getpc_b64 s[18:19]
  s_add_u32 s18, s18, kimg_idx@rel32@lo+4
  s_addc_u32 s19, s19, kimg_idx@rel32@hi+12
  v_lshrrev_b32 v1, 6, v0
  v_lshlrev_b32 v2, 4, v0
  v_readfirstlane_b32 s3, v1              ; wave
  global_load_dwordx4 v[60:63], v2, s[18:19]
  v_and_b32 v1, 127, v0                   ; mode
  s_lshl_b32 s17, s16, 8
  v_lshl_add_u32 v2, v1, 1, s17
  v_xor_b32 v3, 128, v2
  s_lshl_b32 s20, s16, 1
  s_and_b32 s21, s20, 0xfffffffc
  s_waitcnt lgkmcnt(0)
  s_load_dword s22, s[12:13], s21
  global_load_ushort v4, v2, s[4:5]       ; logA
  global_load_ushort v5, v2, s[6:7]       ; Aim
  global_load_ushort v6, v2, s[8:9]       ; Cre
  global_load_ushort v7, v2, s[10:11]     ; Cim
  global_load_ushort v8, v3, s[8:9]
  global_load_ushort v9, v3, s[10:11]
  v_lshlrev_b32 v1, 2, v1
  s_waitcnt lgkmcnt(0)
  s_and_b32 s20, s20, 2
  s_lshl_b32 s20, s20, 3
  s_lshr_b32 s22, s22, s20
  s_lshl_b32 s22, s22, 16
  s_mov_b32 s23, {fbits(Lhi)}
  s_mov_b32 s24, {fbits(Llo)}
  v_mov_b32 v10, s22
""")
    def exp_bf16(dst, src, t1, t2):
        A(f"""
  v_mul_f32 v{t1}, s23, v{src}
  v_fma_f32 v{t2}, v{src}, s23, -v{t1}
  v_fma_f32 v{t2}, v{src}, s24, v{t2}
  v_exp_f32 v{t1}, v{t1}
  v_mul_f32 v{t2}, {fbits(0.6931471805599453)}, v{t2}
  v_fma_f32 v{dst}, v{t1}, v{t2}, v{t1}
  v_cvt_pk_bf16_f32 v{dst}, v{dst}, v{dst}
  v_lshlrev_b32 v{dst}, 16, v{dst}
""")
    exp_bf16(10, 10, 11, 12)
    A(f"""
  s_waitcnt vmcnt(5)
  v_lshlrev_b32 v4, 16, v4
""")
    exp_bf16(4, 4, 11, 12)
    A(f"""
  v_mul_f32 v4, v4, v10
  v_mul_f32 v4, {fbits(-LOG2E)}, v4
  s_waitcnt vmcnt(0)
  v_lshlrev_b32 v5, 16, v5
  v_mul_f32 v5, v5, v10
  v_mul_f32 v5, {fbits(0.15915494309189535)}, v5
  v_lshlrev_b32 v6, 16, v6
  v_lshlrev_b32 v7, 16, v7
  v_lshlrev_b32 v8, 16, v8
  v_lshlrev_b32 v9, 16, v9
  v_max3_f32 v11, |v6|, |v7|, |v8|
  v_max_f32 v11, v11, |v9|
  v_mul_f32 v11, v11, v10
""")
    for sh in (8, 4, 2, 1):
        A(f"  s_nop 1\n  v_max_f32 v11, v11, v11 row_ror:{sh}")
    A(f"""
  s_nop 0
  v_readlane_b32 s25, v11, 0
  v_readlane_b32 s26, v11, 16
  v_readlane_b32 s27, v11, 32
  v_readlane_b32 s28, v11, 48
  v_mul_f32 v6, v6, v10
  v_mul_f32 v7, v7, v10
  s_max_u32 s25, s25, s26
  s_max_u32 s27, s27, s28
  s_max_u32 s25, s25, s27
  s_lshr_b32 s25, s25, 23
  s_max_u32 s25, s25, 1
  s_min_u32 s25, s25, 253
  s_sub_u32 s26, 254, s25
  s_lshl_b32 s26, s26, 23                    ; scale
  s_add_u32 s27, s25, 1
  s_lshl_b32 s27, s27, 23
  v_mul_f32 v6, s26, v6
  v_mul_f32 v7, s26, v7                      ; c' = v[6:7]
""")
    def pw(dst, p, t):
        if p == 1:
            A(f"  v_exp_f32 v{t}, v4\n  v_fract_f32 v{t+1}, v5")
        else:
            A(f"  v_mul_f32 v{t}, {fbits(float(p))}, v4\n  v_mul_f32 v{t+1}, {fbits(float(p))}, v5\n  v_exp_f32 v{t}, v{t}\n  v_fract_f32 v{t+1}, v{t+1}")
        A(f"""
  v_cos_f32 v{dst}, v{t+1}
  v_sin_f32 v{dst+1}, v{t+1}
  s_nop 0
  v_mul_f32 v{dst}, v{dst}, v{t}
  v_mul_f32 v{dst+1}, v{dst+1}, v{t}
""")
    tmp = [0]
    def cmul(d, a, b):
        t = 52 + 2 * (tmp[0] & 3); tmp[0] += 1
        A(f"  v_pk_mul_f32 {vr(t,2)}, {vr(a,2)}, {vr(b,2)} op_sel:[1,1] op_sel_hi:[1,0]")
        A(f"  v_pk_fma_f32 {vr(d,2)}, {vr(a,2)}, {vr(b,2)}, {vr(t,2)} op_sel_hi:[0,1,1] neg_lo:[0,0,1]")
    ow = [0]
    def putG(row, a, neg=False):
        o = 48 + (ow[0] & 3); ow[0] += 1
        if neg: A(f"  v_cvt_pk_f16_f32 v{o}, -v{a}, v{a+1}")
        else:   A(f"  v_cvt_pk_f16_f32 v{o}, v{a}, -v{a+1}")
        A(f"  ds_write_b32 v1, v{o} offset:{TG + row*TGS}")
    def putE(col, a):
        o = 48 + (ow[0] & 3); ow[0] += 1
        A(f"  v_cvt_pk_f16_f32 v{o}, v{a}, v{a+1}")
        A(f"  ds_write_b32 v1, v{o} offset:{TE + col*TGS}")
    A(f"  s_cmp_ge_u32 s3, 2\n  s_cbranch_scc1 {L}_part1")
    W = lambda j: 12 + 2 * (j - 1)
    pw(W(1), 1, 44)
    pw(28, 128, 40)
    putG(0, 6)
    cmul(W(2), W(1), W(1)); cmul(30, 6, 28)
    cmul(W(3), W(2), W(1)); cmul(W(4), W(2), W(2)); cmul(32, 30, 28)
    putG(8, 30)
    cmul(W(5), W(4), W(1)); cmul(W(6), W(4), W(2)); cmul(W(7), W(4), W(3)); cmul(W(8), W(4), W(4)); cmul(34, 32, 28)
    putG(16, 32); putG(20, 34)
    o = [36, 38, 40, 42]
    k = 0
    for j in range(1, 8):
        for hb, row0 in ((6, 0), (30, 8)):
            r = o[k & 3]; k += 1
            cmul(r, hb, W(j)); putG(row0 + j, r)
    for jj, j in enumerate((2, 4, 6)):
        for hb, row0 in ((32, 16), (34, 20)):
            r = o[k & 3]; k += 1
            cmul(r, hb, W(j)); putG(row0 + jj + 1, r)
    A(f"  v_pk_add_f32 {vr(W(7),2)}, {vr(W(7),2)}, {vr(W(8),2)} neg_lo:[0,1] neg_hi:[0,1]")
    A(f"  v_pk_add_f32 {vr(W(6),2)}, {vr(W(6),2)}, {vr(W(8),2)} neg_lo:[0,1] neg_hi:[0,1]")
    cmul(36, 30, W(7)); putG(41, 36)
    cmul(38, 34, W(6)); putG(42, 38)
    A(f"  s_branch {L}_tabdone\n{L}_part1:")
    pw(12, 8, 44)
    pw(28, 128, 40)
    pw(30, 512, 44)
    pw(32, 4, 40)
    A(f"  v_mov_b32 v48, 0x3c00\n  ds_write_b32 v1, v48 offset:{TE}")
    A(f"  v_mov_b32 v49, 0\n  ds_write_b32 v1, v49 offset:{TG + kimg.ROW_ZERO*TGS}")
    putE(1, 12)
    cmul(14, 12, 12); cmul(34, 6, 30)
    putE(2, 14)
    cmul(20, 14, 12); cmul(16, 14, 14)
    putE(3, 20); putE(4, 16)
    cmul(22, 16, 12); cmul(24, 16, 14); cmul(26, 16, 20); cmul(18, 16, 16)
    putE(5, 22); putE(6, 24); putE(7, 26); putE(8, 18)
    Ereg = {1: 12, 2: 14, 3: 20, 4: 16, 5: 22, 6: 24, 7: 26}
    hcur = 34
    for a in range(4, 17):
        hn = 70 - hcur
        if a < 16: cmul(hn, hcur, 28)
        if a < 8:
            putG(24 + 2 * (a - 4), hcur)
            cmul(40, hcur, 32); putG(25 + 2 * (a - 4), 40)
        elif a < 16:
            putG(32 + (a - 8), hcur)
            if a == 8: putG(kimg.ROW_N1024, hcur, neg=True)
        else:
            putG(40, hcur)
        b = a - 4 + 1
        if 1 <= b <= 7:
            cmul(42, 18, Ereg[b]); putE(8 + b, 42)
        hcur = hn
    A(f"""
{L}_tabdone:
  v_and_b32 v2, 15, v0
  v_bfe_u32 v3, v0, 4, 2
  v_mul_u32_u24 v8, {TGS}, v2
  v_lshl_add_u32 v8, v3, 4, v8
  s_mul_i32 s20, s3, {16*TGS}
  v_add_u32 v9, s20, v8
  v_mul_u32_u24 v10, 192, v2
  v_lshl_add_u32 v10, v3, 4, v10
  s_lshl_b32 s20, s3, 6
  v_add_u32 v10, s20, v10
  s_waitcnt lgkmcnt(0)
  s_barrier
  s_cmp_ge_u32 s3, 3
  s_cbranch_scc1 {L}_nomfma
""")
    for ks in range(4):
        A(f"  ds_read_b128 {vr(12+8*ks,4)}, v9 offset:{TG + 64*ks}")
        A(f"  ds_read_b128 {vr(16+8*ks,4)}, v8 offset:{TE + 64*ks}")
    for ks in range(8):
        b = 12 + 8 * (ks & 3)
        A(f"  s_waitcnt lgkmcnt({6 if ks < 5 else 2*(7-ks)})" if ks < 4 or True else "")
        A(f"  v_mfma_f32_16x16x32_f16 v[44:47], {vr(b,4)}, {vr(b+4,4)}, {'0' if ks == 0 else 'v[44:47]'}")
        if ks < 4:
            A(f"  ds_read_b128 {vr(b,4)}, v9 offset:{TG + 64*(ks+4)}")
            A(f"  ds_read_b128 {vr(b+4,4)}, v8 offset:{TE + 64*(ks+4)}")
    A(f"""
  s_nop 7
  ds_write_b128 v10, v[44:47] offset:{KFO}
{L}_nomfma:
  s_mul_i32 s20, s16, {kimg.KIMG_STRIDE}
  s_add_u32 s28, s14, s20
  s_addc_u32 s29, s15, 0
  s_add_u32 s28, s28, {WS_KIMG}
  s_addc_u32 s29, s29, 0
  s_mov_b32 s30, {kimg.IMG_BYTES}
  s_mov_b32 s31, 0x00020000
""")
    for k in range(4):
        A(f"  v_and_b32 v{12+2*k}, 0xffff, v{60+k}")
        A(f"  v_lshrrev_b32 v{13+2*k}, 16, v{60+k}")
    A("  v_lshlrev_b32 v2, 4, v0\n  s_waitcnt lgkmcnt(0)\n  s_barrier")
    for k in range(8):
        A(f"  ds_read_b32 v{20+k}, v{12+k} offset:{KFO}")
    for k in range(4):
        A(f"  s_waitcnt lgkmcnt({6-2*k})")
        A(f"  v_cvt_pk_f16_f32 v{28+k}, v{20+2*k}, v{21+2*k}")
    A(f"""
  buffer_store_dwordx4 v[28:31], v2, s[28:31], 0 offen
  s_cmp_lg_u32 s3, 3
  s_cbranch_scc1 {L}_done
  s_mov_b32 s30, {kimg.IMG_BYTES + 4}
  v_mov_b32 v3, s27
  v_mov_b32 v4, {kimg.IMG_BYTES}
  s_mul_i32 s20, s16, {UT_STRIDE}
  s_add_u32 s32, s14, s20
  s_addc_u32 s33, s15, 0
  s_mov_b32 s34, 128
  s_mov_b32 s35, 0x00020000
  v_and_b32 v5, 63, v0
  v_lshlrev_b32 v5, 2, v5
  v_mov_b32 v6, 0
  buffer_store_dword v3, v4, s[28:31], 0 offen
  buffer_store_dword v6, v5, s[32:35], 0 offen
{L}_done:
  s_endpgm
""")
    A.kernel_desc(name, 80, 48)
    idx = [i * 4 for i in kimg.img] + [kimg.ZERO * 4] * (2048 - kimg.NEL)
    tbl = ".p2align 4\n.type kimg_idx,@object\nkimg_idx:\n"
    for i in range(0, 2048, 16):
        tbl += "  .short " + ", ".join(str(v) for v in idx[i:i+16]) + "\n"
    tbl += ".size kimg_idx, 4096"
    A.desc.append(tbl)

if __name__ == "__main__":
    A = Asm()
    gen_k1(A)
    print(A.text())
```

```python
from asmlib import *
import kimg

def gen_k2(A, name="k2_kernel", stamps=False):
    U0 = 1024
    W9 = U0 + 4096 + 512
    W7 = W9 + 2048 + 528
    W5 = W7 + 2048 + 256
    W3 = W5 + 4096 + 272
    U2 = W3 + 4096 + 128
    KI = U2 + 4096
    WAVE = KI + 4096
    assert WAVE % 16 == 0
    STG = 4 * WAVE
    LDS = STG + 128 * 144
    assert LDS <= 160 * 1024, LDS
    A.add_launch(name, 160, 256, LDS)
    A.kernel_begin(name)
    L = name
    nst = [0]
    def stamp():
        if stamps:
            A(f"  s_memtime s[{50+2*nst[0]}:{51+2*nst[0]}]")
            lq.append(("stamp", nst[0])); lq.append(("stamp", nst[0]))
            nst[0] += 1
    lq = []
    def ds(tag, txt):
        A(txt); lq.append(tag)
    def lwait(tags):
        idxs = [i for i, t in enumerate(lq) if t in tags]
        if not idxs: return
        idx = max(idxs)
        n = len(lq) - 1 - idx
        if any(t[0] == "stamp" for t in lq): n = 0
        n = min(n, 15)
        A(f"  s_waitcnt lgkmcnt({n})")
        del lq[:len(lq) - n]
    ACC = 16
    DF = 48
    NDF = 8
    SRC = 80
    OO = 112
    WO = 120
    vZ, vB0, vR0, vRC, vT16, vT8, vT4, vA4, vA8, vA16, vWr, vSt = 2, 3, 4, 5, 6, 7, 8, 9, 10, 11, 12, 13
    AOFF = 144
    aR0, aRC, aT = 0, 36, {4: 40, 8: 72, 16: 96}
    A(f"""
  s_cmp_ge_u32 s2, 160
  s_cbranch_scc1 {L}_done
  {'s_memtime s[48:49]' if stamps else ''}
  s_load_dwordx2 s[6:7], s[0:1], {KA['ws']}
  v_lshrrev_b32 v1, 6, v0
  s_and_b32 s16, s2, 7
  s_mul_i32 s16, s16, 20
  v_readfirstlane_b32 s3, v1           ; wave
  s_lshr_b32 s17, s2, 3
  s_add_u32 s16, s16, s17
  v_and_b32 v1, 63, v0                 ; lane
  s_lshl_b32 s17, s16, 2
  s_add_u32 s17, s17, s3               ; channel d
  s_mul_i32 s26, s3, {WAVE}
  v_lshl_add_u32 v{vWr}, v1, 4, s26
  v_mov_b32 v48, 0
  v_mov_b32 v49, 0
  v_mov_b32 v50, 0
  v_mov_b32 v51, 0
""")
    for x0 in (U0, W9, W7, W5, W3, U2):
        A(f"  ds_write_b128 v{vWr}, v[48:51] offset:{x0 - 1024}")
    A(f"""
  v_lshlrev_b32 v14, 4, v1             ; lane*16
  s_mul_i32 s18, s17, {UT_STRIDE}
  s_mul_i32 s19, s17, {kimg.KIMG_STRIDE}
  s_add_u32 s19, s19, {WS_KIMG}
  s_waitcnt lgkmcnt(0)
  s_add_u32 s8, s6, s18
  s_addc_u32 s9, s7, 0
  s_mov_b32 s10, {128 + 4096}
  s_mov_b32 s11, 0x00020000
  s_add_u32 s12, s6, s19
  s_addc_u32 s13, s7, 0
  s_mov_b32 s14, {kimg.IMG_BYTES}
  s_mov_b32 s15, 0x00020000
  s_load_dword s27, s[12:13], {kimg.IMG_BYTES}      ; unscale
  s_add_u32 m0, s26, {KI}
  s_mov_b32 s20, 128
""")
    for i in range(4):
        A(f"  buffer_load_dwordx4 v14, s[12:15], 0 offen offset:{1024*i} lds")
    A(f"  s_add_u32 m0, s26, {U0}\n  s_mov_b32 s21, 120")
    for i in range(4):
        A(f"  buffer_load_dwordx4 v14, s[8:11], s20 offen offset:{1024*i} lds")
    for i in range(4):
        A(f"  buffer_load_dwordx4 {vr(SRC+8*i,4)}, v14, s[8:11], s21 offen offset:{1024*i}")
        A(f"  buffer_load_dwordx4 {vr(SRC+8*i+4,4)}, v14, s[8:11], s21 offen offset:{1024*i+16}")
    sg = kimg.segs
    A(f"""
  v_and_b32 v14, 15, v1                ; n / b
  v_lshrrev_b32 v15, 4, v1             ; g
  v_lshlrev_b32 v48, 5, v14
  v_lshl_add_u32 v48, v15, 4, v48
  s_add_u32 s22, s26, {U0 - 544}
  v_add_u32 v{vB0}, s22, v48
  v_lshlrev_b32 v48, 3, v15
  v_sub_u32 v48, v48, v14
  v_add_u32 v48, 15, v48               ; st
  v_and_b32 v49, 1, v48
  v_cmp_eq_u32 vcc, 1, v49
  v_and_b32 v48, -2, v48
  v_lshlrev_b32 v48, 1, v48            ; bytes
  s_add_u32 s22, s26, {KI}
  v_add_u32 v48, s22, v48
  v_mov_b32 v50, {2*sg['R0E']}
  v_mov_b32 v51, {2*sg['R0O']}
  v_cndmask_b32 v50, v50, v51, vcc
  v_add_u32 v{vR0}, v48, v50
  v_mov_b32 v50, {2*sg['RCE']}
  v_mov_b32 v51, {2*sg['RCO']}
  v_cndmask_b32 v50, v50, v51, vcc
  v_add_u32 v{vRC}, v48, v50
  v_sub_u32 v48, 15, v14               ; 15-n
  v_and_b32 v49, 1, v15
  v_lshlrev_b32 v49, 4, v49            ; 8*(g&1)*2 bytes
  v_add_u32 v49, s22, v49
  v_lshrrev_b32 v52, 1, v15            ; pi
  v_mov_b32 v50, {2*sg['T16_0E']}
  v_mov_b32 v51, {2*sg['T16_0O']}
  v_cndmask_b32 v50, v50, v51, vcc
  v_mul_u32_u24 v51, {2*(sg['T16_1E']-sg['T16_0E'])}, v52
  v_add3_u32 v50, v50, v51, v49
  v_and_b32 v51, -2, v48
  v_lshl_add_u32 v{vT16}, v51, 1, v50
  v_mul_u32_u24 v51, {2*(sg['T8_1E']-sg['T8_0E'])}, v52
  v_add_u32 v50, {2*sg['T8_0E']}, v49
  v_add_u32 v50, v50, v51
  v_lshl_add_u32 v{vT8}, v48, 2, v50
  v_mul_u32_u24 v51, {2*(sg['T4_1E']-sg['T4_0E'])}, v52
  v_add_u32 v50, {2*sg['T4_0E']}, v49
  v_add_u32 v50, v50, v51
  v_lshl_add_u32 v{vT4}, v48, 3, v50
  v_bfe_u32 v48, v1, 2, 2              ; r
  v_and_b32 v49, 1, v15                ; hb
  v_lshl_add_u32 v48, v49, 3, v48      ; 8hb + r
  v_and_b32 v49, 3, v1
  v_lshlrev_b32 v49, 3, v49
  v_add_u32 v49, s26, v49              ; base + 8*c4
""")
    assert sg['T16_1O'] - sg['T16_0O'] == sg['T16_1E'] - sg['T16_0E']
    for P, va, ae, ao in ((4, vA4, W3, U2), (8, vA8, W5, W3 - 8), (16, vA16, W9, W7 - 16)):
        A(f"""
  v_mul_u32_u24 v50, {(ao - ae) & 0xffffff if ao >= ae else 0}, v52
  v_mul_u32_u24 v51, {2*P}, v48
  v_add3_u32 v50, v50, v51, v49
  v_add_u32 v{va}, {ae - 32*P}, v50
""")
        assert ao >= ae
    A(f"""
  v_mul_u32_u24 v48, 144, v14
  v_lshl_add_u32 v48, v52, 6, v48
  v_and_b32 v49, 1, v15
  v_lshl_add_u32 v48, v49, 3, v48
  s_lshl_b32 s22, s3, 4
  s_add_u32 s22, s22, {STG}
  v_add_u32 v{vSt}, s22, v48
""")
    stamp()
    def toep(tag, areg, vaddr, dw):
        return [lambda: ds(tag, f"  ds_read2_b32 {ar(areg,2)}, v{vaddr} offset0:{dw} offset1:{dw+1}"),
                lambda: ds(tag, f"  ds_read2_b32 {ar(areg+2,2)}, v{vaddr} offset0:{dw+2} offset1:{dw+3}")]
    A("  s_waitcnt vmcnt(12)")
    A("  s_waitcnt lgkmcnt(0)"); lq.clear()
    for k in range(0, 17, 2):
        for f in toep(("R0", k), aR0 + 2 * k, vR0, 8 * (16 - k)): f()
    for f in toep(("RC",), aRC, vRC, 0): f()
    side = []
    for P, va in ((4, vT4), (8, vT8), (16, vT16)):
        s = 16 // P
        for kap in range(s + 4):
            side += toep(("T", P, kap), aT[P] + 4 * kap, va, 8 * kap)
    wprep = []
    for i in range(4):
        E = lambda j, i=i: SRC + 8 * i + 2 + j
        O = lambda j: OO + 2 + j
        full = i < 2
        ops = [lambda i=i: A(f"  s_waitcnt vmcnt({6 - 2*i})")]
        for j in (range(-2, 5) if full else range(-1, 4)):
            ops.append(lambda j=j, E=E: A(f"  v_alignbit_b32 v{O(j)}, v{E(j+1)}, v{E(j)}, 16"))
        ops.append(lambda E=E: A(f"  v_pk_mov_b32 {vr(WO+16,2)}, {vr(E(-2),2)}, {vr(E(0),2)} op_sel:[1,0]"))
        ops.append(lambda E=E: A(f"  v_pk_mov_b32 {vr(WO+18,2)}, {vr(E(0),2)}, {vr(E(2),2)} op_sel:[1,0]"))
        ops.append(lambda i=i: ds(("w",), f"  ds_write_b128 v{vWr}, {vr(WO+16,4)} offset:{U2 + 1024*i}"))
        for j in range(4):
            ops.append(lambda j=j, E=E: A(f"  v_pk_add_f16 v{WO+j}, v{O(j-1)}, v{E(j)}"))
        for j in range(4):
            ops.append(lambda j=j: A(f"  v_pk_add_f16 v{WO+j}, v{WO+j}, v{O(j)}"))
        ops.append(lambda i=i: ds(("w",), f"  ds_write_b128 v{vWr}, {vr(WO,4)} offset:{W3 + 1024*i}"))
        for j in range(4):
            ops.append(lambda j=j, E=E: A(f"  v_pk_add_f16 v{WO+4+j}, v{WO+j}, v{E(j-1)}"))
        for j in range(4):
            ops.append(lambda j=j, E=E: A(f"  v_pk_add_f16 v{WO+4+j}, v{WO+4+j}, v{E(j+1)}"))
        ops.append(lambda i=i: ds(("w",), f"  ds_write_b128 v{vWr}, {vr(WO+4,4)} offset:{W5 + 1024*i}"))
        if full:
            for j in range(4):
                ops.append(lambda j=j: A(f"  v_pk_add_f16 v{WO+8+j}, v{WO+4+j}, v{O(j-2)}"))
            for j in range(4):
                ops.append(lambda j=j: A(f"  v_pk_add_f16 v{WO+8+j}, v{WO+8+j}, v{O(j+1)}"))
            ops.append(lambda i=i: ds(("w",), f"  ds_write_b128 v{vWr}, {vr(WO+8,4)} offset:{W7 + 1024*i}"))
            for j in range(4):
                ops.append(lambda j=j, E=E: A(f"  v_pk_add_f16 v{WO+12+j}, v{WO+8+j}, v{E(j-2)}"))
            for j in range(4):
                ops.append(lambda j=j, E=E: A(f"  v_pk_add_f16 v{WO+12+j}, v{WO+12+j}, v{E(j+2)}"))
            ops.append(lambda i=i: ds(("w",), f"  ds_write_b128 v{vWr}, {vr(WO+12,4)} offset:{W9 + 1024*i}"))
        if i == 0:
            def neg(E=E):
                A(f"""
  v_pack_b32_f16 v{OO}, v{E(0)}, v{WO}
  v_pack_b32_f16 v{OO+1}, v{WO+4}, v{WO+8}
  v_lshlrev_b32 v{OO+2}, 16, v{E(0)}
  v_pack_b32_f16 v{OO+3}, v{WO}, v{WO+4}
  s_mov_b64 exec, 1
""")
                ds(("w",), f"  ds_write_b64 v{vWr}, {vr(OO,2)} offset:{W9 - 8}")
                ds(("w",), f"  ds_write_b64 v{vWr}, {vr(OO+2,2)} offset:{W7 - 8}")
                ds(("w",), f"  ds_write_b32 v{vWr}, v{OO} offset:{W5 - 4}")
                ds(("w",), f"  ds_write_b32 v{vWr}, v{OO+2} offset:{W3 - 4}")
                A("  s_mov_b64 exec, -1")
            ops.append(neg)
        wprep += ops
    side = wprep + side
    items = []
    for e in list(range(-14, 113, 2)) + [16 * t - 63 for t in range(3, 8)]:
        ms = []
        if e & 1:
            ms.append(((e + 63) // 16, ar(aRC, 4), ("RC",), True))
        else:
            t = -(-e // 16); k = 16 * t - e
            if t <= 7: ms.append((t, ar(aR0 + 2 * k, 4), ("R0", k), True))
            if k == 0 and t + 1 <= 7: ms.append((t + 1, ar(aR0 + 32, 4), ("R0", 16), True))
        items.append(("u", e, ms))
    n0 = len(items)
    for P in (4, 8, 16):
        s = 16 // P
        Jmax = s * 7 - 8 + s + 3
        for J in range(-1, Jmax + 1):
            ms = []
            for t in range(8):
                kap = J - s * t + 8
                if 0 <= kap < s + 4: ms.append((t, ar(aT[P] + 4 * kap, 4), ("T", P, kap), False))
            items.append(("w", (P, J), ms))
    def load(idx):
        kind, x, _ = items[idx]
        r = DF + 4 * (idx % NDF)
        if kind == "u":
            ds(("D", idx), f"  ds_read_b128 {vr(r,4)}, v{vB0} offset:{32*(x+16)}")
        else:
            P, J = x
            va = {4: vA4, 8: vA8, 16: vA16}[P]
            for h in range(2):
                ds(("D", idx), f"  ds_read_b64_tr_b16 {vr(r+2*h,2)}, v{va} offset:{2*P*(16*(J+1)+4*h)}")
    A("  s_waitcnt vmcnt(8)                 ; U landed")
    stamp()
    PF = 5
    for idx in range(PF): load(idx)
    inited = set()
    si = 0
    per = -(-len(side) // (n0 - PF - 2))
    for idx, (kind, x, ms) in enumerate(items):
        if idx == n0: stamp()
        nxt = idx + PF
        if nxt < len(items):
            if nxt >= n0:
                while si < len(side): side[si](); si += 1
            load(nxt)
        r = DF + 4 * (idx % NDF)
        for (t, treg, ttag, toep_is_A) in ms:
            lwait({("D", idx), ttag})
            acc = vr(ACC + 4 * t, 4)
            c = acc if t in inited else "0"
            inited.add(t)
            if toep_is_A: A(f"  v_mfma_f32_16x16x32_f16 {acc}, {treg}, {vr(r,4)}, {c}")
            else:         A(f"  v_mfma_f32_16x16x32_f16 {acc}, {vr(r,4)}, {treg}, {c}")
        for _ in range(per):
            if si < len(side): side[si](); si += 1
    stamp()
    A("  s_waitcnt lgkmcnt(0)\n  s_nop 6"); lq.clear()
    for t in range(8):
        a = ACC + 4 * t
        for r in range(4): A(f"  v_mul_f32 v{a+r}, s27, v{a+r}")
        A(f"  v_cvt_pk_bf16_f32 v{a}, v{a}, v{a+1}\n  v_cvt_pk_bf16_f32 v{a+1}, v{a+2}, v{a+3}")
        A(f"  ds_write_b64 v{vSt}, {vr(a,2)} offset:{2304*t}")
    A.srd(8, 6, 256 * XS, WS_Y8)
    A(f"""
  v_lshrrev_b32 v48, 3, v0
  v_mul_u32_u24 v48, 144, v48
  v_and_b32 v49, 7, v0
  v_lshl_add_u32 v48, v49, 4, v48
  v_lshrrev_b32 v49, 2, v0
  v_mul_u32_u24 v49, {XS}, v49
  v_and_b32 v50, 3, v0
  v_lshl_add_u32 v49, v50, 4, v49
  s_lshl_b32 s22, s16, 6
  v_add_u32 v49, s22, v49
  v_add_u32 v48, {STG}, v48
  s_waitcnt lgkmcnt(0)
  s_barrier
""")
    for i in range(4):
        A(f"  ds_read_b128 {vr(52+4*i,4)}, v48 offset:{32*144*i}")
    for i in range(4):
        A(f"  s_waitcnt lgkmcnt({3-i})\n  s_mov_b32 s22, {64*XS*i}")
        A(f"  buffer_store_dwordx4 {vr(52+4*i,4)}, v49, s[8:11], s22 offen")
    if stamps:
        stamp()
        A("  s_waitcnt vmcnt(0)")
        stamp()
        A("  s_waitcnt lgkmcnt(0)")
        A.srd(8, 6, 0x100000, 0x2020000)
        A(f"  s_lshl_b32 s36, s2, 2\n  s_add_u32 s36, s36, s3\n  s_lshl_b32 s36, s36, 6\n  v_mov_b32 v2, s36")
        for k in range(nst[0]):
            A(f"  s_sub_u32 s36, s{50+2*k}, s48\n  v_mov_b32 v3, s36\n  buffer_store_dword v3, v2, s[8:11], 0 offen offset:{4*k}")
    A(f"{L}_done:\n  s_endpgm")
    A.kernel_desc(name, AOFF + 116, 80, AOFF)

if __name__ == "__main__":
    import sys
    from k1 import gen_k1
    A = Asm()
    gen_k1(A)
    gen_k2(A, stamps=len(sys.argv) > 1)
    print(A.text())
```

```python
from asmlib import *

def gen_k3(A, name="k3_kernel"):
    YB = 0
    HB = 10240
    SB = HB + 10 * 1152
    LDS = SB + 8 * 96
    A.add_launch(name, 256, 640, LDS)
    A.kernel_begin(name)
    L = name
    A(f"""
  s_cmp_ge_u32 s2, 256
  s_cbranch_scc1 {L}_done
  s_load_dwordx2 s[4:5], s[0:1], {KA['x']}
  s_load_dwordx2 s[6:7], s[0:1], {KA['ws']}
  s_load_dwordx2 s[28:29], s[0:1], {KA['Dsk']}
  v_lshrrev_b32 v1, 6, v0
  v_and_b32 v2, 7, v0                  ; t
  v_readfirstlane_b32 s3, v1           ; wave
  v_and_b32 v1, 63, v0                 ; lane
  v_lshrrev_b32 v3, 3, v1              ; qq
  s_lshl_b32 s16, s2, 3                ; token0
  v_add_u32 v4, s16, v2                ; token
  v_lshlrev_b32 v5, 3, v4
  v_mul_u32_u24 v4, 1280, v4
  s_lshl_b32 s17, s3, 7
  v_lshl_add_u32 v6, v3, 3, s17
  v_add_u32 v4, v4, v6                 ; x/h offset
  v_lshlrev_b32 v7, 4, v0              ; tid*16
  s_mul_i32 s18, s2, {XS}
  s_lshl_b32 s19, s3, 10
  s_add_u32 m0, s19, {YB}
  s_waitcnt lgkmcnt(0)
""")
    A.srd(8, 6, 256 * XS, WS_Y8)
    A("  buffer_load_dwordx4 v7, s[8:11], s18 offen lds")
    A.srd(12, 4, 2048 * 1280)
    A("  buffer_load_dwordx2 v[16:17], v4, s[12:15], 0 offen")
    A("  buffer_load_dwordx2 v[18:19], v4, s[12:15], 0 offen offset:64")
    A.srd(20, 6, 2048 * 8, WS_ST1)
    A("  buffer_load_dwordx2 v[14:15], v5, s[20:23], 0 offen")
    A.srd(24, 28, 1280)
    A("  buffer_load_dwordx2 v[20:21], v6, s[24:27], 0 offen")
    A("  buffer_load_dwordx2 v[22:23], v6, s[24:27], 0 offen offset:64")
    A.srd(32, 6, 2048 * 1280, WS_H)
    A.srd(36, 6, 256 * XS, WS_HN8)
    A(f"""
  v_lshrrev_b32 v8, 4, v1
  v_lshlrev_b32 v8, 7, v8
  v_bfe_u32 v9, v1, 1, 1
  v_lshl_add_u32 v8, v9, 6, v8
  v_bfe_u32 v9, v1, 2, 2               ; r
  v_lshl_add_u32 v8, v9, 4, v8
  v_and_b32 v10, 1, v1
  v_lshl_add_u32 v8, v10, 3, v8
  v_add_u32 v8, s19, v8
  s_mul_i32 s40, s3, 1152
  s_add_u32 s40, s40, {HB}
  v_mul_u32_u24 v10, 144, v2
  v_lshl_add_u32 v10, v3, 3, v10
  v_add_u32 v10, s40, v10
  v_mul_u32_u24 v11, 144, v9
  v_lshrrev_b32 v12, 4, v1
  v_lshl_add_u32 v11, v12, 5, v11
  v_and_b32 v12, 3, v1
  v_lshl_add_u32 v11, v12, 3, v11
  v_add_u32 v11, s40, v11
  v_mul_u32_u24 v12, 96, v2
  v_add_u32 v12, {SB}, v12
  v_lshrrev_b32 v13, 5, v1
  v_lshl_add_u32 v13, v13, 2, v12
  s_lshl_b32 s41, s3, 3
  v_add_u32 v13, s41, v13
  s_waitcnt vmcnt(5)
  ds_read_b64_tr_b16 v[24:25], v8 offset:{YB}
  ds_read_b64_tr_b16 v[26:27], v8 offset:{YB + 512}
  s_waitcnt vmcnt(2)
""")
    X, Y, U = 32, 40, 48
    for k in range(4):
        A(f"  v_lshlrev_b32 v{X+2*k}, 16, v{16+k}\n  v_and_b32 v{X+2*k+1}, 0xffff0000, v{16+k}")
    A("  v_mul_f32 v28, v14, v15\n  v_mov_b32 v30, v15")
    for k in range(4):
        A(f"  v_pk_fma_f32 {vr(U+2*k,2)}, {vr(X+2*k,2)}, v[30:31], v[28:29] op_sel_hi:[1,0,0] neg_lo:[0,0,1] neg_hi:[0,0,1]")
    A("  s_waitcnt vmcnt(0)")
    D = 56
    for k in range(4):
        A(f"  v_lshlrev_b32 v{D+2*k}, 16, v{20+k}\n  v_and_b32 v{D+2*k+1}, 0xffff0000, v{20+k}")
    A("  s_waitcnt lgkmcnt(0)")
    for k in range(4):
        A(f"  v_lshlrev_b32 v{Y+2*k}, 16, v{24+k}\n  v_and_b32 v{Y+2*k+1}, 0xffff0000, v{24+k}")
    for k in range(4):
        A(f"  v_pk_fma_f32 {vr(Y+2*k,2)}, {vr(U+2*k,2)}, {vr(D+2*k,2)}, {vr(Y+2*k,2)}")
    for k in range(4):
        A(f"  v_pk_add_f32 {vr(X+2*k,2)}, {vr(X+2*k,2)}, {vr(Y+2*k,2)}")
    for k in range(4):
        A(f"  v_cvt_pk_bf16_f32 v{16+k}, v{X+2*k}, v{X+2*k+1}")
    A("  buffer_store_dwordx2 v[16:17], v4, s[32:35], 0 offen")
    A("  buffer_store_dwordx2 v[18:19], v4, s[32:35], 0 offen offset:64")
    for k in range(4):
        A(f"  v_lshlrev_b32 v{X+2*k}, 16, v{16+k}\n  v_and_b32 v{X+2*k+1}, 0xffff0000, v{16+k}")
    for k in range(4):
        A(f"  v_pk_add_f32 {vr(X+2*k,2)}, {vr(X+2*k,2)}, v[14:15] op_sel_hi:[1,0] neg_lo:[0,1] neg_hi:[0,1]")
    A(f"""
  v_pk_add_f32 v[40:41], {vr(X,2)}, {vr(X+2,2)}
  v_pk_add_f32 v[42:43], {vr(X+4,2)}, {vr(X+6,2)}
  v_pk_mul_f32 v[44:45], {vr(X,2)}, {vr(X,2)}
  v_pk_mul_f32 v[46:47], {vr(X+2,2)}, {vr(X+2,2)}
  v_pk_add_f32 v[40:41], v[40:41], v[42:43]
  v_pk_fma_f32 v[44:45], {vr(X+4,2)}, {vr(X+4,2)}, v[44:45]
  v_pk_fma_f32 v[46:47], {vr(X+6,2)}, {vr(X+6,2)}, v[46:47]
  v_add_f32 v40, v40, v41
  v_pk_add_f32 v[44:45], v[44:45], v[46:47]
  s_nop 0
  v_add_f32 v41, v44, v45
  s_nop 1
  v_permlane32_swap_b32 v40, v41
  s_nop 1
  v_add_f32 v40, v40, v41
  v_mov_b32 v41, v40
  s_nop 1
  v_permlane16_swap_b32 v40, v41
  s_nop 1
  v_add_f32 v40, v40, v41
  s_nop 1
  v_add_f32 v40, v40, v40 row_ror:8
  s_mov_b32 s42, 0xff
  s_mov_b32 s43, 0xff
  s_mov_b64 exec, s[42:43]
  ds_write_b32 v13, v40
  s_mov_b64 exec, -1
  s_waitcnt lgkmcnt(0)
  s_barrier
""")
    for k in range(5):
        A(f"  ds_read_b128 {vr(40+4*k,4)}, v12 offset:{16*k}")
    A(f"""
  s_waitcnt lgkmcnt(3)
  v_pk_add_f32 v[40:41], v[40:41], v[42:43]
  v_pk_add_f32 v[44:45], v[44:45], v[46:47]
  s_waitcnt lgkmcnt(1)
  v_pk_add_f32 v[48:49], v[48:49], v[50:51]
  v_pk_add_f32 v[52:53], v[52:53], v[54:55]
  v_pk_add_f32 v[40:41], v[40:41], v[44:45]
  s_waitcnt lgkmcnt(0)
  v_pk_add_f32 v[56:57], v[56:57], v[58:59]
  v_pk_add_f32 v[48:49], v[48:49], v[52:53]
  v_pk_add_f32 v[40:41], v[40:41], v[56:57]
  s_mov_b32 s42, {fbits(1.0/640)}
  v_pk_add_f32 v[40:41], v[40:41], v[48:49]
  s_nop 0
  v_mul_f32 v40, s42, v40
  v_mul_f32 v41, s42, v41
  v_fma_f32 v41, -v40, v40, v41             ; var2
  v_max_f32 v41, 0, v41
  v_add_f32 v42, v40, v14                   ; mean2
  v_cvt_pk_bf16_f32 v43, v41, v42
  v_lshlrev_b32 v44, 16, v43                ; v2_bf
  v_and_b32 v43, 0xffff0000, v43            ; m2_bf
  v_add_f32 v44, {fbits(1e-5)}, v44
  v_cvt_pk_bf16_f32 v44, v44, v44
  v_lshlrev_b32 v44, 16, v44
  v_sqrt_f32 v44, v44
  v_sub_f32 v45, v43, v14                   ; m2_bf - m1
  v_cvt_pk_bf16_f32 v44, v44, v44
  v_lshlrev_b32 v44, 16, v44                ; sd2
  v_rcp_f32 v44, v44                        ; r2
  v_sub_f32 v46, v40, v45
  v_mul_f32 v46, v46, v44                   ; mean3
  v_mul_f32 v47, v41, v44
  v_mul_f32 v47, v47, v44                   ; var3
  v_cvt_pk_bf16_f32 v47, v47, v46
  v_and_b32 v46, 0xffff0000, v47            ; m3_bf
  v_lshlrev_b32 v47, 16, v47
  v_add_f32 v47, {fbits(1e-5)}, v47
  v_cvt_pk_bf16_f32 v47, v47, v47
  v_lshlrev_b32 v47, 16, v47
  v_sqrt_f32 v47, v47
  v_fma_f32 v46, v45, v44, v46
  v_cvt_pk_bf16_f32 v47, v47, v47
  v_lshlrev_b32 v47, 16, v47
  v_rcp_f32 v47, v47                        ; r3
  s_nop 0
  v_mul_f32 v48, v44, v47                   ; A
  v_mul_f32 v50, v46, v47                   ; -B
""")
    for k in range(4):
        A(f"  v_pk_fma_f32 {vr(X+2*k,2)}, {vr(X+2*k,2)}, v[48:49], v[50:51] op_sel_hi:[1,0,0] neg_lo:[0,0,1] neg_hi:[0,0,1]")
    for k in range(4):
        A(f"  v_cvt_pk_bf16_f32 v{56+k}, v{X+2*k}, v{X+2*k+1}")
    A(f"""
  ds_write_b64 v10, v[56:57]
  ds_write_b64 v10, v[58:59] offset:64
  ds_read_b64_tr_b16 v[60:61], v11
  ds_read_b64_tr_b16 v[62:63], v11 offset:{4*144}
  s_waitcnt lgkmcnt(0)
  buffer_store_dwordx4 v[60:63], v7, s[36:39], s18 offen
{L}_done:
  s_endpgm
""")
    A.kernel_desc(name, 64, 48)
```

```python
import numpy as np

GROWS = [j for j in range(8)] + [128 + j for j in range(8)] \
      + [256 + j for j in (0, 2, 4, 6)] + [384 + j for j in (0, 2, 4, 6)] \
      + [512, 516, 640, 644, 768, 772, 896, 900] \
      + [1024 + 128 * a for a in range(8)] + [2048]
ROW_D255, ROW_D510, ROW_N1024, ROW_ZERO = 41, 42, 43, 44
def kf_index(row, e):
    return e * 48 + row
def idx_of_pos(v):
    for r, g in enumerate(GROWS):
        if v >= g and (v - g) % 8 == 0 and (v - g) // 8 < 16:
            if r == 40 and v != 2048: continue
            return kf_index(r, (v - g) // 8)
    raise ValueError(v)
ZERO = kf_index(ROW_ZERO, 0)
def K0(j):
    if j < 0 or j > 255: return ZERO
    if j == 255: return kf_index(ROW_D255, 15)
    return idx_of_pos(j)
def KC(j):
    return kf_index(ROW_N1024, 0) if j in (1020, 1021) else ZERO
def T(P, par, q):
    hi = 128 if (P == 16 and par == 0) else 127
    if q < 64 or q > hi: return ZERO
    v = P * q + par * (P // 2)
    if v == 510: return kf_index(ROW_D510, 15)
    return idx_of_pos(v)

segs = {}
img = []
def add(name, vals, pad_to):
    assert len(vals) <= pad_to and pad_to % 8 == 0
    segs[name] = len(img)
    img.extend(vals + [ZERO] * (pad_to - len(vals)))
R0 = [K0(287 - x) for x in range(304)]
add("R0E", R0, 304 + 48)
add("R0O", R0[1:], 304)
RC = [KC(1039 - x) for x in range(48)]
add("RCE", RC, 48 + 48)
add("RCO", RC[1:], 48)
for P in (16, 8, 4):
    s = 16 // P
    Q0 = 15 * s + 128
    n = 31 * s + 64 + 1
    n8 = (n + 7) // 8 * 8
    for par in (0, 1):
        RT = [T(P, par, Q0 - x) for x in range(n)]
        add(f"T{P}_{par}E", RT, n8)
        if s == 1:
            add(f"T{P}_{par}O", RT[1:], n8)
NEL = len(img)
assert NEL % 8 == 0
IMG_BYTES = NEL * 2
KIMG_STRIDE = (IMG_BYTES + 16 + 127) // 128 * 128
if __name__ == "__main__":
    print(segs, NEL, IMG_BYTES, KIMG_STRIDE)
```

```python
import sys
from asmlib import *
from k1 import gen_k1
from k2 import gen_k2
from k3 import gen_k3
from gemm_s import gen_gemm
HEADER = open("sequential_preLN__ssm_conv_s4d__mixer_token_mlp__prompt.s.ref").read().split("\n")
HEADER = "\n".join(l for l in HEADER if l.startswith(";") and "@launch" not in l and "Override" not in l and "grid=ceil" not in l)
A = Asm()
gen_k1(A); gen_k2(A); gen_k3(A)
gen_gemm(A, 1, 5, 3); gen_gemm(A, 2, 5, 3)
print(A.text(HEADER))
```

```python
from asmlib import *

def gen_gemm(A, which, R=5, name=None, stamps=False, pfx=True, pfw=True, pf2=0, stag=1, lead=0):
    name = name or f"gemm{which}_kernel"
    if which == 1:
        WSTR, WROWS, T, XOFF, XT = 3456, 2048, 32, WS_HN8, XT1
    else:
        WSTR, WROWS, T, XOFF, XT = 4096, 1728, 27, WS_G8, XT2
    WBYTES = WROWS * WSTR
    SLOT, WOFF = 18432, 10240
    LDS = R * SLOT
    NL, PER = 3, 6
    A.add_launch(name, 256, 512 if lead else 448, LDS)
    A.kernel_begin(name)
    L = name
    nst = [0]
    def stamp():
        if stamps:
            A(f"  s_memtime s[{50+2*nst[0]}:{51+2*nst[0]}]")
            nst[0] += 1
    A(f"""
  s_cmp_ge_u32 s2, 256
  s_cbranch_scc1 {L}_done
  {'s_memtime s[48:49]' if stamps else ''}
  {'s_memrealtime s[70:71]' if stamps else ''}
  s_load_dwordx2 s[4:5], s[0:1], {KA['w1'] if which == 1 else KA['w2']}
  s_load_dwordx2 s[6:7], s[0:1], {KA['ws']}
  v_lshrrev_b32 v1, 6, v0
  s_and_b32 s32, s2, 7                 ; xcd
  s_lshr_b32 s33, s2, 3                ; j
  v_readfirstlane_b32 s3, v1
  v_and_b32 v1, 63, v0                 ; lane
  s_and_b32 s34, s33, 7                ; j&7
  s_lshr_b32 s39, s33, 3               ; j>>3 (0..3)
  s_and_b32 s35, s32, 1
  s_lshl_b32 s35, s35, 2
  s_add_u32 s33, s39, s35              ; dtile (0..7)
  s_lshr_b32 s32, s32, 1               ; quarter
  s_mul_i32 s32, s32, {7 if which == 1 else 8}
  s_add_u32 s32, s32, s34              ; wtile
  s_mul_i32 s40, s33, {XT}
  s_add_u32 s40, s40, {XOFF}
""")
    if which == 1:
        A(f"""
  s_cmp_ge_u32 s34, 7
  s_cbranch_scc1 {L}_idle
  s_cmp_ge_u32 s32, 27
  s_cbranch_scc1 {L}_idle
""")
    A(f"""
  s_cmp_lt_u32 s3, 4
  s_cbranch_scc1 {L}_consumer
  s_cmp_eq_u32 s3, 7
  s_cbranch_scc1 {L}_toucher
""")
    A(f"""
  s_lshl_b32 s29, s39, 1
  s_add_u32 s29, s29, s34
  s_and_b32 s29, s29, 7
  s_lshl_b32 s29, s29, 1
  s_and_b32 s36, s2, {1 if stag == 1 else 0}
  s_add_u32 s29, s29, s36
  s_mul_i32 s29, s29, {T if stag else 0}
  s_lshr_b32 s29, s29, 4
  v_lshlrev_b32 v2, 4, v1              ; X voffset
  v_lshrrev_b32 v10, 3, v1
  v_mul_u32_u24 v10, {WSTR}, v10
  v_and_b32 v11, 7, v1
  v_bfe_u32 v12, v1, 4, 1
  v_lshlrev_b32 v12, 1, v12
  v_xor_b32 v11, v11, v12
  s_lshl_b32 s36, s32, 7
  v_add_u32 v10, s36, v10
  v_lshl_add_u32 v3, v11, 4, v10
  v_xor_b32 v11, 4, v11
  v_lshl_add_u32 v4, v11, 4, v10
  v_add_u32 v4, {8*WSTR - 1024}, v4
  v_add_u32 v5, {16*WSTR - 2048}, v3
  v_add_u32 v6, {16*WSTR - 2048}, v4
  s_waitcnt lgkmcnt(0)
  s_mov_b32 s8, s4
  s_mov_b32 s9, s5
  s_mov_b32 s10, {WBYTES}
  s_mov_b32 s11, 0x00020000
  s_add_u32 s12, s6, s40
  s_addc_u32 s13, s7, 0
  s_mov_b32 s14, {T * 10240}
  s_mov_b32 s15, 0x00020000
""")
    for ld in range(NL):
        if ld < NL - 1:
            A(f"  s_cmp_lg_u32 s3, {4 + ld}\n  s_cbranch_scc1 {L}_ld{ld+1}")
        if ld == 0:
            groups = [("X", 0, 4, 0), ("X", 4096, 2, 4096)]
        elif ld == 1:
            groups = [("X", 6144, 4, 6144), ("W", WOFF, 2, 0)]
        else:
            groups = [("W", WOFF + 2048, 4, 16 * WSTR), ("W", WOFF + 6144, 2, 48 * WSTR)]
        steps = [10240 if g[0] == 'X' else 64 * WSTR for g in groups]
        A(f"  s_mul_i32 s24, s29, {steps[0]}\n  s_mul_i32 s25, s29, {steps[1]}\n  s_add_u32 s24, s24, {groups[0][3]}\n  s_add_u32 s25, s25, {groups[1][3]}\n  s_mov_b32 s26, 0")
        def issue_tile():
            for gi, (kind, lrel, n, _) in enumerate(groups):
                A(f"  s_add_u32 m0, s26, {lrel}")
                if gi == 0:
                    A(f"  s_add_u32 s27, s26, {SLOT}")
                else:
                    A(f"  s_cmp_ge_u32 s27, {R * SLOT}")
                for k in range(n):
                    if kind == "X":
                        A(f"  buffer_load_dwordx4 v2, s[12:15], s{24+gi} offen offset:{1024*k} lds")
                    else:
                        A(f"  buffer_load_dwordx4 v{3+k}, s[8:11], s{24+gi} offen offset:{1024*k} lds")
            A(f"  s_cselect_b32 s26, 0, s27")
            for gi, (kind, lrel, n, _) in enumerate(groups):
                A(f"  s_add_u32 s{24+gi}, s{24+gi}, {steps[gi]}")
            A(f"  s_add_u32 s29, s29, 1\n  s_cmp_eq_u32 s29, {T}")
            A(f"  s_cselect_b32 s29, 0, s29\n  s_cselect_b32 s24, {groups[0][3]}, s24\n  s_cselect_b32 s25, {groups[1][3]}, s25")
        A(f"  s_mov_b32 s28, {R - 1}\n{L}_ld{ld}_pro:")
        issue_tile()
        A(f"  s_sub_u32 s28, s28, 1\n  s_cmp_lg_u32 s28, 0\n  s_cbranch_scc1 {L}_ld{ld}_pro")
        A(f"  s_mov_b32 s28, {T - (R - 1)}\n{L}_ld{ld}_loop:")
        A(f"  s_waitcnt vmcnt({PER * (R - 2)})\n  s_barrier")
        issue_tile()
        A(f"  s_sub_u32 s28, s28, 1\n  s_cmp_lg_u32 s28, 0\n  s_cbranch_scc1 {L}_ld{ld}_loop")
        for k in range(R - 1):
            A(f"  s_waitcnt vmcnt({PER * (R - 2 - k)})\n  s_barrier")
        A("  s_endpgm")
        if ld < NL - 1:
            A(f"{L}_ld{ld+1}:")
    A(f"{L}_toucher:")
    if lead:
        nsh = 7 if which == 1 else 8
        xs = -(-320 // nsh)
        NG = -(-T // 4)
        g0 = (R - 1) // 4
        A(f"""
  s_mul_i32 s36, s34, {xs}
  v_add_u32 v5, s36, v1
  v_cmp_gt_u32 vcc, {xs}, v1
  s_mov_b64 s[20:21], vcc
  v_cmp_gt_u32 vcc, 0x140, v5
  s_and_b64 vcc, vcc, s[20:21]
  v_lshlrev_b32 v5, 7, v5
  v_mov_b32 v7, 0x40000000
  v_cndmask_b32 v5, v7, v5, vcc
  s_lshl_b32 s36, s39, 6
  v_add_u32 v6, s36, v1
  v_mul_u32_u24 v6, {WSTR}, v6
  s_lshl_b32 s36, s32, 7
  v_add_u32 v6, s36, v6
  s_waitcnt lgkmcnt(0)
  s_mov_b32 s8, s4
  s_mov_b32 s9, s5
  s_mov_b32 s10, {WBYTES if pfw else 0}
  s_mov_b32 s11, 0x00020000
  s_add_u32 s12, s6, s40
  s_addc_u32 s13, s7, 0
  s_mov_b32 s14, {T * 10240 if pfx else 0}
  s_mov_b32 s15, 0x00020000
  s_mov_b32 s24, {g0 * 40960}
  s_mov_b32 s25, {g0 * 256 * WSTR}
""")
        def touch():
            A(f"""
  buffer_load_dword v8, v5, s[12:15], s24 offen
  buffer_load_dword v9, v6, s[8:11], s25 offen
  s_add_u32 s24, s24, 40960
  s_add_u32 s25, s25, {256 * WSTR}
""")
        pre = min(lead, NG - g0)
        for _ in range(pre): touch()
        rem = NG - g0 - pre
        nb = 0
        if rem > 0:
            A(f"  s_mov_b32 s28, {rem}\n{L}_tloop:")
            A("  s_barrier\n  s_barrier\n  s_barrier\n  s_barrier")
            touch()
            A(f"  s_sub_u32 s28, s28, 1\n  s_cmp_lg_u32 s28, 0\n  s_cbranch_scc1 {L}_tloop")
            nb = 4 * rem
        assert nb <= T
        if T - nb:
            A(f"  s_mov_b32 s28, {T - nb}\n{L}_tloop2:\n  s_barrier\n  s_sub_u32 s28, s28, 1\n  s_cmp_lg_u32 s28, 0\n  s_cbranch_scc1 {L}_tloop2")
    A("  s_endpgm")
    def touches(with_w):
        A(f"""
  s_lshl_b32 s36, s34, 8
  v_add_u32 v5, s36, v0
  v_lshlrev_b32 v5, 7, v5
  s_add_u32 s12, s6, s40
  s_addc_u32 s13, s7, 0
  s_mov_b32 s14, {T * 10240}
  s_mov_b32 s15, 0x00020000
""")
        if with_w:
            A(f"""
  s_lshl_b32 s36, s39, 8
  v_add_u32 v6, s36, v0
  v_mul_u32_u24 v6, {WSTR}, v6
  s_lshl_b32 s36, s32, 7
  v_add_u32 v6, s36, v6
  s_mov_b32 s8, s4
  s_mov_b32 s9, s5
  s_mov_b32 s10, {WBYTES}
  s_mov_b32 s11, 0x00020000
""")
        for i in range(2):
            if pfx and not lead: A(f"  s_mov_b32 s36, {i * 2048 * 128}\n  buffer_load_dword v30, v5, s[12:15], s36 offen")
            if pfw and with_w and not lead: A(f"  s_mov_b32 s36, {i * 1024 * WSTR}\n  buffer_load_dword v31, v6, s[8:11], s36 offen")
    if which == 1:
        A(f"{L}_idle:")
        A(f"  s_cmp_ge_u32 s3, 4\n  s_cbranch_scc1 {L}_idle2\n  s_waitcnt lgkmcnt(0)")
        touches(False)
        A(f"{L}_idle2:")
        if pf2:
            A(f"""
  s_cmp_lg_u32 s34, 7
  s_cbranch_scc1 {L}_done
  s_load_dwordx2 s[20:21], s[0:1], {KA['w2']}
  s_and_b32 s16, s2, 7
  s_lshr_b32 s16, s16, 1
  s_lshl_b32 s16, s16, 10
  s_mul_i32 s17, s39, {512 if lead else 448}
  v_add_u32 v1, s17, v0
  v_lshrrev_b32 v2, 3, v1
  v_lshlrev_b32 v2, 12, v2
  v_and_b32 v3, 7, v1
  v_lshl_add_u32 v2, v3, 7, v2
  v_add_u32 v2, s16, v2
  s_waitcnt lgkmcnt(0)
  s_mov_b32 s8, s20
  s_mov_b32 s9, s21
  s_mov_b32 s10, {abs(pf2) * 4096}
  s_mov_b32 s11, 0x00020000
""")
            if pf2 < 0:
                A(f"  s_and_b32 s17, s2, 1\n  s_mul_i32 s17, s17, {864 * 4096}\n  s_add_u32 s8, s8, s17\n  s_addc_u32 s9, s9, 0")
                pf2 = -pf2
            rr = 256 if lead else 224
            for k in range(-(-pf2 // rr)):
                A(f"  s_mov_b32 s36, {k * rr * 4096}\n  buffer_load_dword v{4 + (k & 3)}, v2, s[8:11], s36 offen")
        A("  s_waitcnt vmcnt(0)\n  s_endpgm")
    XF, WF, ACC, RED = 32, 72, 88, 128
    A(f"{L}_consumer:")
    A(f"""
  s_load_dwordx2 s[28:29], s[0:1], {KA['b1'] if which == 1 else KA['b2']}
  s_load_dwordx2 s[30:31], s[0:1], {KA['out']}
  s_and_b32 s38, s3, 1                 ; ks
  v_lshrrev_b32 v12, 4, v1             ; g
  s_lshl_b32 s36, s38, 2
  v_add_u32 v13, s36, v12              ; 4ks+g
  v_mul_u32_u24 v13, 1280, v13
  v_and_b32 v14, 15, v1
  v_lshl_add_u32 v2, v14, 4, v13
  v_bfe_u32 v13, v1, 2, 2              ; r
  v_lshl_add_u32 v14, v12, 3, v13      ; 8g+r
  v_lshlrev_b32 v14, 7, v14
  v_and_b32 v15, 3, v1
  v_lshl_add_u32 v14, v15, 3, v14
  s_lshl_b32 s36, s38, 12
  s_add_u32 s36, s36, {WOFF}
  v_add_u32 v14, s36, v14
  v_lshrrev_b32 v13, 1, v13
  v_and_b32 v12, 1, v12
  v_lshl_or_b32 v13, v12, 1, v13       ; p
  v_xor_b32 v15, s3, v13
  v_lshl_add_u32 v3, v15, 5, v14
  v_xor_b32 v15, 1, v15                ; partner's n
  v_lshl_add_u32 v4, v15, 5, v14
  s_waitcnt lgkmcnt(0)
""")
    touches(True)
    if which == 1:
        A(f"""
  s_mul_i32 s36, s33, {XT2}
  s_add_u32 s36, s36, {WS_G8}
  s_add_u32 s16, s6, s36
  s_addc_u32 s17, s7, 0
  s_mov_b32 s18, {216 * 1280}
  s_mov_b32 s19, 0x00020000
""")
        A.srd(20, 28, 1728 * 2)
        A(f"""
  v_lshrrev_b32 v12, 4, v1             ; g
  s_lshl_b32 s36, s32, 6
  s_lshl_b32 s37, s3, 4
  s_add_u32 s36, s36, s37              ; f0 = wtile*64 + 16w
  v_lshlrev_b32 v13, 2, v12
  v_add_u32 v13, s36, v13
  v_lshlrev_b32 v13, 1, v13            ; (f0+4g)*2
  buffer_load_dwordx2 v[16:17], v13, s[20:23], 0 offen
  s_lshr_b32 s36, s36, 3
  v_lshrrev_b32 v13, 1, v12
  v_add_u32 v13, s36, v13
  v_mul_u32_u24 v13, 1280, v13
  v_and_b32 v14, 15, v1
  v_lshl_add_u32 v13, v14, 4, v13
  v_and_b32 v12, 1, v12
  v_lshl_add_u32 v7, v12, 8, v13
  v_lshl_add_u32 v8, v12, 3, v13
""")
    else:
        A.srd(16, 30, 2048 * 1280)
        A.srd(20, 6, 2048 * 1280, WS_H)
        A.srd(44, 28, 2048 * 2)
        A(f"""
  v_and_b32 v12, 15, v1
  s_lshl_b32 s36, s32, 6
  s_lshl_b32 s37, s3, 4
  s_add_u32 s36, s36, s37
  v_add_u32 v12, s36, v12              ; s
  v_lshlrev_b32 v13, 1, v12
  buffer_load_ushort v26, v13, s[44:47], 0 offen
  v_mul_u32_u24 v12, 1280, v12
  s_mul_i32 s36, s33, 160
  v_add_u32 v12, s36, v12
  v_lshrrev_b32 v13, 4, v1             ; g
  v_lshl_add_u32 v8, v13, 3, v12
  v_and_b32 v14, 1, v13
  v_lshl_add_u32 v12, v14, 5, v12      ; +(g&1)*32
  v_lshrrev_b32 v13, 1, v13
  v_lshl_add_u32 v7, v13, 4, v12       ; +(g>>1)*16
  buffer_load_dwordx4 v[16:19], v7, s[20:23], 0 offen
  buffer_load_dwordx4 v[20:23], v7, s[20:23], 0 offen offset:64
  buffer_load_dwordx2 v[24:25], v8, s[20:23], 0 offen offset:128
""")
    for k in range(0, 40, 2):
        A(f"  v_pk_mov_b32 {vr(ACC+k,2)}, 0, 0")
    EX = ((T + 1) % R) * SLOT
    if EX + 20480 > LDS or ((T - 1) % R) in ((T + 1) % R, (T + 2) % R): EX = None
    if EX is None:
        for c in range(R - 1):
            if (T - 1) % R not in (c, c + 1): EX = c * SLOT; break
    A(f"""
  s_mov_b32 s26, {SLOT}
  s_mul_i32 s36, s3, 5120
  s_add_u32 s36, s36, {EX}
  v_lshlrev_b32 v12, 4, v1
  v_add_u32 v28, s36, v12
  s_xor_b32 s36, s3, 1
  s_mul_i32 s36, s36, 5120
  s_add_u32 s36, s36, {EX}
  v_add_u32 v29, s36, v12
""")
    stamp()
    def reads(st, first=False):
        a = (2, 3, 4) if first else (9, 10, 11)
        r = []
        for j in range(2):
            for h in range(2):
                r.append(f"  ds_read_b64_tr_b16 {vr(WF + st*8 + j*4 + h*2, 2)}, v{a[1+j]} offset:{h*512}")
        for m in range(5):
            r.append(f"  ds_read_b128 {vr(XF + st*20 + 4*m, 4)}, v{a[0]} offset:{256*m}")
        return r
    def mfmas(st):
        r = []
        for m in range(5):
            for j in range(2):
                acc = ACC + (m * 2 + j) * 4
                xa = vr(XF + st * 20 + 4 * m, 4)
                wf = vr(WF + st * 8 + j * 4, 4)
                a, b = (wf, xa) if which == 1 else (xa, wf)
                r.append(f"  v_mfma_f32_16x16x32_bf16 {vr(acc,4)}, {a}, {b}, {vr(acc,4)}")
        return r
    def addr_update():
        return [f"  v_add_u32 v9, s26, v2", f"  v_add_u32 v10, s26, v3", f"  v_add_u32 v11, s26, v4",
                f"  s_add_u32 s26, s26, {SLOT}", f"  s_cmp_ge_u32 s26, {R * SLOT}", f"  s_cselect_b32 s26, 0, s26"]
    def body(st_read, st_mfma):
        A("  s_barrier")
        rd = reads(st_read); mf = mfmas(st_mfma)
        for k in range(10):
            if k < 9: A(rd[k])
            A(mf[k])
        for x in addr_update(): A(x)
        A("  s_waitcnt lgkmcnt(0)")
    A("  s_barrier")
    stamp()
    if stamps: A("  s_waitcnt lgkmcnt(0)")
    for x in reads(0, True): A(x)
    for x in addr_update(): A(x)
    A("  s_waitcnt lgkmcnt(0)")
    npair = (T - 1) // 2
    A(f"  s_mov_b32 s27, {npair}\n{L}_cloop:")
    body(1, 0)
    body(0, 1)
    A(f"  s_sub_u32 s27, s27, 1\n  s_cmp_lg_u32 s27, 0\n  s_cbranch_scc1 {L}_cloop")
    last = 0
    if (T - 1) % 2:
        body(1, 0); last = 1
    mf = mfmas(last)
    for m in range(5): A(mf[2 * m + 1])
    for m in range(5): A(mf[2 * m])
    stamp()
    A("  s_nop 2")
    for m in range(5):
        A(f"  ds_write_b128 v28, {vr(ACC + (m*2+1)*4, 4)} offset:{m*1024}")
    A("  s_waitcnt vmcnt(0)")
    if which == 1:
        A(f"""
  v_lshlrev_b32 v18, 16, v16
  v_and_b32 v19, 0xffff0000, v16
  v_lshlrev_b32 v20, 16, v17
  v_and_b32 v21, 0xffff0000, v17
  v_mov_b32 v22, {fbits(-2*0.7978845608028654*1.4426950408889634)}
  v_mov_b32 v24, {fbits(-2*0.7978845608028654*1.4426950408889634*0.044715)}
  v_mov_b32 v26, 1.0
""")
    else:
        A("  v_lshlrev_b32 v26, 16, v26")
        t = XF
        for k in range(10):
            A(f"  v_lshlrev_b32 v{t+2*k}, 16, v{16+k}")
            A(f"  v_and_b32 v{t+2*k+1}, 0xffff0000, v{16+k}")
    A("  s_waitcnt lgkmcnt(0)")
    stamp()
    A("  s_barrier")
    stamp()
    for m in range(5):
        A(f"  ds_read_b128 {vr(RED + m*4, 4)}, v29 offset:{m*1024}")
    def rnd(a):
        A(f"  v_cvt_pk_bf16_f32 v{a+1}, v{a}, v{a+1}\n  v_cvt_pk_bf16_f32 v{a+3}, v{a+2}, v{a+3}")
        A(f"  v_lshlrev_b32 v{a}, 16, v{a+1}\n  v_and_b32 v{a+1}, 0xffff0000, v{a+1}")
        A(f"  v_lshlrev_b32 v{a+2}, 16, v{a+3}\n  v_and_b32 v{a+3}, 0xffff0000, v{a+3}")
    if which == 1:
        for m in range(5):
            acc = ACC + m * 8
            t = acc + 4
            A(f"  s_waitcnt lgkmcnt({4-m})")
            for r in (0, 2): A(f"  v_pk_add_f32 {vr(acc+r,2)}, {vr(acc+r,2)}, {vr(RED+m*4+r,2)}")
            for r in (0, 2): A(f"  v_pk_add_f32 {vr(acc+r,2)}, {vr(acc+r,2)}, {vr(18+r,2)}")
            for r in (0, 2): A(f"  v_pk_mul_f32 {vr(t+r,2)}, {vr(acc+r,2)}, {vr(acc+r,2)}")
            for r in (0, 2): A(f"  v_pk_fma_f32 {vr(t+r,2)}, {vr(t+r,2)}, v[24:25], v[22:23] op_sel_hi:[1,0,0]")
            for r in (0, 2): A(f"  v_pk_mul_f32 {vr(t+r,2)}, {vr(t+r,2)}, {vr(acc+r,2)}")
            for r in range(4): A(f"  v_exp_f32 v{t+r}, v{t+r}")
            A("  s_nop 0")
            for r in (0, 2): A(f"  v_pk_add_f32 {vr(t+r,2)}, {vr(t+r,2)}, v[26:27] op_sel_hi:[1,0]")
            for r in range(4): A(f"  v_rcp_f32 v{t+r}, v{t+r}")
            A("  s_nop 0")
            for r in (0, 2): A(f"  v_pk_mul_f32 {vr(acc+r,2)}, {vr(acc+r,2)}, {vr(t+r,2)}")
            o = XF + (m >> 1) * 4 + (m & 1) * 2
            A(f"  v_cvt_pk_bf16_f32 v{o}, v{acc}, v{acc+1}")
            A(f"  v_cvt_pk_bf16_f32 v{o+1}, v{acc+2}, v{acc+3}")
            if m & 1:
                b = XF + (m >> 1) * 4
                A(f"  s_nop 1\n  v_permlane16_swap_b32 v{b}, v{b+2}\n  v_permlane16_swap_b32 v{b+1}, v{b+3}")
                A(f"  buffer_store_dwordx4 {vr(b,4)}, v7, s[16:19], 0 offen offset:{512*(m>>1)}")
            elif m == 4:
                A(f"  buffer_store_dwordx2 {vr(o,2)}, v8, s[16:19], 0 offen offset:1024")
    else:
        for m in range(5):
            acc = ACC + m * 8
            A(f"  s_waitcnt lgkmcnt({4-m})")
            for r in (0, 2): A(f"  v_pk_add_f32 {vr(acc+r,2)}, {vr(acc+r,2)}, {vr(RED+m*4+r,2)}")
            rnd(acc)
            for r in (0, 2): A(f"  v_pk_add_f32 {vr(acc+r,2)}, {vr(acc+r,2)}, v[26:27] op_sel_hi:[1,0]")
            rnd(acc)
            if m & 1:
                a0 = ACC + (m - 1) * 8
                A("  s_nop 1")
                for r in range(4):
                    A(f"  v_permlane16_swap_b32 v{a0+r}, v{acc+r}")
                t = XF + (m >> 1) * 8
                A("  s_nop 0")
                for k, src in enumerate((a0, a0 + 2, acc, acc + 2)):
                    A(f"  v_pk_add_f32 {vr(t+2*k,2)}, {vr(t+2*k,2)}, {vr(src,2)}")
                o = WF + (m >> 1) * 4
                for k in range(4):
                    A(f"  v_cvt_pk_bf16_f32 v{o+k}, v{t+2*k}, v{t+2*k+1}")
                A(f"  buffer_store_dwordx4 {vr(o,4)}, v7, s[16:19], 0 offen offset:{64*(m>>1)}")
            elif m == 4:
                t = XF + 16
                for k in range(2):
                    A(f"  v_pk_add_f32 {vr(t+2*k,2)}, {vr(t+2*k,2)}, {vr(acc+2*k,2)}")
                o = WF + 8
                for k in range(2):
                    A(f"  v_cvt_pk_bf16_f32 v{o+k}, v{t+2*k}, v{t+2*k+1}")
                A(f"  buffer_store_dwordx2 {vr(o,2)}, v8, s[16:19], 0 offen offset:128")
    if stamps:
        stamp()
        A("  s_waitcnt vmcnt(0)")
        stamp()
        A("  s_memrealtime s[72:73]")
        A("  s_waitcnt lgkmcnt(0)")
        A.srd(8, 6, 0x100000, 0x2000000 + (which - 1) * 0x10000)
        A(f"  s_lshl_b32 s36, s2, 2\n  s_add_u32 s36, s36, s3\n  s_lshl_b32 s36, s36, 6\n  v_mov_b32 v2, s36")
        for k in range(nst[0]):
            A(f"  s_sub_u32 s36, s{50+2*k}, s48\n  v_mov_b32 v3, s36\n  buffer_store_dword v3, v2, s[8:11], 0 offen offset:{4*k}")
        A(f"  s_sub_u32 s36, s72, s70\n  v_mov_b32 v3, s36\n  buffer_store_dword v3, v2, s[8:11], 0 offen offset:52")
        A(f"  v_mov_b32 v3, s70\n  buffer_store_dword v3, v2, s[8:11], 0 offen offset:60")
    A(f"{L}_done:\n  s_endpgm")
    A.kernel_desc(name, 152, 80)
```

```python
from asmlib import *
import kimg
from pf import gen_prefetch

LOG2E = 1.4426950408889634
def f32r(x):
    return struct.unpack("<f", struct.pack("<f", x))[0]

NLN = 128
def gen_k1(A, name="k1_kernel", pf="", npf=0, code=False):
    RS = 1312
    TGS = 544
    TG, TE, KFO = 0, 48 * TGS, 64 * TGS
    LDS = KFO + 768 * 4
    NWG = npf + NLN + 640
    A.add_launch(name, NWG, 256, LDS)
    A.kernel_begin(name)
    L = name
    A(f"""
  s_cmp_ge_u32 s2, {NWG}
  s_cbranch_scc1 {L}_done
  s_cmp_lt_u32 s2, {npf}
  s_cbranch_scc1 {L}_pf
  s_sub_u32 s2, s2, {npf}
  s_cmp_ge_u32 s2, {NLN}
  s_cbranch_scc1 {L}_kgen
  ; ---------------- LN1 ----------------
  s_load_dwordx2 s[4:5], s[0:1], {KA['x']}
  s_load_dwordx2 s[6:7], s[0:1], {KA['ws']}
  s_and_b32 s16, s2, 7
  s_lshl_b32 s16, s16, 4
  s_lshr_b32 s17, s2, 3
  s_add_u32 s16, s16, s17
  s_lshl_b32 s16, s16, 4               ; t0
  v_lshrrev_b32 v1, 4, v0              ; row
  v_and_b32 v2, 15, v0                 ; q
  v_add_u32 v3, s16, v1
  v_mul_u32_u24 v3, 1280, v3
  v_lshl_add_u32 v3, v2, 4, v3
  s_waitcnt lgkmcnt(0)
""")
    A.srd(8, 4, 2048 * 1280)
    for i in range(5):
        A(f"  buffer_load_dwordx4 {vr(8+4*i,4)}, v3, s[8:11], 0 offen offset:{256*i}")
    A.srd(12, 6, 640 * UT_STRIDE, WS_UT)
    A.srd(20, 6, 2048 * 8, WS_ST1)
    A(f"""
  v_mul_u32_u24 v4, {RS}, v1
  v_lshl_add_u32 v4, v2, 4, v4
  v_bfe_u32 v5, v0, 4, 1               ; th
  v_bfe_u32 v6, v0, 2, 2               ; r
  v_lshl_add_u32 v5, v5, 3, v6
  v_mul_u32_u24 v5, {RS}, v5
  v_bfe_u32 v6, v0, 5, 1               ; cgl
  v_lshl_add_u32 v5, v6, 5, v5
  v_and_b32 v7, 3, v0
  v_lshl_add_u32 v5, v7, 3, v5
  v_lshrrev_b32 v7, 6, v0              ; wave
  v_mul_u32_u24 v72, 320, v7
  v_add_u32 v5, v5, v72
  v_mul_u32_u24 v72, 160, v7
  v_lshl_add_u32 v72, v6, 4, v72
  v_add_u32 v72, v72, v2
  v_mul_u32_u24 v72, {UT_STRIDE}, v72
  v_bfe_u32 v6, v0, 4, 1
  v_lshl_add_u32 v72, v6, 4, v72
  s_lshl_b32 s17, s16, 1
  s_add_u32 s17, s17, 128
  v_add_u32 v6, s17, v72
  v_add_u32 v7, s16, v1
  v_lshlrev_b32 v7, 3, v7
""")
    X = 32
    for i in range(5):
        A(f"  s_waitcnt vmcnt({4-i})")
        for k in range(4):
            A(f"  v_lshlrev_b32 v{X+8*i+2*k}, 16, v{8+4*i+k}")
            A(f"  v_and_b32 v{X+8*i+2*k+1}, 0xffff0000, v{8+4*i+k}")
        if i == 0:
            A(f"  v_pk_add_f32 v[72:73], {vr(X,2)}, {vr(X+2,2)}")
            A(f"  v_pk_add_f32 v[74:75], {vr(X+4,2)}, {vr(X+6,2)}")
        else:
            for k in range(4):
                a = 72 + 2 * (k & 1)
                A(f"  v_pk_add_f32 {vr(a,2)}, {vr(a,2)}, {vr(X+8*i+2*k,2)}")
    def rowsum(v):
        for sh in (8, 4, 2, 1):
            A(f"  s_nop 1\n  v_add_f32 v{v}, v{v}, v{v} row_ror:{sh}")
    A(f"""
  v_pk_add_f32 v[72:73], v[72:73], v[74:75]
  s_nop 0
  v_add_f32 v72, v72, v73
""")
    rowsum(72)
    A(f"  v_mul_f32 v72, {fbits(-1.0/640)}, v72     ; -mean")
    for k in range(20):
        A(f"  v_pk_add_f32 {vr(X+2*k,2)}, {vr(X+2*k,2)}, v[72:73] op_sel_hi:[1,0]")
    A(f"  v_pk_mul_f32 v[74:75], {vr(X,2)}, {vr(X,2)}")
    A(f"  v_pk_mul_f32 v[76:77], {vr(X+2,2)}, {vr(X+2,2)}")
    for k in range(2, 20):
        a = 74 + 2 * (k & 1)
        A(f"  v_pk_fma_f32 {vr(a,2)}, {vr(X+2*k,2)}, {vr(X+2*k,2)}, {vr(a,2)}")
    A(f"""
  v_pk_add_f32 v[74:75], v[74:75], v[76:77]
  s_nop 0
  v_add_f32 v74, v74, v75
""")
    rowsum(74)
    A(f"""
  v_mul_f32 v74, {fbits(1.0/640)}, v74      ; var
  v_cvt_pk_bf16_f32 v75, v74, -v72
  v_lshlrev_b32 v74, 16, v75
  v_and_b32 v78, 0xffff0000, v75            ; m_bf
  v_add_f32 v74, {fbits(1e-5)}, v74
  v_cvt_pk_bf16_f32 v74, v74, v74
  v_lshlrev_b32 v74, 16, v74
  v_sqrt_f32 v74, v74
  s_nop 0
  v_cvt_pk_bf16_f32 v74, v74, v74
  v_lshlrev_b32 v74, 16, v74
  v_rcp_f32 v79, v74                        ; rs
  v_sub_f32 v76, -v72, v78
  v_mul_f32 v76, v76, v79                   ; c
  v_mov_b32 v74, v79
""")
    for k in range(20):
        A(f"  v_pk_fma_f32 {vr(X+2*k,2)}, {vr(X+2*k,2)}, v[74:75], v[76:77] op_sel_hi:[1,0,0]")
    for k in range(20):
        A(f"  v_cvt_pk_f16_f32 v{8+k}, v{X+2*k}, v{X+2*k+1}")
        if k % 4 == 3:
            A(f"  ds_write_b128 v4, {vr(8+k-3,4)} offset:{256*(k//4)}")
    A(f"""
  v_cmp_eq_u32 vcc, 0, v2
  s_and_saveexec_b64 s[24:25], vcc
  buffer_store_dwordx2 v[78:79], v7, s[20:23], 0 offen
  s_mov_b64 exec, s[24:25]
  s_waitcnt lgkmcnt(0)
  s_barrier
""")
    for k in range(5):
        for h in range(2):
            A(f"  ds_read_b64_tr_b16 {vr(32+4*k+2*h,2)}, v5 offset:{64*k + 4*h*RS}")
    for k in range(5):
        A(f"  s_waitcnt lgkmcnt({8-2*k})")
        A(f"  s_mov_b32 s17, {32*k*UT_STRIDE}")
        A(f"  buffer_store_dwordx4 {vr(32+4*k,4)}, v6, s[12:15], s17 offen")
    A("  s_endpgm")
    Lhi = f32r(LOG2E); Llo = LOG2E - Lhi
    A(f"""
{L}_kgen:
  s_sub_u32 s16, s2, {NLN}                ; channel d
  s_load_dwordx4 s[4:7], s[0:1], {KA['logA']}
  s_load_dwordx4 s[8:11], s[0:1], {KA['Cre']}
  s_load_dwordx2 s[12:13], s[0:1], {KA['logdt']}
  s_load_dwordx2 s[14:15], s[0:1], {KA['ws']}
  s_load_dwordx2 s[36:37], s[0:1], {KA['w1']}
  s_load_dwordx2 s[38:39], s[0:1], {KA['w2']}
  s_getpc_b64 s[18:19]
  s_add_u32 s18, s18, kimg_idx@rel32@lo+4
  s_addc_u32 s19, s19, kimg_idx@rel32@hi+12
  v_lshrrev_b32 v1, 6, v0
  v_lshlrev_b32 v2, 4, v0
  v_readfirstlane_b32 s3, v1              ; wave
  global_load_dwordx4 v[60:63], v2, s[18:19]
  v_and_b32 v1, 127, v0                   ; mode
  s_lshl_b32 s17, s16, 8
  v_lshl_add_u32 v2, v1, 1, s17
  v_xor_b32 v3, 128, v2
  s_lshl_b32 s20, s16, 1
  s_and_b32 s21, s20, 0xfffffffc
  s_waitcnt lgkmcnt(0)
  s_load_dword s22, s[12:13], s21
  global_load_ushort v4, v2, s[4:5]       ; logA
  global_load_ushort v5, v2, s[6:7]       ; Aim
  global_load_ushort v6, v2, s[8:9]       ; Cre
  global_load_ushort v7, v2, s[10:11]     ; Cim
  global_load_ushort v8, v3, s[8:9]
  global_load_ushort v9, v3, s[10:11]
  v_lshlrev_b32 v1, 2, v1
  s_waitcnt lgkmcnt(0)
  s_and_b32 s20, s20, 2
  s_lshl_b32 s20, s20, 3
  s_lshr_b32 s22, s22, s20
  s_lshl_b32 s22, s22, 16
  s_mov_b32 s23, {fbits(Lhi)}
  s_mov_b32 s24, {fbits(Llo)}
  v_mov_b32 v10, s22
""")
    def exp_bf16(dst, src, t1, t2):
        A(f"""
  v_mul_f32 v{t1}, s23, v{src}
  v_fma_f32 v{t2}, v{src}, s23, -v{t1}
  v_fma_f32 v{t2}, v{src}, s24, v{t2}
  v_exp_f32 v{t1}, v{t1}
  v_mul_f32 v{t2}, {fbits(0.6931471805599453)}, v{t2}
  v_fma_f32 v{dst}, v{t1}, v{t2}, v{t1}
  v_cvt_pk_bf16_f32 v{dst}, v{dst}, v{dst}
  v_lshlrev_b32 v{dst}, 16, v{dst}
""")
    exp_bf16(10, 10, 11, 12)
    A(f"""
  s_waitcnt vmcnt(5)
  v_lshlrev_b32 v4, 16, v4
""")
    exp_bf16(4, 4, 11, 12)
    A(f"""
  v_mul_f32 v4, v4, v10
  v_mul_f32 v4, {fbits(-LOG2E)}, v4
  s_waitcnt vmcnt(0)
  v_lshlrev_b32 v5, 16, v5
  v_mul_f32 v5, v5, v10
  v_mul_f32 v5, {fbits(0.15915494309189535)}, v5
  v_lshlrev_b32 v6, 16, v6
  v_lshlrev_b32 v7, 16, v7
  v_lshlrev_b32 v8, 16, v8
  v_lshlrev_b32 v9, 16, v9
  v_max3_f32 v11, |v6|, |v7|, |v8|
  v_max_f32 v11, v11, |v9|
  v_mul_f32 v11, v11, v10
""")
    if pf:
        A(f"  s_and_b32 s40, s2, 7\n  s_lshr_b32 s41, s16, 3\n  s_lshl_b32 s41, s41, 8\n  v_add_u32 v64, s41, v0")
        if pf == "a": gen_prefetch(A, 1, 40, 64, 20480, 36, 44, 65, 68)
        if pf == "d": gen_prefetch(A, 1, 40, 64, 20480, 36, 44, 65, 68, half=True)
        if pf == "b":
            gen_prefetch(A, 1, 40, 64, 20480, 36, 44, 65, 68, half=True)
            gen_prefetch(A, 2, 40, 64, 20480, 38, 52, 65, 72, half=True)
        if pf == "c":
            gen_prefetch(A, 1, 40, 64, 20480, 36, 44, 65, 68)
            gen_prefetch(A, 2, 40, 64, 20480, 38, 52, 65, 72, half=True)
    for sh in (8, 4, 2, 1):
        A(f"  s_nop 1\n  v_max_f32 v11, v11, v11 row_ror:{sh}")
    A(f"""
  s_nop 0
  v_readlane_b32 s25, v11, 0
  v_readlane_b32 s26, v11, 16
  v_readlane_b32 s27, v11, 32
  v_readlane_b32 s28, v11, 48
  v_mul_f32 v6, v6, v10
  v_mul_f32 v7, v7, v10
  s_max_u32 s25, s25, s26
  s_max_u32 s27, s27, s28
  s_max_u32 s25, s25, s27
  s_lshr_b32 s25, s25, 23
  s_max_u32 s25, s25, 1
  s_min_u32 s25, s25, 253
  s_sub_u32 s26, 254, s25
  s_lshl_b32 s26, s26, 23                    ; scale
  s_add_u32 s27, s25, 1
  s_lshl_b32 s27, s27, 23
  v_mul_f32 v6, s26, v6
  v_mul_f32 v7, s26, v7                      ; c' = v[6:7]
""")
    def pw(dst, p, t):
        if p == 1:
            A(f"  v_exp_f32 v{t}, v4\n  v_fract_f32 v{t+1}, v5")
        else:
            A(f"  v_mul_f32 v{t}, {fbits(float(p))}, v4\n  v_mul_f32 v{t+1}, {fbits(float(p))}, v5\n  v_exp_f32 v{t}, v{t}\n  v_fract_f32 v{t+1}, v{t+1}")
        A(f"""
  v_cos_f32 v{dst}, v{t+1}
  v_sin_f32 v{dst+1}, v{t+1}
  s_nop 0
  v_mul_f32 v{dst}, v{dst}, v{t}
  v_mul_f32 v{dst+1}, v{dst+1}, v{t}
""")
    tmp = [0]
    def cmul(d, a, b):
        t = 52 + 2 * (tmp[0] & 3); tmp[0] += 1
        A(f"  v_pk_mul_f32 {vr(t,2)}, {vr(a,2)}, {vr(b,2)} op_sel:[1,1] op_sel_hi:[1,0]")
        A(f"  v_pk_fma_f32 {vr(d,2)}, {vr(a,2)}, {vr(b,2)}, {vr(t,2)} op_sel_hi:[0,1,1] neg_lo:[0,0,1]")
    ow = [0]
    def putG(row, a, neg=False):
        o = 48 + (ow[0] & 3); ow[0] += 1
        if neg: A(f"  v_cvt_pk_f16_f32 v{o}, -v{a}, v{a+1}")
        else:   A(f"  v_cvt_pk_f16_f32 v{o}, v{a}, -v{a+1}")
        A(f"  ds_write_b32 v1, v{o} offset:{TG + row*TGS}")
    def putE(col, a):
        o = 48 + (ow[0] & 3); ow[0] += 1
        A(f"  v_cvt_pk_f16_f32 v{o}, v{a}, v{a+1}")
        A(f"  ds_write_b32 v1, v{o} offset:{TE + col*TGS}")
    A(f"  s_cmp_ge_u32 s3, 2\n  s_cbranch_scc1 {L}_part1")
    W = lambda j: 12 + 2 * (j - 1)
    pw(W(1), 1, 44)
    pw(28, 128, 40)
    putG(0, 6)
    cmul(W(2), W(1), W(1)); cmul(30, 6, 28)
    cmul(W(3), W(2), W(1)); cmul(W(4), W(2), W(2)); cmul(32, 30, 28)
    putG(8, 30)
    cmul(W(5), W(4), W(1)); cmul(W(6), W(4), W(2)); cmul(W(7), W(4), W(3)); cmul(W(8), W(4), W(4)); cmul(34, 32, 28)
    putG(16, 32); putG(20, 34)
    o = [36, 38, 40, 42]
    k = 0
    for j in range(1, 8):
        for hb, row0 in ((6, 0), (30, 8)):
            r = o[k & 3]; k += 1
            cmul(r, hb, W(j)); putG(row0 + j, r)
    for jj, j in enumerate((2, 4, 6)):
        for hb, row0 in ((32, 16), (34, 20)):
            r = o[k & 3]; k += 1
            cmul(r, hb, W(j)); putG(row0 + jj + 1, r)
    A(f"  v_pk_add_f32 {vr(W(7),2)}, {vr(W(7),2)}, {vr(W(8),2)} neg_lo:[0,1] neg_hi:[0,1]")
    A(f"  v_pk_add_f32 {vr(W(6),2)}, {vr(W(6),2)}, {vr(W(8),2)} neg_lo:[0,1] neg_hi:[0,1]")
    cmul(36, 30, W(7)); putG(41, 36)
    cmul(38, 34, W(6)); putG(42, 38)
    A(f"  s_branch {L}_tabdone\n{L}_part1:")
    pw(12, 8, 44)
    pw(28, 128, 40)
    pw(30, 512, 44)
    pw(32, 4, 40)
    A(f"  v_mov_b32 v48, 0x3c00\n  ds_write_b32 v1, v48 offset:{TE}")
    A(f"  v_mov_b32 v49, 0\n  ds_write_b32 v1, v49 offset:{TG + kimg.ROW_ZERO*TGS}")
    putE(1, 12)
    cmul(14, 12, 12); cmul(34, 6, 30)
    putE(2, 14)
    cmul(20, 14, 12); cmul(16, 14, 14)
    putE(3, 20); putE(4, 16)
    cmul(22, 16, 12); cmul(24, 16, 14); cmul(26, 16, 20); cmul(18, 16, 16)
    putE(5, 22); putE(6, 24); putE(7, 26); putE(8, 18)
    Ereg = {1: 12, 2: 14, 3: 20, 4: 16, 5: 22, 6: 24, 7: 26}
    hcur = 34
    for a in range(4, 17):
        hn = 70 - hcur
        if a < 16: cmul(hn, hcur, 28)
        if a < 8:
            putG(24 + 2 * (a - 4), hcur)
            cmul(40, hcur, 32); putG(25 + 2 * (a - 4), 40)
        elif a < 16:
            putG(32 + (a - 8), hcur)
            if a == 8: putG(kimg.ROW_N1024, hcur, neg=True)
        else:
            putG(40, hcur)
        b = a - 4 + 1
        if 1 <= b <= 7:
            cmul(42, 18, Ereg[b]); putE(8 + b, 42)
        hcur = hn
    A(f"""
{L}_tabdone:
  v_and_b32 v2, 15, v0
  v_bfe_u32 v3, v0, 4, 2
  v_mul_u32_u24 v8, {TGS}, v2
  v_lshl_add_u32 v8, v3, 4, v8
  s_mul_i32 s20, s3, {16*TGS}
  v_add_u32 v9, s20, v8
  v_mul_u32_u24 v10, 192, v2
  v_lshl_add_u32 v10, v3, 4, v10
  s_lshl_b32 s20, s3, 6
  v_add_u32 v10, s20, v10
  s_waitcnt lgkmcnt(0)
  s_barrier
  s_cmp_ge_u32 s3, 3
  s_cbranch_scc1 {L}_nomfma
""")
    for ks in range(4):
        A(f"  ds_read_b128 {vr(12+8*ks,4)}, v9 offset:{TG + 64*ks}")
        A(f"  ds_read_b128 {vr(16+8*ks,4)}, v8 offset:{TE + 64*ks}")
    for ks in range(8):
        b = 12 + 8 * (ks & 3)
        A(f"  s_waitcnt lgkmcnt({6 if ks < 5 else 2*(7-ks)})" if ks < 4 or True else "")
        A(f"  v_mfma_f32_16x16x32_f16 v[44:47], {vr(b,4)}, {vr(b+4,4)}, {'0' if ks == 0 else 'v[44:47]'}")
        if ks < 4:
            A(f"  ds_read_b128 {vr(b,4)}, v9 offset:{TG + 64*(ks+4)}")
            A(f"  ds_read_b128 {vr(b+4,4)}, v8 offset:{TE + 64*(ks+4)}")
    A(f"""
  s_nop 7
  ds_write_b128 v10, v[44:47] offset:{KFO}
{L}_nomfma:
  s_mul_i32 s20, s16, {kimg.KIMG_STRIDE}
  s_add_u32 s28, s14, s20
  s_addc_u32 s29, s15, 0
  s_add_u32 s28, s28, {WS_KIMG}
  s_addc_u32 s29, s29, 0
  s_mov_b32 s30, {kimg.IMG_BYTES}
  s_mov_b32 s31, 0x00020000
""")
    for k in range(4):
        A(f"  v_and_b32 v{12+2*k}, 0xffff, v{60+k}")
        A(f"  v_lshrrev_b32 v{13+2*k}, 16, v{60+k}")
    A("  v_lshlrev_b32 v2, 4, v0\n  s_waitcnt lgkmcnt(0)\n  s_barrier")
    for k in range(8):
        A(f"  ds_read_b32 v{20+k}, v{12+k} offset:{KFO}")
    for k in range(4):
        A(f"  s_waitcnt lgkmcnt({6-2*k})")
        A(f"  v_cvt_pk_f16_f32 v{28+k}, v{20+2*k}, v{21+2*k}")
    A(f"""
  buffer_store_dwordx4 v[28:31], v2, s[28:31], 0 offen
  s_cmp_lg_u32 s3, 3
  s_cbranch_scc1 {L}_done
  s_mov_b32 s30, {kimg.IMG_BYTES + 4}
  v_mov_b32 v3, s27
  v_mov_b32 v4, {kimg.IMG_BYTES}
  s_mul_i32 s20, s16, {UT_STRIDE}
  s_add_u32 s32, s14, s20
  s_addc_u32 s33, s15, 0
  s_mov_b32 s34, 128
  s_mov_b32 s35, 0x00020000
  v_and_b32 v5, 63, v0
  v_lshlrev_b32 v5, 2, v5
  v_mov_b32 v6, 0
  buffer_store_dword v3, v4, s[28:31], 0 offen
  buffer_store_dword v6, v5, s[32:35], 0 offen
  s_endpgm
{L}_pf:
""")
    if npf:
        A(f"""
  s_load_dwordx2 s[4:5], s[0:1], {KA['w1']}
  s_load_dwordx2 s[6:7], s[0:1], {KA['w2']}
  s_and_b32 s16, s2, 7
  s_lshr_b32 s17, s2, 3
  s_lshl_b32 s17, s17, 8
  v_add_u32 v1, s17, v0
""")
        if code:
            A(f"""
  s_getpc_b64 s[20:21]
{L}_pc:
  s_add_u32 s20, s20, code_pf_begin-{L}_pc
  s_addc_u32 s21, s21, 0
  s_mov_b32 s22, code_pf_end-code_pf_begin
  s_mov_b32 s23, 0x00020000
  v_lshlrev_b32 v2, 7, v1
  buffer_load_dword v12, v2, s[20:23], 0 offen
""")
        A("  s_waitcnt lgkmcnt(0)")
        nthr = npf // 8 * 256
        if "A" in pf: gen_prefetch(A, 1, 16, 1, nthr, 4, 8, 2, 4)
        if "B" in pf: gen_prefetch(A, 2, 16, 1, nthr, 6, 24, 2, 8, half=True)
        A("  s_waitcnt vmcnt(0)")
    A(f"{L}_done:\n  s_endpgm")
    A(".p2align 8\ncode_pf_begin:")
    A.kernel_desc(name, 80, 64)
    idx = [i * 4 for i in kimg.img] + [kimg.ZERO * 4] * (2048 - kimg.NEL)
    tbl = ".p2align 4\n.type kimg_idx,@object\nkimg_idx:\n"
    for i in range(0, 2048, 16):
        tbl += "  .short " + ", ".join(str(v) for v in idx[i:i+16]) + "\n"
    tbl += ".size kimg_idx, 4096"
    A.desc.append(tbl)

if __name__ == "__main__":
    A = Asm()
    gen_k1(A)
    print(A.text())
```

```python
from asmlib import *
import kimg
from pf import gen_prefetch

def gen_k2(A, name="k2_kernel", stamps=False, pf=""):
    U0 = 1024
    W9 = U0 + 4096 + 512
    W7 = W9 + 2048 + 528
    W5 = W7 + 2048 + 256
    W3 = W5 + 4096 + 272
    U2 = W3 + 4096 + 128
    KI = U2 + 4096
    WAVE = KI + 4096
    assert WAVE % 16 == 0
    STG = 4 * WAVE
    LDS = STG + 128 * 144
    assert LDS <= 160 * 1024, LDS
    A.add_launch(name, 256 if set(pf) - set('cCe') else 160, 256, LDS)
    A.kernel_begin(name)
    L = name
    nst = [0]
    def stamp():
        if stamps:
            A(f"  s_memtime s[{50+2*nst[0]}:{51+2*nst[0]}]")
            lq.append(("stamp", nst[0])); lq.append(("stamp", nst[0]))
            nst[0] += 1
    lq = []
    def ds(tag, txt):
        A(txt); lq.append(tag)
    def lwait(tags):
        idxs = [i for i, t in enumerate(lq) if t in tags]
        if not idxs: return
        idx = max(idxs)
        n = len(lq) - 1 - idx
        if any(t[0] == "stamp" for t in lq): n = 0
        n = min(n, 15)
        A(f"  s_waitcnt lgkmcnt({n})")
        del lq[:len(lq) - n]
    ACC = 16
    DF = 48
    NDF = 8
    SRC = 80
    OO = 112
    WO = 120
    vZ, vB0, vR0, vRC, vT16, vT8, vT4, vA4, vA8, vA16, vWr, vSt = 2, 3, 4, 5, 6, 7, 8, 9, 10, 11, 12, 13
    AOFF = 144
    aR0, aRC, aT = 0, 36, {4: 40, 8: 72, 16: 96}
    A(f"""
  s_cmp_ge_u32 s2, 160
  s_cbranch_scc1 {L}_pf
  {'s_memtime s[48:49]' if stamps else ''}
  s_load_dwordx2 s[6:7], s[0:1], {KA['ws']}
  s_load_dwordx2 s[28:29], s[0:1], {KA['w1']}
  v_lshrrev_b32 v1, 6, v0
  s_and_b32 s16, s2, 7
  s_mul_i32 s16, s16, 20
  v_readfirstlane_b32 s3, v1           ; wave
  s_lshr_b32 s17, s2, 3
  s_add_u32 s16, s16, s17
  v_and_b32 v1, 63, v0                 ; lane
  s_lshl_b32 s17, s16, 2
  s_add_u32 s17, s17, s3               ; channel d
  s_mul_i32 s26, s3, {WAVE}
  v_lshl_add_u32 v{vWr}, v1, 4, s26
  v_mov_b32 v48, 0
  v_mov_b32 v49, 0
  v_mov_b32 v50, 0
  v_mov_b32 v51, 0
""")
    for x0 in (U0, W9, W7, W5, W3, U2):
        A(f"  ds_write_b128 v{vWr}, v[48:51] offset:{x0 - 1024}")
    A(f"""
  v_lshlrev_b32 v14, 4, v1             ; lane*16
  s_mul_i32 s18, s17, {UT_STRIDE}
  s_mul_i32 s19, s17, {kimg.KIMG_STRIDE}
  s_add_u32 s19, s19, {WS_KIMG}
  s_waitcnt lgkmcnt(0)
  s_add_u32 s8, s6, s18
  s_addc_u32 s9, s7, 0
  s_mov_b32 s10, {128 + 4096}
  s_mov_b32 s11, 0x00020000
  s_add_u32 s12, s6, s19
  s_addc_u32 s13, s7, 0
  s_mov_b32 s14, {kimg.IMG_BYTES}
  s_mov_b32 s15, 0x00020000
  s_load_dword s27, s[12:13], {kimg.IMG_BYTES}      ; unscale
  s_add_u32 m0, s26, {KI}
  s_mov_b32 s20, 128
""")
    for i in range(4):
        A(f"  buffer_load_dwordx4 v14, s[12:15], 0 offen offset:{1024*i} lds")
    A(f"  s_add_u32 m0, s26, {U0}\n  s_mov_b32 s21, 120")
    for i in range(4):
        A(f"  buffer_load_dwordx4 v14, s[8:11], s20 offen offset:{1024*i} lds")
    for i in range(4):
        A(f"  buffer_load_dwordx4 {vr(SRC+8*i,4)}, v14, s[8:11], s21 offen offset:{1024*i}")
        A(f"  buffer_load_dwordx4 {vr(SRC+8*i+4,4)}, v14, s[8:11], s21 offen offset:{1024*i+16}")
    NPF = 0
    if "e" in pf:
        A(f"  s_and_b32 s30, s2, 7\n  s_lshr_b32 s31, s2, 3\n  s_lshl_b32 s31, s31, 8\n  v_add_u32 v140, s31, v0")
        NPF = gen_prefetch(A, 1, 30, 140, 5120, 28, 32, 141, 142, half=True)
    sg = kimg.segs
    A(f"""
  v_and_b32 v14, 15, v1                ; n / b
  v_lshrrev_b32 v15, 4, v1             ; g
  v_lshlrev_b32 v48, 5, v14
  v_lshl_add_u32 v48, v15, 4, v48
  s_add_u32 s22, s26, {U0 - 544}
  v_add_u32 v{vB0}, s22, v48
  v_lshlrev_b32 v48, 3, v15
  v_sub_u32 v48, v48, v14
  v_add_u32 v48, 15, v48               ; st
  v_and_b32 v49, 1, v48
  v_cmp_eq_u32 vcc, 1, v49
  v_and_b32 v48, -2, v48
  v_lshlrev_b32 v48, 1, v48            ; bytes
  s_add_u32 s22, s26, {KI}
  v_add_u32 v48, s22, v48
  v_mov_b32 v50, {2*sg['R0E']}
  v_mov_b32 v51, {2*sg['R0O']}
  v_cndmask_b32 v50, v50, v51, vcc
  v_add_u32 v{vR0}, v48, v50
  v_mov_b32 v50, {2*sg['RCE']}
  v_mov_b32 v51, {2*sg['RCO']}
  v_cndmask_b32 v50, v50, v51, vcc
  v_add_u32 v{vRC}, v48, v50
  v_sub_u32 v48, 15, v14               ; 15-n
  v_and_b32 v49, 1, v15
  v_lshlrev_b32 v49, 4, v49            ; 8*(g&1)*2 bytes
  v_add_u32 v49, s22, v49
  v_lshrrev_b32 v52, 1, v15            ; pi
  v_mov_b32 v50, {2*sg['T16_0E']}
  v_mov_b32 v51, {2*sg['T16_0O']}
  v_cndmask_b32 v50, v50, v51, vcc
  v_mul_u32_u24 v51, {2*(sg['T16_1E']-sg['T16_0E'])}, v52
  v_add3_u32 v50, v50, v51, v49
  v_and_b32 v51, -2, v48
  v_lshl_add_u32 v{vT16}, v51, 1, v50
  v_mul_u32_u24 v51, {2*(sg['T8_1E']-sg['T8_0E'])}, v52
  v_add_u32 v50, {2*sg['T8_0E']}, v49
  v_add_u32 v50, v50, v51
  v_lshl_add_u32 v{vT8}, v48, 2, v50
  v_mul_u32_u24 v51, {2*(sg['T4_1E']-sg['T4_0E'])}, v52
  v_add_u32 v50, {2*sg['T4_0E']}, v49
  v_add_u32 v50, v50, v51
  v_lshl_add_u32 v{vT4}, v48, 3, v50
  v_bfe_u32 v48, v1, 2, 2              ; r
  v_and_b32 v49, 1, v15                ; hb
  v_lshl_add_u32 v48, v49, 3, v48      ; 8hb + r
  v_and_b32 v49, 3, v1
  v_lshlrev_b32 v49, 3, v49
  v_add_u32 v49, s26, v49              ; base + 8*c4
""")
    assert sg['T16_1O'] - sg['T16_0O'] == sg['T16_1E'] - sg['T16_0E']
    for P, va, ae, ao in ((4, vA4, W3, U2), (8, vA8, W5, W3 - 8), (16, vA16, W9, W7 - 16)):
        A(f"""
  v_mul_u32_u24 v50, {(ao - ae) & 0xffffff if ao >= ae else 0}, v52
  v_mul_u32_u24 v51, {2*P}, v48
  v_add3_u32 v50, v50, v51, v49
  v_add_u32 v{va}, {ae - 32*P}, v50
""")
        assert ao >= ae
    A(f"""
  v_mul_u32_u24 v48, 144, v14
  v_lshl_add_u32 v48, v52, 6, v48
  v_and_b32 v49, 1, v15
  v_lshl_add_u32 v48, v49, 3, v48
  s_lshl_b32 s22, s3, 4
  s_add_u32 s22, s22, {STG}
  v_add_u32 v{vSt}, s22, v48
""")
    stamp()
    def toep(tag, areg, vaddr, dw):
        return [lambda: ds(tag, f"  ds_read2_b32 {ar(areg,2)}, v{vaddr} offset0:{dw} offset1:{dw+1}"),
                lambda: ds(tag, f"  ds_read2_b32 {ar(areg+2,2)}, v{vaddr} offset0:{dw+2} offset1:{dw+3}")]
    A(f"  s_waitcnt vmcnt({12+NPF})")
    A("  s_waitcnt lgkmcnt(0)"); lq.clear()
    for k in range(0, 17, 2):
        for f in toep(("R0", k), aR0 + 2 * k, vR0, 8 * (16 - k)): f()
    for f in toep(("RC",), aRC, vRC, 0): f()
    side = []
    for P, va in ((4, vT4), (8, vT8), (16, vT16)):
        s = 16 // P
        for kap in range(s + 4):
            side += toep(("T", P, kap), aT[P] + 4 * kap, va, 8 * kap)
    wprep = []
    for i in range(4):
        E = lambda j, i=i: SRC + 8 * i + 2 + j
        O = lambda j: OO + 2 + j
        full = i < 2
        ops = [lambda i=i: A(f"  s_waitcnt vmcnt({6 - 2*i + NPF})")]
        for j in (range(-2, 5) if full else range(-1, 4)):
            ops.append(lambda j=j, E=E: A(f"  v_alignbit_b32 v{O(j)}, v{E(j+1)}, v{E(j)}, 16"))
        ops.append(lambda E=E: A(f"  v_pk_mov_b32 {vr(WO+16,2)}, {vr(E(-2),2)}, {vr(E(0),2)} op_sel:[1,0]"))
        ops.append(lambda E=E: A(f"  v_pk_mov_b32 {vr(WO+18,2)}, {vr(E(0),2)}, {vr(E(2),2)} op_sel:[1,0]"))
        ops.append(lambda i=i: ds(("w",), f"  ds_write_b128 v{vWr}, {vr(WO+16,4)} offset:{U2 + 1024*i}"))
        for j in range(4):
            ops.append(lambda j=j, E=E: A(f"  v_pk_add_f16 v{WO+j}, v{O(j-1)}, v{E(j)}"))
        for j in range(4):
            ops.append(lambda j=j: A(f"  v_pk_add_f16 v{WO+j}, v{WO+j}, v{O(j)}"))
        ops.append(lambda i=i: ds(("w",), f"  ds_write_b128 v{vWr}, {vr(WO,4)} offset:{W3 + 1024*i}"))
        for j in range(4):
            ops.append(lambda j=j, E=E: A(f"  v_pk_add_f16 v{WO+4+j}, v{WO+j}, v{E(j-1)}"))
        for j in range(4):
            ops.append(lambda j=j, E=E: A(f"  v_pk_add_f16 v{WO+4+j}, v{WO+4+j}, v{E(j+1)}"))
        ops.append(lambda i=i: ds(("w",), f"  ds_write_b128 v{vWr}, {vr(WO+4,4)} offset:{W5 + 1024*i}"))
        if full:
            for j in range(4):
                ops.append(lambda j=j: A(f"  v_pk_add_f16 v{WO+8+j}, v{WO+4+j}, v{O(j-2)}"))
            for j in range(4):
                ops.append(lambda j=j: A(f"  v_pk_add_f16 v{WO+8+j}, v{WO+8+j}, v{O(j+1)}"))
            ops.append(lambda i=i: ds(("w",), f"  ds_write_b128 v{vWr}, {vr(WO+8,4)} offset:{W7 + 1024*i}"))
            for j in range(4):
                ops.append(lambda j=j, E=E: A(f"  v_pk_add_f16 v{WO+12+j}, v{WO+8+j}, v{E(j-2)}"))
            for j in range(4):
                ops.append(lambda j=j, E=E: A(f"  v_pk_add_f16 v{WO+12+j}, v{WO+12+j}, v{E(j+2)}"))
            ops.append(lambda i=i: ds(("w",), f"  ds_write_b128 v{vWr}, {vr(WO+12,4)} offset:{W9 + 1024*i}"))
        if i == 3 and ("c" in pf or "C" in pf):
            def cpf():
                A(f"  s_and_b32 s30, s2, 7\n  s_lshr_b32 s31, s2, 3\n  s_lshl_b32 s31, s31, 8\n  v_add_u32 v140, s31, v0")
                gen_prefetch(A, 1, 30, 140, 5120, 28, 32, 141, SRC, half=("c" in pf))
            ops.append(cpf)
        if i == 0:
            def neg(E=E):
                A(f"""
  v_pack_b32_f16 v{OO}, v{E(0)}, v{WO}
  v_pack_b32_f16 v{OO+1}, v{WO+4}, v{WO+8}
  v_lshlrev_b32 v{OO+2}, 16, v{E(0)}
  v_pack_b32_f16 v{OO+3}, v{WO}, v{WO+4}
  s_mov_b64 exec, 1
""")
                ds(("w",), f"  ds_write_b64 v{vWr}, {vr(OO,2)} offset:{W9 - 8}")
                ds(("w",), f"  ds_write_b64 v{vWr}, {vr(OO+2,2)} offset:{W7 - 8}")
                ds(("w",), f"  ds_write_b32 v{vWr}, v{OO} offset:{W5 - 4}")
                ds(("w",), f"  ds_write_b32 v{vWr}, v{OO+2} offset:{W3 - 4}")
                A("  s_mov_b64 exec, -1")
            ops.append(neg)
        wprep += ops
    side = wprep + side
    items = []
    for e in list(range(-14, 113, 2)) + [16 * t - 63 for t in range(3, 8)]:
        ms = []
        if e & 1:
            ms.append(((e + 63) // 16, ar(aRC, 4), ("RC",), True))
        else:
            t = -(-e // 16); k = 16 * t - e
            if t <= 7: ms.append((t, ar(aR0 + 2 * k, 4), ("R0", k), True))
            if k == 0 and t + 1 <= 7: ms.append((t + 1, ar(aR0 + 32, 4), ("R0", 16), True))
        items.append(("u", e, ms))
    n0 = len(items)
    for P in (4, 8, 16):
        s = 16 // P
        Jmax = s * 7 - 8 + s + 3
        for J in range(-1, Jmax + 1):
            ms = []
            for t in range(8):
                kap = J - s * t + 8
                if 0 <= kap < s + 4: ms.append((t, ar(aT[P] + 4 * kap, 4), ("T", P, kap), False))
            items.append(("w", (P, J), ms))
    def load(idx):
        kind, x, _ = items[idx]
        r = DF + 4 * (idx % NDF)
        if kind == "u":
            ds(("D", idx), f"  ds_read_b128 {vr(r,4)}, v{vB0} offset:{32*(x+16)}")
        else:
            P, J = x
            va = {4: vA4, 8: vA8, 16: vA16}[P]
            for h in range(2):
                ds(("D", idx), f"  ds_read_b64_tr_b16 {vr(r+2*h,2)}, v{va} offset:{2*P*(16*(J+1)+4*h)}")
    A(f"  s_waitcnt vmcnt({8+NPF})                 ; U landed")
    stamp()
    PF = 5
    for idx in range(PF): load(idx)
    inited = set()
    si = 0
    per = -(-len(side) // (n0 - PF - 2))
    for idx, (kind, x, ms) in enumerate(items):
        if idx == n0: stamp()
        nxt = idx + PF
        if nxt < len(items):
            if nxt >= n0:
                while si < len(side): side[si](); si += 1
            load(nxt)
        r = DF + 4 * (idx % NDF)
        for (t, treg, ttag, toep_is_A) in ms:
            lwait({("D", idx), ttag})
            acc = vr(ACC + 4 * t, 4)
            c = acc if t in inited else "0"
            inited.add(t)
            if toep_is_A: A(f"  v_mfma_f32_16x16x32_f16 {acc}, {treg}, {vr(r,4)}, {c}")
            else:         A(f"  v_mfma_f32_16x16x32_f16 {acc}, {vr(r,4)}, {treg}, {c}")
        for _ in range(per):
            if si < len(side): side[si](); si += 1
    stamp()
    A("  s_waitcnt lgkmcnt(0)\n  s_nop 6"); lq.clear()
    for t in range(8):
        a = ACC + 4 * t
        for r in range(4): A(f"  v_mul_f32 v{a+r}, s27, v{a+r}")
        A(f"  v_cvt_pk_bf16_f32 v{a}, v{a}, v{a+1}\n  v_cvt_pk_bf16_f32 v{a+1}, v{a+2}, v{a+3}")
        A(f"  ds_write_b64 v{vSt}, {vr(a,2)} offset:{2304*t}")
    A.srd(8, 6, 256 * XS, WS_Y8)
    A(f"""
  v_lshrrev_b32 v48, 3, v0
  v_mul_u32_u24 v48, 144, v48
  v_and_b32 v49, 7, v0
  v_lshl_add_u32 v48, v49, 4, v48
  v_lshrrev_b32 v49, 2, v0
  v_mul_u32_u24 v49, {XS}, v49
  v_and_b32 v50, 3, v0
  v_lshl_add_u32 v49, v50, 4, v49
  s_lshl_b32 s22, s16, 6
  v_add_u32 v49, s22, v49
  v_add_u32 v48, {STG}, v48
  s_waitcnt lgkmcnt(0)
  s_barrier
""")
    for i in range(4):
        A(f"  ds_read_b128 {vr(52+4*i,4)}, v48 offset:{32*144*i}")
    for i in range(4):
        A(f"  s_waitcnt lgkmcnt({3-i})\n  s_mov_b32 s22, {64*XS*i}")
        A(f"  buffer_store_dwordx4 {vr(52+4*i,4)}, v49, s[8:11], s22 offen")
    if stamps:
        stamp()
        A("  s_waitcnt vmcnt(0)")
        stamp()
        A("  s_waitcnt lgkmcnt(0)")
        A.srd(8, 6, 0x100000, 0x2020000)
        A(f"  s_lshl_b32 s36, s2, 2\n  s_add_u32 s36, s36, s3\n  s_lshl_b32 s36, s36, 6\n  v_mov_b32 v2, s36")
        for k in range(nst[0]):
            A(f"  s_sub_u32 s36, s{50+2*k}, s48\n  v_mov_b32 v3, s36\n  buffer_store_dword v3, v2, s[8:11], 0 offen offset:{4*k}")
    A("  s_endpgm")
    A(f"{L}_pf:")
    if pf:
        A(f"""
  s_cmp_ge_u32 s2, 256
  s_cbranch_scc1 {L}_done
  s_load_dwordx2 s[4:5], s[0:1], {KA['w1']}
  s_load_dwordx2 s[6:7], s[0:1], {KA['w2']}
  s_and_b32 s16, s2, 7
  s_sub_u32 s17, s2, 160
  s_lshr_b32 s17, s17, 3
  s_lshl_b32 s17, s17, 8
  v_add_u32 v1, s17, v0
  s_waitcnt lgkmcnt(0)
""")
        if "1" in pf: gen_prefetch(A, 1, 16, 1, 3072, 4, 8, 2, 4)
        if "2" in pf: gen_prefetch(A, 2, 16, 1, 3072, 6, 20, 2, 8)
        if "h" in pf: gen_prefetch(A, 1, 16, 1, 3072, 4, 8, 2, 4, half=True)
        if "H" in pf: gen_prefetch(A, 2, 16, 1, 3072, 6, 20, 2, 8, half=True)
        if "x" in pf:
            A("  s_waitcnt vmcnt(0)")
            gen_prefetch(A, 1, 16, 1, 3072, 4, 8, 2, 4)
        A("  s_waitcnt vmcnt(0)")
    A(f"{L}_done:\n  s_endpgm")
    A.kernel_desc(name, AOFF + 116, 80, AOFF)

if __name__ == "__main__":
    import sys
    from k1 import gen_k1
    A = Asm()
    gen_k1(A)
    gen_k2(A, stamps=len(sys.argv) > 1)
    print(A.text())
```

```python
from asmlib import *
from pf import gen_prefetch

def gen_k3(A, name="k3_kernel", pf=""):
    YB = 0
    HB = 10240
    SB = HB + 10 * 1152
    LDS = SB + 8 * 96
    A.add_launch(name, 256, 640, LDS)
    A.kernel_begin(name)
    L = name
    A(f"""
  s_cmp_ge_u32 s2, 256
  s_cbranch_scc1 {L}_done
  s_load_dwordx2 s[4:5], s[0:1], {KA['x']}
  s_load_dwordx2 s[6:7], s[0:1], {KA['ws']}
  s_load_dwordx2 s[28:29], s[0:1], {KA['Dsk']}
  s_load_dwordx2 s[44:45], s[0:1], {KA['w1'] if pf == '1' else KA['w2']}
  v_lshrrev_b32 v1, 6, v0
  v_and_b32 v2, 7, v0                  ; t
  v_readfirstlane_b32 s3, v1           ; wave
  v_and_b32 v1, 63, v0                 ; lane
  v_lshrrev_b32 v3, 3, v1              ; qq
  s_lshl_b32 s16, s2, 3                ; token0
  v_add_u32 v4, s16, v2                ; token
  v_lshlrev_b32 v5, 3, v4
  v_mul_u32_u24 v4, 1280, v4
  s_lshl_b32 s17, s3, 7
  v_lshl_add_u32 v6, v3, 3, s17
  v_add_u32 v4, v4, v6                 ; x/h offset
  v_lshlrev_b32 v7, 4, v0              ; tid*16
  s_mul_i32 s18, s2, {XS}
  s_lshl_b32 s19, s3, 10
  s_add_u32 m0, s19, {YB}
  s_waitcnt lgkmcnt(0)
""")
    A.srd(8, 6, 256 * XS, WS_Y8)
    A("  buffer_load_dwordx4 v7, s[8:11], s18 offen lds")
    A.srd(12, 4, 2048 * 1280)
    A("  buffer_load_dwordx2 v[16:17], v4, s[12:15], 0 offen")
    A("  buffer_load_dwordx2 v[18:19], v4, s[12:15], 0 offen offset:64")
    A.srd(20, 6, 2048 * 8, WS_ST1)
    A("  buffer_load_dwordx2 v[14:15], v5, s[20:23], 0 offen")
    A.srd(24, 28, 1280)
    A("  buffer_load_dwordx2 v[20:21], v6, s[24:27], 0 offen")
    A("  buffer_load_dwordx2 v[22:23], v6, s[24:27], 0 offen offset:64")
    A.srd(32, 6, 2048 * 1280, WS_H)
    A.srd(36, 6, 8 * XT1, WS_HN8)
    A(f'''
  v_mul_u32_u24 v64, 52429, v0
  v_lshrrev_b32 v64, 22, v64
  v_mul_u32_u24 v65, {XT1 - 1280}, v64
  v_add_u32 v31, v65, v7
  s_mul_i32 s47, s2, 1280
''')
    A(f"""
  v_lshrrev_b32 v8, 4, v1
  v_lshlrev_b32 v8, 7, v8
  v_bfe_u32 v9, v1, 1, 1
  v_lshl_add_u32 v8, v9, 6, v8
  v_bfe_u32 v9, v1, 2, 2               ; r
  v_lshl_add_u32 v8, v9, 4, v8
  v_and_b32 v10, 1, v1
  v_lshl_add_u32 v8, v10, 3, v8
  v_add_u32 v8, s19, v8
  s_mul_i32 s40, s3, 1152
  s_add_u32 s40, s40, {HB}
  v_mul_u32_u24 v10, 144, v2
  v_lshl_add_u32 v10, v3, 3, v10
  v_add_u32 v10, s40, v10
  v_mul_u32_u24 v11, 144, v9
  v_lshrrev_b32 v12, 4, v1
  v_lshl_add_u32 v11, v12, 5, v11
  v_and_b32 v12, 3, v1
  v_lshl_add_u32 v11, v12, 3, v11
  v_add_u32 v11, s40, v11
  v_mul_u32_u24 v12, 96, v2
  v_add_u32 v12, {SB}, v12
  v_lshrrev_b32 v13, 5, v1
  v_lshl_add_u32 v13, v13, 2, v12
  s_lshl_b32 s41, s3, 3
  v_add_u32 v13, s41, v13
  s_waitcnt vmcnt(5)
  ds_read_b64_tr_b16 v[24:25], v8 offset:{YB}
  ds_read_b64_tr_b16 v[26:27], v8 offset:{YB + 512}
  s_waitcnt vmcnt(2)
""")
    X, Y, U = 32, 40, 48
    for k in range(4):
        A(f"  v_lshlrev_b32 v{X+2*k}, 16, v{16+k}\n  v_and_b32 v{X+2*k+1}, 0xffff0000, v{16+k}")
    A("  v_mul_f32 v28, v14, v15\n  v_mov_b32 v30, v15")
    for k in range(4):
        A(f"  v_pk_fma_f32 {vr(U+2*k,2)}, {vr(X+2*k,2)}, v[30:31], v[28:29] op_sel_hi:[1,0,0] neg_lo:[0,0,1] neg_hi:[0,0,1]")
    A("  s_waitcnt vmcnt(0)")
    if pf:
        A(f"  s_and_b32 s46, s2, 7\n  s_lshr_b32 s54, s2, 3\n  s_mul_i32 s54, s54, 640\n  v_add_u32 v64, s54, v0")
        gen_prefetch(A, 1 if pf == '1' else 2, 46, 64, 20480, 44, 48, 65, 68, half=(pf == 'H'))
    D = 56
    for k in range(4):
        A(f"  v_lshlrev_b32 v{D+2*k}, 16, v{20+k}\n  v_and_b32 v{D+2*k+1}, 0xffff0000, v{20+k}")
    A("  s_waitcnt lgkmcnt(0)")
    for k in range(4):
        A(f"  v_lshlrev_b32 v{Y+2*k}, 16, v{24+k}\n  v_and_b32 v{Y+2*k+1}, 0xffff0000, v{24+k}")
    for k in range(4):
        A(f"  v_pk_fma_f32 {vr(Y+2*k,2)}, {vr(U+2*k,2)}, {vr(D+2*k,2)}, {vr(Y+2*k,2)}")
    for k in range(4):
        A(f"  v_pk_add_f32 {vr(X+2*k,2)}, {vr(X+2*k,2)}, {vr(Y+2*k,2)}")
    for k in range(4):
        A(f"  v_cvt_pk_bf16_f32 v{16+k}, v{X+2*k}, v{X+2*k+1}")
    A("  buffer_store_dwordx2 v[16:17], v4, s[32:35], 0 offen")
    A("  buffer_store_dwordx2 v[18:19], v4, s[32:35], 0 offen offset:64")
    for k in range(4):
        A(f"  v_lshlrev_b32 v{X+2*k}, 16, v{16+k}\n  v_and_b32 v{X+2*k+1}, 0xffff0000, v{16+k}")
    for k in range(4):
        A(f"  v_pk_add_f32 {vr(X+2*k,2)}, {vr(X+2*k,2)}, v[14:15] op_sel_hi:[1,0] neg_lo:[0,1] neg_hi:[0,1]")
    A(f"""
  v_pk_add_f32 v[40:41], {vr(X,2)}, {vr(X+2,2)}
  v_pk_add_f32 v[42:43], {vr(X+4,2)}, {vr(X+6,2)}
  v_pk_mul_f32 v[44:45], {vr(X,2)}, {vr(X,2)}
  v_pk_mul_f32 v[46:47], {vr(X+2,2)}, {vr(X+2,2)}
  v_pk_add_f32 v[40:41], v[40:41], v[42:43]
  v_pk_fma_f32 v[44:45], {vr(X+4,2)}, {vr(X+4,2)}, v[44:45]
  v_pk_fma_f32 v[46:47], {vr(X+6,2)}, {vr(X+6,2)}, v[46:47]
  v_add_f32 v40, v40, v41
  v_pk_add_f32 v[44:45], v[44:45], v[46:47]
  s_nop 0
  v_add_f32 v41, v44, v45
  s_nop 1
  v_permlane32_swap_b32 v40, v41
  s_nop 1
  v_add_f32 v40, v40, v41
  v_mov_b32 v41, v40
  s_nop 1
  v_permlane16_swap_b32 v40, v41
  s_nop 1
  v_add_f32 v40, v40, v41
  s_nop 1
  v_add_f32 v40, v40, v40 row_ror:8
  s_mov_b32 s42, 0xff
  s_mov_b32 s43, 0xff
  s_mov_b64 exec, s[42:43]
  ds_write_b32 v13, v40
  s_mov_b64 exec, -1
  s_waitcnt lgkmcnt(0)
  s_barrier
""")
    for k in range(5):
        A(f"  ds_read_b128 {vr(40+4*k,4)}, v12 offset:{16*k}")
    A(f"""
  s_waitcnt lgkmcnt(3)
  v_pk_add_f32 v[40:41], v[40:41], v[42:43]
  v_pk_add_f32 v[44:45], v[44:45], v[46:47]
  s_waitcnt lgkmcnt(1)
  v_pk_add_f32 v[48:49], v[48:49], v[50:51]
  v_pk_add_f32 v[52:53], v[52:53], v[54:55]
  v_pk_add_f32 v[40:41], v[40:41], v[44:45]
  s_waitcnt lgkmcnt(0)
  v_pk_add_f32 v[56:57], v[56:57], v[58:59]
  v_pk_add_f32 v[48:49], v[48:49], v[52:53]
  v_pk_add_f32 v[40:41], v[40:41], v[56:57]
  s_mov_b32 s42, {fbits(1.0/640)}
  v_pk_add_f32 v[40:41], v[40:41], v[48:49]
  s_nop 0
  v_mul_f32 v40, s42, v40
  v_mul_f32 v41, s42, v41
  v_fma_f32 v41, -v40, v40, v41             ; var2
  v_max_f32 v41, 0, v41
  v_add_f32 v42, v40, v14                   ; mean2
  v_cvt_pk_bf16_f32 v43, v41, v42
  v_lshlrev_b32 v44, 16, v43                ; v2_bf
  v_and_b32 v43, 0xffff0000, v43            ; m2_bf
  v_add_f32 v44, {fbits(1e-5)}, v44
  v_cvt_pk_bf16_f32 v44, v44, v44
  v_lshlrev_b32 v44, 16, v44
  v_sqrt_f32 v44, v44
  v_sub_f32 v45, v43, v14                   ; m2_bf - m1
  v_cvt_pk_bf16_f32 v44, v44, v44
  v_lshlrev_b32 v44, 16, v44                ; sd2
  v_rcp_f32 v44, v44                        ; r2
  v_sub_f32 v46, v40, v45
  v_mul_f32 v46, v46, v44                   ; mean3
  v_mul_f32 v47, v41, v44
  v_mul_f32 v47, v47, v44                   ; var3
  v_cvt_pk_bf16_f32 v47, v47, v46
  v_and_b32 v46, 0xffff0000, v47            ; m3_bf
  v_lshlrev_b32 v47, 16, v47
  v_add_f32 v47, {fbits(1e-5)}, v47
  v_cvt_pk_bf16_f32 v47, v47, v47
  v_lshlrev_b32 v47, 16, v47
  v_sqrt_f32 v47, v47
  v_fma_f32 v46, v45, v44, v46
  v_cvt_pk_bf16_f32 v47, v47, v47
  v_lshlrev_b32 v47, 16, v47
  v_rcp_f32 v47, v47                        ; r3
  s_nop 0
  v_mul_f32 v48, v44, v47                   ; A
  v_mul_f32 v50, v46, v47                   ; -B
""")
    for k in range(4):
        A(f"  v_pk_fma_f32 {vr(X+2*k,2)}, {vr(X+2*k,2)}, v[48:49], v[50:51] op_sel_hi:[1,0,0] neg_lo:[0,0,1] neg_hi:[0,0,1]")
    for k in range(4):
        A(f"  v_cvt_pk_bf16_f32 v{56+k}, v{X+2*k}, v{X+2*k+1}")
    A(f"""
  ds_write_b64 v10, v[56:57]
  ds_write_b64 v10, v[58:59] offset:64
  ds_read_b64_tr_b16 v[60:61], v11
  ds_read_b64_tr_b16 v[62:63], v11 offset:{4*144}
  s_waitcnt lgkmcnt(0)
  buffer_store_dwordx4 v[60:63], v31, s[36:39], s47 offen
{L}_done:
  s_endpgm
""")
    A.kernel_desc(name, 72, 64)
```

```python
from asmlib import *
def gen_prefetch(A, which, s_xcd, v_idx, nthr, sp, sb, vt, vd, flags="", half=False, emit=None):
    if which == 1:
        stride, rows, qb, nbytes = 3456, 2048, 896, 2048 * 3456
    else:
        stride, rows, qb, nbytes = 4096, 1728, 1024, 1728 * 4096
    A.srd(sb, sp, nbytes)
    assert nthr % 8 == 0
    A(f"""
  s_lshr_b32 s{sb+4}, s{s_xcd}, 1
  s_mul_i32 s{sb+4}, s{sb+4}, {qb}
""")
    if half:
        rows //= 2
        A(f"""
  s_and_b32 s{sb+5}, s{s_xcd}, 1
  s_mul_i32 s{sb+5}, s{sb+5}, {rows * stride}
  s_add_u32 s{sb+4}, s{sb+4}, s{sb+5}
  s_add_u32 s{sb+2}, s{sb+5}, {rows * stride}
""")
    A(f"""
  v_lshrrev_b32 v{vt}, 3, v{v_idx}
  v_mul_u32_u24 v{vt}, {stride}, v{vt}
  v_and_b32 v{vt+1}, 7, v{v_idx}
  v_lshl_add_u32 v{vt}, v{vt+1}, 7, v{vt}
  v_add_u32 v{vt}, s{sb+4}, v{vt}
""")
    rounds = -(-rows * 8 // nthr)
    for k in range(rounds):
        A(f"  s_mov_b32 s{sb+5}, {k * (nthr // 8) * stride}")
        A(f"  buffer_load_dword v{vd + (k & 1)}, v{vt}, s[{sb}:{sb+3}], s{sb+5} offen {flags}")
    return rounds
```

```python
from asmlib import *
from pf import gen_prefetch
def gen_pfk(A, which, name):
    A.add_launch(name, 256, 256, 0)
    A.kernel_begin(name)
    A(f"""
  s_cmp_ge_u32 s2, 256
  s_cbranch_scc1 {name}_done
  s_load_dwordx2 s[4:5], s[0:1], {KA['w1'] if which == 1 else KA['w2']}
  s_and_b32 s16, s2, 7
  s_lshr_b32 s17, s2, 3
  s_lshl_b32 s17, s17, 8
  v_add_u32 v1, s17, v0
  s_waitcnt lgkmcnt(0)
""")
    gen_prefetch(A, which, 16, 1, 8192, 4, 8, 2, 4)
    A(f"  s_waitcnt vmcnt(0)\n{name}_done:\n  s_endpgm")
    A.kernel_desc(name, 16, 32)
```

```python
import sys
from asmlib import *
from k1 import gen_k1
from k2 import gen_k2
from k3 import gen_k3
from gemm3 import gen_gemm
HEADER = open("sequential_preLN__ssm_conv_s4d__mixer_token_mlp__prompt.s.ref").read().split("\n")
HEADER = "\n".join(l for l in HEADER if l.startswith(";") and "@launch" not in l and "Override" not in l and "grid=ceil" not in l)
A = Asm()
opt = dict(a.split('=') for a in sys.argv[1:])
gen_k1(A, pf=opt.get('k1pf',''), npf=int(opt.get('npf',0)), code=int(opt.get('code',0)), stamps=int(opt.get('st1', 0)), nend=int(opt.get('nend', 0)), pend=opt.get('pend', '')); gen_k2(A, pf=opt.get('k2pf',''), stamps=int(opt.get('st2', 0)), PF=int(opt.get('PF', 6)), WB=int(opt.get('WB', 2)), NCH=int(opt.get('NCH', 3))); gen_k3(A, NW=int(opt.get('NW3', 10)))
R = int(opt.get('R', 5))
st = int(opt.get('st', 0))
kw = dict(stamps=st, pfx=int(opt.get('pfx', 0)), pfw=int(opt.get('pfw', 0)), stag=int(opt.get('stag', 0)), lead=int(opt.get('lead', 0)), rot=int(opt.get('rot', 0)), map18=int(opt.get('map18', 0)), reps=int(opt.get('reps', 1)), mimic=int(opt.get('mg', 1)), xpf=int(opt.get('xpf', 0)), ks2=int(opt.get('ks2', 0)))
from pfk import gen_pfk
if opt.get('pfk'): gen_pfk(A, 1, 'pfa_kernel')
gen_gemm(A, 1, R, pf2=int(opt.get('pf2', 0)), nt=opt.get('nt1', ''), **kw)
if opt.get('pfk'): gen_pfk(A, 2, 'pfb_kernel')
gen_gemm(A, 2, R, **kw)
A('code_pf_end:')
print(A.text(HEADER))
```

```python
from asmlib import *

def gen_gemm(A, which, R=5, name=None, stamps=False, pfx=True, pfw=True, pf2=0, stag=1, lead=0, rot=0, nt='', map18=0, reps=1, mimic=1):
    name = name or f"gemm{which}_kernel"
    if which == 1:
        WSTR, WROWS, T, XOFF, XT = 3456, 2048, 32, WS_HN8, XT1
    else:
        WSTR, WROWS, T, XOFF, XT = 4096, 1728, 27, WS_G8, XT2
    WBYTES = WROWS * WSTR
    SLOT, WOFF = 18432, 10240
    LDS = R * SLOT
    NL, PER = 3, 6
    A.add_launch(name, 256, 512 if lead else 448, LDS)
    A.kernel_begin(name)
    L = name
    nst = [0]
    def stamp():
        if stamps:
            A(f"  s_memtime s[{50+2*nst[0]}:{51+2*nst[0]}]")
            nst[0] += 1
    A(f"""
  s_cmp_ge_u32 s2, 256
  s_cbranch_scc1 {L}_done
  {'s_memtime s[48:49]' if stamps else ''}
  {'s_memrealtime s[70:71]' if stamps else ''}
  s_load_dwordx2 s[4:5], s[0:1], {KA['w1'] if which == 1 else KA['w2']}
  s_load_dwordx2 s[6:7], s[0:1], {KA['ws']}
  v_lshrrev_b32 v1, 6, v0
  s_and_b32 s32, s2, 7                 ; xcd
  s_lshr_b32 s33, s2, 3                ; j
  v_readfirstlane_b32 s3, v1
  v_and_b32 v1, 63, v0                 ; lane
  s_add_u32 s34, s33, {rot if which == 2 else 0}
  s_and_b32 s34, s34, 7                ; j&7
  s_lshr_b32 s39, s33, 3               ; j>>3 (0..3)
  s_and_b32 s35, s32, 1
  s_lshl_b32 s35, s35, 2
  s_add_u32 s33, s39, s35              ; dtile (0..7)
  s_lshr_b32 s32, s32, 1               ; quarter
  s_mul_i32 s32, s32, {7 if which == 1 else 8}
  s_add_u32 s32, s32, s34              ; wtile
  {'s_and_b32 s32, s2, 7' if (map18 and which == 2) else ''}
  {'s_lshl_b32 s32, s32, 2' if (map18 and which == 2) else ''}
  {'s_bfe_u32 s36, s2, 0x20003' if (map18 and which == 2) else ''}
  {'s_add_u32 s32, s32, s36' if (map18 and which == 2) else ''}
  {'s_lshr_b32 s33, s2, 5' if (map18 and which == 2) else ''}
  s_mul_i32 s40, s33, {XT}
  s_add_u32 s40, s40, {XOFF}
""")
    if which == 1:
        A(f"""
  s_cmp_ge_u32 s34, 7
  s_cbranch_scc1 {L}_idle
  s_cmp_ge_u32 s32, 27
  s_cbranch_scc1 {L}_idle
""")
    A(f"""
  s_cmp_lt_u32 s3, 4
  s_cbranch_scc1 {L}_consumer
  s_cmp_eq_u32 s3, 7
  s_cbranch_scc1 {L}_toucher
""")
    A(f"""
  s_lshl_b32 s29, s39, 1
  s_add_u32 s29, s29, s34
  s_and_b32 s29, s29, 7
  s_lshl_b32 s29, s29, 1
  s_and_b32 s36, s2, {1 if stag == 1 else 0}
  s_add_u32 s29, s29, s36
  s_mul_i32 s29, s29, {T if stag else 0}
  s_lshr_b32 s29, s29, 4
  v_lshlrev_b32 v2, 4, v1              ; X voffset
  v_lshrrev_b32 v10, 3, v1
  v_mul_u32_u24 v10, {WSTR}, v10
  v_and_b32 v11, 7, v1
  v_bfe_u32 v12, v1, 4, 1
  v_lshlrev_b32 v12, 1, v12
  v_xor_b32 v11, v11, v12
  s_lshl_b32 s36, s32, 7
  v_add_u32 v10, s36, v10
  v_lshl_add_u32 v3, v11, 4, v10
  v_xor_b32 v11, 4, v11
  v_lshl_add_u32 v4, v11, 4, v10
  v_add_u32 v4, {8*WSTR - 1024}, v4
  v_add_u32 v5, {16*WSTR - 2048}, v3
  v_add_u32 v6, {16*WSTR - 2048}, v4
  s_waitcnt lgkmcnt(0)
  s_mov_b32 s8, s4
  s_mov_b32 s9, s5
  s_mov_b32 s10, {WBYTES}
  s_mov_b32 s11, 0x00020000
  s_add_u32 s12, s6, s40
  s_addc_u32 s13, s7, 0
  s_mov_b32 s14, {T * 10240}
  s_mov_b32 s15, 0x00020000
""")
    for ld in range(NL):
        if ld < NL - 1:
            A(f"  s_cmp_lg_u32 s3, {4 + ld}\n  s_cbranch_scc1 {L}_ld{ld+1}")
        if ld == 0:
            groups = [("X", 0, 4, 0), ("X", 4096, 2, 4096)]
        elif ld == 1:
            groups = [("X", 6144, 4, 6144), ("W", WOFF, 2, 0)]
        else:
            groups = [("W", WOFF + 2048, 4, 16 * WSTR), ("W", WOFF + 6144, 2, 48 * WSTR)]
        steps = [10240 if g[0] == 'X' else 64 * WSTR for g in groups]
        A(f"  s_mul_i32 s24, s29, {steps[0]}\n  s_mul_i32 s25, s29, {steps[1]}\n  s_add_u32 s24, s24, {groups[0][3]}\n  s_add_u32 s25, s25, {groups[1][3]}\n  s_mov_b32 s26, 0")
        def issue_tile():
            for gi, (kind, lrel, n, _) in enumerate(groups):
                A(f"  s_add_u32 m0, s26, {lrel}")
                if gi == 0:
                    A(f"  s_add_u32 s27, s26, {SLOT}")
                else:
                    A(f"  s_cmp_ge_u32 s27, {R * SLOT}")
                for k in range(n):
                    if kind == "X":
                        A(f"  buffer_load_dwordx4 v2, s[12:15], s{24+gi} offen offset:{1024*k} {'nt' if 'x' in nt else ''} lds")
                    else:
                        A(f"  buffer_load_dwordx4 v{3+k}, s[8:11], s{24+gi} offen offset:{1024*k} {'nt' if 'w' in nt else ''} lds")
            A(f"  s_cselect_b32 s26, 0, s27")
            for gi, (kind, lrel, n, _) in enumerate(groups):
                A(f"  s_add_u32 s{24+gi}, s{24+gi}, {steps[gi]}")
            A(f"  s_add_u32 s29, s29, 1\n  s_cmp_eq_u32 s29, {T}")
            A(f"  s_cselect_b32 s29, 0, s29\n  s_cselect_b32 s24, {groups[0][3]}, s24\n  s_cselect_b32 s25, {groups[1][3]}, s25")
        A(f"  s_mov_b32 s28, {R - 1}\n{L}_ld{ld}_pro:")
        issue_tile()
        A(f"  s_sub_u32 s28, s28, 1\n  s_cmp_lg_u32 s28, 0\n  s_cbranch_scc1 {L}_ld{ld}_pro")
        A(f"  s_mov_b32 s28, {T - (R - 1)}\n{L}_ld{ld}_loop:")
        A(f"  s_waitcnt vmcnt({PER * (R - 2)})\n  s_barrier")
        issue_tile()
        A(f"  s_sub_u32 s28, s28, 1\n  s_cmp_lg_u32 s28, 0\n  s_cbranch_scc1 {L}_ld{ld}_loop")
        for k in range(R - 1):
            A(f"  s_waitcnt vmcnt({PER * (R - 2 - k)})\n  s_barrier")
        A("  s_endpgm")
        if ld < NL - 1:
            A(f"{L}_ld{ld+1}:")
    A(f"{L}_toucher:")
    if lead:
        nsh = 7 if which == 1 else 8
        xs = -(-320 // nsh)
        NG = -(-T // 4)
        g0 = (R - 1) // 4
        A(f"""
  s_mul_i32 s36, s34, {xs}
  v_add_u32 v5, s36, v1
  v_cmp_gt_u32 vcc, {xs}, v1
  s_mov_b64 s[20:21], vcc
  v_cmp_gt_u32 vcc, 0x140, v5
  s_and_b64 vcc, vcc, s[20:21]
  v_lshlrev_b32 v5, 7, v5
  v_mov_b32 v7, 0x40000000
  v_cndmask_b32 v5, v7, v5, vcc
  s_lshl_b32 s36, s39, 6
  v_add_u32 v6, s36, v1
  v_mul_u32_u24 v6, {WSTR}, v6
  s_lshl_b32 s36, s32, 7
  v_add_u32 v6, s36, v6
  s_waitcnt lgkmcnt(0)
  s_mov_b32 s8, s4
  s_mov_b32 s9, s5
  s_mov_b32 s10, {WBYTES if pfw else 0}
  s_mov_b32 s11, 0x00020000
  s_add_u32 s12, s6, s40
  s_addc_u32 s13, s7, 0
  s_mov_b32 s14, {T * 10240 if pfx else 0}
  s_mov_b32 s15, 0x00020000
  s_mov_b32 s24, {g0 * 40960}
  s_mov_b32 s25, {g0 * 256 * WSTR}
""")
        def touch():
            A(f"""
  buffer_load_dword v8, v5, s[12:15], s24 offen
  buffer_load_dword v9, v6, s[8:11], s25 offen
  s_add_u32 s24, s24, 40960
  s_add_u32 s25, s25, {256 * WSTR}
""")
        pre = min(lead, NG - g0)
        for _ in range(pre): touch()
        rem = NG - g0 - pre
        nb = 0
        if rem > 0:
            A(f"  s_mov_b32 s28, {rem}\n{L}_tloop:")
            A("  s_barrier\n  s_barrier\n  s_barrier\n  s_barrier")
            touch()
            A(f"  s_sub_u32 s28, s28, 1\n  s_cmp_lg_u32 s28, 0\n  s_cbranch_scc1 {L}_tloop")
            nb = 4 * rem
        assert nb <= T
        if T - nb:
            A(f"  s_mov_b32 s28, {T - nb}\n{L}_tloop2:\n  s_barrier\n  s_sub_u32 s28, s28, 1\n  s_cmp_lg_u32 s28, 0\n  s_cbranch_scc1 {L}_tloop2")
    A("  s_endpgm")
    def touches(with_w):
        A(f"""
  s_lshl_b32 s36, s34, 8
  v_add_u32 v5, s36, v0
  v_lshlrev_b32 v5, 7, v5
  s_add_u32 s12, s6, s40
  s_addc_u32 s13, s7, 0
  s_mov_b32 s14, {T * 10240}
  s_mov_b32 s15, 0x00020000
""")
        if with_w:
            A(f"""
  s_lshl_b32 s36, s39, 8
  v_add_u32 v6, s36, v0
  v_mul_u32_u24 v6, {WSTR}, v6
  s_lshl_b32 s36, s32, 7
  v_add_u32 v6, s36, v6
  s_mov_b32 s8, s4
  s_mov_b32 s9, s5
  s_mov_b32 s10, {WBYTES}
  s_mov_b32 s11, 0x00020000
""")
        for i in range(2):
            if pfx and not lead: A(f"  s_mov_b32 s36, {i * 2048 * 128}\n  buffer_load_dword v30, v5, s[12:15], s36 offen")
            if pfw and with_w and not lead: A(f"  s_mov_b32 s36, {i * 1024 * WSTR}\n  buffer_load_dword v31, v6, s[8:11], s36 offen")
    if which == 1:
        A(f"{L}_idle:")
        A(f"  s_cmp_ge_u32 s3, 4\n  s_cbranch_scc1 {L}_idle2\n  s_waitcnt lgkmcnt(0)")
        touches(False)
        A(f"{L}_idle2:")
        two = False
        if pf2 == 18:
            A(f"""
  s_cmp_lg_u32 s34, 7
  s_cbranch_scc1 {L}_done
  s_load_dwordx2 s[20:21], s[0:1], {KA['w2']}
  s_and_b32 s16, s2, 7
  s_lshl_b32 s16, s16, 9
  s_mul_i32 s17, s39, 448
  v_add_u32 v1, s17, v0
  v_lshrrev_b32 v2, 2, v1
  v_lshlrev_b32 v2, 12, v2
  v_and_b32 v3, 3, v1
  v_lshl_add_u32 v2, v3, 7, v2
  v_add_u32 v2, s16, v2
  s_waitcnt lgkmcnt(0)
  s_mov_b32 s8, s20
  s_mov_b32 s9, s21
  s_mov_b32 s10, {1728 * 4096}
  s_mov_b32 s11, 0x00020000
""")
            for rep in range(reps):
                for k in range(4):
                    A(f"  s_mov_b32 s36, {k * 448 * 4096}\n  buffer_load_dword v{4 + (k & 3)}, v2, s[8:11], s36 offen")
                A("  s_waitcnt vmcnt(0)")
        elif pf2:
            A(f"""
  s_cmp_lg_u32 s34, 7
  s_cbranch_scc1 {L}_done
  s_load_dwordx2 s[20:21], s[0:1], {KA['w2']}
  s_and_b32 s16, s2, 7
  s_lshr_b32 s16, s16, 1
  s_lshl_b32 s16, s16, 10
  s_mul_i32 s17, s39, {512 if lead else 448}
  v_add_u32 v1, s17, v0
  v_lshrrev_b32 v2, 3, v1
  v_lshlrev_b32 v2, 12, v2
  v_and_b32 v3, 7, v1
  v_lshl_add_u32 v2, v3, 7, v2
  v_add_u32 v2, s16, v2
  s_waitcnt lgkmcnt(0)
  s_mov_b32 s8, s20
  s_mov_b32 s9, s21
  s_mov_b32 s10, {abs(pf2) * 4096}
  s_mov_b32 s11, 0x00020000
""")
            if pf2 < 0:
                A(f"  s_and_b32 s17, s2, 1\n  s_mul_i32 s17, s17, {864 * 4096}\n  s_add_u32 s8, s8, s17\n  s_addc_u32 s9, s9, 0")
                two = (pf2 == -1728)
                pf2 = 864
                A(f"  s_mov_b32 s10, {864 * 4096}")
            rr = 256 if lead else 224
            for k in range(-(-pf2 // rr)):
                A(f"  s_mov_b32 s36, {k * rr * 4096}\n  buffer_load_dword v{4 + (k & 3)}, v2, s[8:11], s36 offen")
            if two:
                A(f"  s_waitcnt vmcnt(0)\n  s_xor_b32 s17, s17, {864 * 4096}\n  s_add_u32 s8, s20, s17\n  s_addc_u32 s9, s21, 0")
                for k in range(-(-pf2 // rr)):
                    A(f"  s_mov_b32 s36, {k * rr * 4096}\n  buffer_load_dword v{4 + (k & 3)}, v2, s[8:11], s36 offen")
        A("  s_waitcnt vmcnt(0)\n  s_endpgm")
    XF, WF, ACC, RED = 32, 72, 88, 128
    A(f"{L}_consumer:")
    A(f"""
  s_load_dwordx2 s[28:29], s[0:1], {KA['b1'] if which == 1 else KA['b2']}
  s_load_dwordx2 s[30:31], s[0:1], {KA['out']}
  s_and_b32 s38, s3, 1                 ; ks
  v_lshrrev_b32 v12, 4, v1             ; g
  s_lshl_b32 s36, s38, 2
  v_add_u32 v13, s36, v12              ; 4ks+g
  v_mul_u32_u24 v13, 1280, v13
  v_and_b32 v14, 15, v1
  v_lshl_add_u32 v2, v14, 4, v13
  v_bfe_u32 v13, v1, 2, 2              ; r
  v_lshl_add_u32 v14, v12, 3, v13      ; 8g+r
  v_lshlrev_b32 v14, 7, v14
  v_and_b32 v15, 3, v1
  v_lshl_add_u32 v14, v15, 3, v14
  s_lshl_b32 s36, s38, 12
  s_add_u32 s36, s36, {WOFF}
  v_add_u32 v14, s36, v14
  v_lshrrev_b32 v13, 1, v13
  v_and_b32 v12, 1, v12
  v_lshl_or_b32 v13, v12, 1, v13       ; p
  v_xor_b32 v15, s3, v13
  v_lshl_add_u32 v3, v15, 5, v14
  v_xor_b32 v15, 1, v15                ; partner's n
  v_lshl_add_u32 v4, v15, 5, v14
  s_waitcnt lgkmcnt(0)
""")
    touches(True)
    if which == 1:
        A(f"""
  s_mul_i32 s36, s33, {XT2}
  s_add_u32 s36, s36, {WS_G8}
  s_add_u32 s16, s6, s36
  s_addc_u32 s17, s7, 0
  s_mov_b32 s18, {216 * 1280}
  s_mov_b32 s19, 0x00020000
""")
        A.srd(20, 28, 1728 * 2)
        A(f"""
  v_lshrrev_b32 v12, 4, v1             ; g
  s_lshl_b32 s36, s32, 6
  s_lshl_b32 s37, s3, 4
  s_add_u32 s36, s36, s37              ; f0 = wtile*64 + 16w
  v_lshlrev_b32 v13, 2, v12
  v_add_u32 v13, s36, v13
  v_lshlrev_b32 v13, 1, v13            ; (f0+4g)*2
  buffer_load_dwordx2 v[16:17], v13, s[20:23], 0 offen
  s_lshr_b32 s36, s36, 3
  v_lshrrev_b32 v13, 1, v12
  v_add_u32 v13, s36, v13
  v_mul_u32_u24 v13, 1280, v13
  v_and_b32 v14, 15, v1
  v_lshl_add_u32 v13, v14, 4, v13
  v_and_b32 v12, 1, v12
  v_lshl_add_u32 v7, v12, 8, v13
  v_lshl_add_u32 v8, v12, 3, v13
""")
    else:
        A.srd(16, 30, 2048 * 1280)
        A.srd(20, 6, 2048 * 1280, WS_H)
        A.srd(44, 28, 2048 * 2)
        A(f"""
  v_and_b32 v12, 15, v1
  s_lshl_b32 s36, s32, 6
  s_lshl_b32 s37, s3, 4
  s_add_u32 s36, s36, s37
  v_add_u32 v12, s36, v12              ; s
  v_lshlrev_b32 v13, 1, v12
  buffer_load_ushort v26, v13, s[44:47], 0 offen
  v_mul_u32_u24 v12, 1280, v12
  s_mul_i32 s36, s33, 160
  v_add_u32 v12, s36, v12
  v_lshrrev_b32 v13, 4, v1             ; g
  v_lshl_add_u32 v8, v13, 3, v12
  v_and_b32 v14, 1, v13
  v_lshl_add_u32 v12, v14, 5, v12      ; +(g&1)*32
  v_lshrrev_b32 v13, 1, v13
  v_lshl_add_u32 v7, v13, 4, v12       ; +(g>>1)*16
  buffer_load_dwordx4 v[16:19], v7, s[20:23], 0 offen
  buffer_load_dwordx4 v[20:23], v7, s[20:23], 0 offen offset:64
  buffer_load_dwordx2 v[24:25], v8, s[20:23], 0 offen offset:128
""")
    for k in range(0, 40, 2):
        A(f"  v_pk_mov_b32 {vr(ACC+k,2)}, 0, 0")
    EX = ((T + 1) % R) * SLOT
    if EX + 20480 > LDS or ((T - 1) % R) in ((T + 1) % R, (T + 2) % R): EX = None
    if EX is None:
        for c in range(R - 1):
            if (T - 1) % R not in (c, c + 1): EX = c * SLOT; break
    A(f"""
  s_mov_b32 s26, {SLOT}
  s_mul_i32 s36, s3, 5120
  s_add_u32 s36, s36, {EX}
  v_lshlrev_b32 v12, 4, v1
  v_add_u32 v28, s36, v12
  s_xor_b32 s36, s3, 1
  s_mul_i32 s36, s36, 5120
  s_add_u32 s36, s36, {EX}
  v_add_u32 v29, s36, v12
""")
    stamp()
    def reads(st, first=False):
        a = (2, 3, 4) if first else (9, 10, 11)
        r = []
        for j in range(2):
            for h in range(2):
                r.append(f"  ds_read_b64_tr_b16 {vr(WF + st*8 + j*4 + h*2, 2)}, v{a[1+j]} offset:{h*512}")
        for m in range(5):
            r.append(f"  ds_read_b128 {vr(XF + st*20 + 4*m, 4)}, v{a[0]} offset:{256*m}")
        return r
    def mfmas(st):
        r = []
        for m in range(5):
            for j in range(2):
                acc = ACC + (m * 2 + j) * 4
                xa = vr(XF + st * 20 + 4 * m, 4)
                wf = vr(WF + st * 8 + j * 4, 4)
                a, b = (wf, xa) if which == 1 else (xa, wf)
                r.append(f"  v_mfma_f32_16x16x32_bf16 {vr(acc,4)}, {a}, {b}, {vr(acc,4)}")
        return r
    def addr_update():
        return [f"  v_add_u32 v9, s26, v2", f"  v_add_u32 v10, s26, v3", f"  v_add_u32 v11, s26, v4",
                f"  s_add_u32 s26, s26, {SLOT}", f"  s_cmp_ge_u32 s26, {R * SLOT}", f"  s_cselect_b32 s26, 0, s26"]
    def body(st_read, st_mfma):
        A("  s_barrier")
        rd = reads(st_read); mf = mfmas(st_mfma)
        for k in range(10):
            if k < 9: A(rd[k])
            A(mf[k])
        for x in addr_update(): A(x)
        A("  s_waitcnt lgkmcnt(0)")
    A("  s_barrier")
    stamp()
    if stamps: A("  s_waitcnt lgkmcnt(0)")
    for x in reads(0, True): A(x)
    for x in addr_update(): A(x)
    A("  s_waitcnt lgkmcnt(0)")
    npair = (T - 1) // 2
    A(f"  s_mov_b32 s27, {npair}\n{L}_cloop:")
    body(1, 0)
    body(0, 1)
    A(f"  s_sub_u32 s27, s27, 1\n  s_cmp_lg_u32 s27, 0\n  s_cbranch_scc1 {L}_cloop")
    last = 0
    if (T - 1) % 2:
        body(1, 0); last = 1
    mf = mfmas(last)
    for m in range(5): A(mf[2 * m + 1])
    for m in range(5): A(mf[2 * m])
    stamp()
    A("  s_nop 2")
    for m in range(5):
        A(f"  ds_write_b128 v28, {vr(ACC + (m*2+1)*4, 4)} offset:{m*1024}")
    A("  s_waitcnt vmcnt(0)")
    if which == 1:
        A(f"""
  v_lshlrev_b32 v18, 16, v16
  v_and_b32 v19, 0xffff0000, v16
  v_lshlrev_b32 v20, 16, v17
  v_and_b32 v21, 0xffff0000, v17
  v_mov_b32 v22, {fbits(-2*0.7978845608028654*1.4426950408889634)}
  v_mov_b32 v24, {fbits(-2*0.7978845608028654*1.4426950408889634*0.044715)}
  v_mov_b32 v26, 1.0
""")
    else:
        A("  v_lshlrev_b32 v26, 16, v26")
        t = XF
        for k in range(10):
            A(f"  v_lshlrev_b32 v{t+2*k}, 16, v{16+k}")
            A(f"  v_and_b32 v{t+2*k+1}, 0xffff0000, v{16+k}")
    A("  s_waitcnt lgkmcnt(0)")
    stamp()
    A("  s_barrier")
    stamp()
    for m in range(5):
        A(f"  ds_read_b128 {vr(RED + m*4, 4)}, v29 offset:{m*1024}")
    def rnd(a):
        A(f"  v_cvt_pk_bf16_f32 v{a+1}, v{a}, v{a+1}\n  v_cvt_pk_bf16_f32 v{a+3}, v{a+2}, v{a+3}")
        A(f"  v_lshlrev_b32 v{a}, 16, v{a+1}\n  v_and_b32 v{a+1}, 0xffff0000, v{a+1}")
        A(f"  v_lshlrev_b32 v{a+2}, 16, v{a+3}\n  v_and_b32 v{a+3}, 0xffff0000, v{a+3}")
    if which == 1:
        for m in range(5):
            acc = ACC + m * 8
            t = acc + 4
            A(f"  s_waitcnt lgkmcnt({4-m})")
            for r in (0, 2): A(f"  v_pk_add_f32 {vr(acc+r,2)}, {vr(acc+r,2)}, {vr(RED+m*4+r,2)}")
            if mimic: rnd(acc)
            for r in (0, 2): A(f"  v_pk_add_f32 {vr(acc+r,2)}, {vr(acc+r,2)}, {vr(18+r,2)}")
            if mimic: rnd(acc)
            for r in (0, 2): A(f"  v_pk_mul_f32 {vr(t+r,2)}, {vr(acc+r,2)}, {vr(acc+r,2)}")
            for r in (0, 2): A(f"  v_pk_fma_f32 {vr(t+r,2)}, {vr(t+r,2)}, v[24:25], v[22:23] op_sel_hi:[1,0,0]")
            for r in (0, 2): A(f"  v_pk_mul_f32 {vr(t+r,2)}, {vr(t+r,2)}, {vr(acc+r,2)}")
            for r in range(4): A(f"  v_exp_f32 v{t+r}, v{t+r}")
            A("  s_nop 0")
            for r in (0, 2): A(f"  v_pk_add_f32 {vr(t+r,2)}, {vr(t+r,2)}, v[26:27] op_sel_hi:[1,0]")
            for r in range(4): A(f"  v_rcp_f32 v{t+r}, v{t+r}")
            A("  s_nop 0")
            for r in (0, 2): A(f"  v_pk_mul_f32 {vr(acc+r,2)}, {vr(acc+r,2)}, {vr(t+r,2)}")
            o = XF + (m >> 1) * 4 + (m & 1) * 2
            A(f"  v_cvt_pk_bf16_f32 v{o}, v{acc}, v{acc+1}")
            A(f"  v_cvt_pk_bf16_f32 v{o+1}, v{acc+2}, v{acc+3}")
            if m & 1:
                b = XF + (m >> 1) * 4
                A(f"  s_nop 1\n  v_permlane16_swap_b32 v{b}, v{b+2}\n  v_permlane16_swap_b32 v{b+1}, v{b+3}")
                A(f"  buffer_store_dwordx4 {vr(b,4)}, v7, s[16:19], 0 offen offset:{512*(m>>1)} sc1")
            elif m == 4:
                A(f"  buffer_store_dwordx2 {vr(o,2)}, v8, s[16:19], 0 offen offset:1024 sc1")
    else:
        for m in range(5):
            acc = ACC + m * 8
            A(f"  s_waitcnt lgkmcnt({4-m})")
            for r in (0, 2): A(f"  v_pk_add_f32 {vr(acc+r,2)}, {vr(acc+r,2)}, {vr(RED+m*4+r,2)}")
            rnd(acc)
            for r in (0, 2): A(f"  v_pk_add_f32 {vr(acc+r,2)}, {vr(acc+r,2)}, v[26:27] op_sel_hi:[1,0]")
            rnd(acc)
            if m & 1:
                a0 = ACC + (m - 1) * 8
                A("  s_nop 1")
                for r in range(4):
                    A(f"  v_permlane16_swap_b32 v{a0+r}, v{acc+r}")
                t = XF + (m >> 1) * 8
                A("  s_nop 0")
                for k, src in enumerate((a0, a0 + 2, acc, acc + 2)):
                    A(f"  v_pk_add_f32 {vr(t+2*k,2)}, {vr(t+2*k,2)}, {vr(src,2)}")
                o = WF + (m >> 1) * 4
                for k in range(4):
                    A(f"  v_cvt_pk_bf16_f32 v{o+k}, v{t+2*k}, v{t+2*k+1}")
                A(f"  buffer_store_dwordx4 {vr(o,4)}, v7, s[16:19], 0 offen offset:{64*(m>>1)}")
            elif m == 4:
                t = XF + 16
                for k in range(2):
                    A(f"  v_pk_add_f32 {vr(t+2*k,2)}, {vr(t+2*k,2)}, {vr(acc+2*k,2)}")
                o = WF + 8
                for k in range(2):
                    A(f"  v_cvt_pk_bf16_f32 v{o+k}, v{t+2*k}, v{t+2*k+1}")
                A(f"  buffer_store_dwordx2 {vr(o,2)}, v8, s[16:19], 0 offen offset:128")
    if stamps:
        stamp()
        A("  s_waitcnt vmcnt(0)")
        stamp()
        A("  s_memrealtime s[72:73]")
        A("  s_waitcnt lgkmcnt(0)")
        A.srd(8, 6, 0x100000, 0x2000000 + (which - 1) * 0x10000)
        A(f"  s_lshl_b32 s36, s2, 2\n  s_add_u32 s36, s36, s3\n  s_lshl_b32 s36, s36, 6\n  v_mov_b32 v2, s36")
        for k in range(nst[0]):
            A(f"  s_sub_u32 s36, s{50+2*k}, s48\n  v_mov_b32 v3, s36\n  buffer_store_dword v3, v2, s[8:11], 0 offen offset:{4*k}")
        A(f"  s_sub_u32 s36, s72, s70\n  v_mov_b32 v3, s36\n  buffer_store_dword v3, v2, s[8:11], 0 offen offset:52")
        A(f"  v_mov_b32 v3, s70\n  buffer_store_dword v3, v2, s[8:11], 0 offen offset:60")
    A(f"{L}_done:\n  s_endpgm")
    A.kernel_desc(name, 152, 80)
```

```python
from asmlib import *
import kimg
from pf import gen_prefetch

LOG2E = 1.4426950408889634
def f32r(x):
    return struct.unpack("<f", struct.pack("<f", x))[0]

NLN = 128
def gen_k1(A, name="k1_kernel", pf="", npf=0, code=False):
    RS = 1312
    TGS = 544
    TG, TE, KFO = 0, 48 * TGS, 64 * TGS
    LDS = KFO + 768 * 4
    NWG = npf + NLN + 640
    A.add_launch(name, NWG, 256, LDS)
    A.kernel_begin(name)
    L = name
    A(f"""
  s_cmp_ge_u32 s2, {NWG}
  s_cbranch_scc1 {L}_done
  s_cmp_lt_u32 s2, {npf}
  s_cbranch_scc1 {L}_pf
  s_sub_u32 s2, s2, {npf}
  s_cmp_ge_u32 s2, {NLN}
  s_cbranch_scc1 {L}_kgen
  ; ---------------- LN1 ----------------
  s_load_dwordx2 s[4:5], s[0:1], {KA['x']}
  s_load_dwordx2 s[6:7], s[0:1], {KA['ws']}
  s_and_b32 s16, s2, 7
  s_lshl_b32 s16, s16, 4
  s_lshr_b32 s17, s2, 3
  s_add_u32 s16, s16, s17
  s_lshl_b32 s16, s16, 4               ; t0
  v_lshrrev_b32 v1, 4, v0              ; row
  v_and_b32 v2, 15, v0                 ; q
  v_add_u32 v3, s16, v1
  v_mul_u32_u24 v3, 1280, v3
  v_lshl_add_u32 v3, v2, 4, v3
  s_waitcnt lgkmcnt(0)
""")
    A.srd(8, 4, 2048 * 1280)
    for i in range(5):
        A(f"  buffer_load_dwordx4 {vr(8+4*i,4)}, v3, s[8:11], 0 offen offset:{256*i}")
    A.srd(12, 6, 640 * UT_STRIDE, WS_UT)
    A.srd(20, 6, 2048 * 8, WS_ST1)
    A(f"""
  v_mul_u32_u24 v4, {RS}, v1
  v_lshl_add_u32 v4, v2, 4, v4
  v_bfe_u32 v5, v0, 4, 1               ; th
  v_bfe_u32 v6, v0, 2, 2               ; r
  v_lshl_add_u32 v5, v5, 3, v6
  v_mul_u32_u24 v5, {RS}, v5
  v_bfe_u32 v6, v0, 5, 1               ; cgl
  v_lshl_add_u32 v5, v6, 5, v5
  v_and_b32 v7, 3, v0
  v_lshl_add_u32 v5, v7, 3, v5
  v_lshrrev_b32 v7, 6, v0              ; wave
  v_mul_u32_u24 v72, 320, v7
  v_add_u32 v5, v5, v72
  v_mul_u32_u24 v72, 160, v7
  v_lshl_add_u32 v72, v6, 4, v72
  v_add_u32 v72, v72, v2
  v_mul_u32_u24 v72, {UT_STRIDE}, v72
  v_bfe_u32 v6, v0, 4, 1
  v_lshl_add_u32 v72, v6, 4, v72
  s_lshl_b32 s17, s16, 1
  s_add_u32 s17, s17, 128
  v_add_u32 v6, s17, v72
  v_add_u32 v7, s16, v1
  v_lshlrev_b32 v7, 3, v7
""")
    X = 32
    for i in range(5):
        A(f"  s_waitcnt vmcnt({4-i})")
        for k in range(4):
            A(f"  v_lshlrev_b32 v{X+8*i+2*k}, 16, v{8+4*i+k}")
            A(f"  v_and_b32 v{X+8*i+2*k+1}, 0xffff0000, v{8+4*i+k}")
        if i == 0:
            A(f"  v_pk_add_f32 v[72:73], {vr(X,2)}, {vr(X+2,2)}")
            A(f"  v_pk_add_f32 v[74:75], {vr(X+4,2)}, {vr(X+6,2)}")
        else:
            for k in range(4):
                a = 72 + 2 * (k & 1)
                A(f"  v_pk_add_f32 {vr(a,2)}, {vr(a,2)}, {vr(X+8*i+2*k,2)}")
    def rowsum(v):
        for sh in (8, 4, 2, 1):
            A(f"  s_nop 1\n  v_add_f32 v{v}, v{v}, v{v} row_ror:{sh}")
    A(f"""
  v_pk_add_f32 v[72:73], v[72:73], v[74:75]
  s_nop 0
  v_add_f32 v72, v72, v73
""")
    rowsum(72)
    A(f"  v_mul_f32 v72, {fbits(-1.0/640)}, v72     ; -mean")
    for k in range(20):
        A(f"  v_pk_add_f32 {vr(X+2*k,2)}, {vr(X+2*k,2)}, v[72:73] op_sel_hi:[1,0]")
    A(f"  v_pk_mul_f32 v[74:75], {vr(X,2)}, {vr(X,2)}")
    A(f"  v_pk_mul_f32 v[76:77], {vr(X+2,2)}, {vr(X+2,2)}")
    for k in range(2, 20):
        a = 74 + 2 * (k & 1)
        A(f"  v_pk_fma_f32 {vr(a,2)}, {vr(X+2*k,2)}, {vr(X+2*k,2)}, {vr(a,2)}")
    A(f"""
  v_pk_add_f32 v[74:75], v[74:75], v[76:77]
  s_nop 0
  v_add_f32 v74, v74, v75
""")
    rowsum(74)
    A(f"""
  v_mul_f32 v74, {fbits(1.0/640)}, v74      ; var
  v_cvt_pk_bf16_f32 v75, v74, -v72
  v_lshlrev_b32 v74, 16, v75
  v_and_b32 v78, 0xffff0000, v75            ; m_bf
  v_add_f32 v74, {fbits(1e-5)}, v74
  v_cvt_pk_bf16_f32 v74, v74, v74
  v_lshlrev_b32 v74, 16, v74
  v_sqrt_f32 v74, v74
  s_nop 0
  v_cvt_pk_bf16_f32 v74, v74, v74
  v_lshlrev_b32 v74, 16, v74
  v_rcp_f32 v79, v74                        ; rs
  v_sub_f32 v76, -v72, v78
  v_mov_b32 v74, v79
""")
    def rnd(k):
        A(f"  v_cvt_pk_bf16_f32 v{X+2*k+1}, v{X+2*k}, v{X+2*k+1}")
        A(f"  v_lshlrev_b32 v{X+2*k}, 16, v{X+2*k+1}\n  v_and_b32 v{X+2*k+1}, 0xffff0000, v{X+2*k+1}")
    for k in range(20):
        A(f"  v_lshlrev_b32 v{X+2*k}, 16, v{8+k}\n  v_and_b32 v{X+2*k+1}, 0xffff0000, v{8+k}")
        A(f"  v_pk_add_f32 {vr(X+2*k,2)}, {vr(X+2*k,2)}, v[78:79] op_sel_hi:[1,0] neg_lo:[0,1] neg_hi:[0,1]")
    for k in range(20): rnd(k)
    for k in range(20):
        A(f"  v_pk_mul_f32 {vr(X+2*k,2)}, {vr(X+2*k,2)}, v[74:75] op_sel_hi:[1,0]")
    for k in range(20): rnd(k)
    for k in range(20):
        A(f"  v_cvt_pk_f16_f32 v{8+k}, v{X+2*k}, v{X+2*k+1}")
        if k % 4 == 3:
            A(f"  ds_write_b128 v4, {vr(8+k-3,4)} offset:{256*(k//4)}")
    A(f"""
  v_cmp_eq_u32 vcc, 0, v2
  s_and_saveexec_b64 s[24:25], vcc
  buffer_store_dwordx2 v[78:79], v7, s[20:23], 0 offen
  s_mov_b64 exec, s[24:25]
  s_waitcnt lgkmcnt(0)
  s_barrier
""")
    for k in range(5):
        for h in range(2):
            A(f"  ds_read_b64_tr_b16 {vr(32+4*k+2*h,2)}, v5 offset:{64*k + 4*h*RS}")
    for k in range(5):
        A(f"  s_waitcnt lgkmcnt({8-2*k})")
        A(f"  s_mov_b32 s17, {32*k*UT_STRIDE}")
        A(f"  buffer_store_dwordx4 {vr(32+4*k,4)}, v6, s[12:15], s17 offen")
    A("  s_endpgm")
    Lhi = f32r(LOG2E); Llo = LOG2E - Lhi
    A(f"""
{L}_kgen:
  s_sub_u32 s16, s2, {NLN}                ; channel d
  s_load_dwordx4 s[4:7], s[0:1], {KA['logA']}
  s_load_dwordx4 s[8:11], s[0:1], {KA['Cre']}
  s_load_dwordx2 s[12:13], s[0:1], {KA['logdt']}
  s_load_dwordx2 s[14:15], s[0:1], {KA['ws']}
  s_load_dwordx2 s[36:37], s[0:1], {KA['w1']}
  s_load_dwordx2 s[38:39], s[0:1], {KA['w2']}
  s_getpc_b64 s[18:19]
  s_add_u32 s18, s18, kimg_idx@rel32@lo+4
  s_addc_u32 s19, s19, kimg_idx@rel32@hi+12
  v_lshrrev_b32 v1, 6, v0
  v_lshlrev_b32 v2, 4, v0
  v_readfirstlane_b32 s3, v1              ; wave
  global_load_dwordx4 v[60:63], v2, s[18:19]
  {'v_add_u32 v2, 0x1000, v2' if kimg.NEL > 2048 else ''}
  {'global_load_dwordx4 v[76:79], v2, s[18:19]' if kimg.NEL > 2048 else ''}
  v_and_b32 v1, 127, v0                   ; mode
  s_lshl_b32 s17, s16, 8
  v_lshl_add_u32 v2, v1, 1, s17
  v_xor_b32 v3, 128, v2
  s_lshl_b32 s20, s16, 1
  s_and_b32 s21, s20, 0xfffffffc
  s_waitcnt lgkmcnt(0)
  s_load_dword s22, s[12:13], s21
  global_load_ushort v4, v2, s[4:5]       ; logA
  global_load_ushort v5, v2, s[6:7]       ; Aim
  global_load_ushort v6, v2, s[8:9]       ; Cre
  global_load_ushort v7, v2, s[10:11]     ; Cim
  global_load_ushort v8, v3, s[8:9]
  global_load_ushort v9, v3, s[10:11]
  v_lshlrev_b32 v1, 2, v1
  s_waitcnt lgkmcnt(0)
  s_and_b32 s20, s20, 2
  s_lshl_b32 s20, s20, 3
  s_lshr_b32 s22, s22, s20
  s_lshl_b32 s22, s22, 16
  s_mov_b32 s23, {fbits(Lhi)}
  s_mov_b32 s24, {fbits(Llo)}
  v_mov_b32 v10, s22
""")
    def exp_bf16(dst, src, t1, t2):
        A(f"""
  v_mul_f32 v{t1}, s23, v{src}
  v_fma_f32 v{t2}, v{src}, s23, -v{t1}
  v_fma_f32 v{t2}, v{src}, s24, v{t2}
  v_exp_f32 v{t1}, v{t1}
  v_mul_f32 v{t2}, {fbits(0.6931471805599453)}, v{t2}
  v_fma_f32 v{dst}, v{t1}, v{t2}, v{t1}
  v_cvt_pk_bf16_f32 v{dst}, v{dst}, v{dst}
  v_lshlrev_b32 v{dst}, 16, v{dst}
""")
    exp_bf16(10, 10, 11, 12)
    A(f"""
  s_waitcnt vmcnt(5)
  v_lshlrev_b32 v4, 16, v4
""")
    exp_bf16(4, 4, 11, 12)
    A(f"""
  v_mul_f32 v4, v4, v10
  v_mul_f32 v4, {fbits(-LOG2E)}, v4
  s_waitcnt vmcnt(0)
  v_lshlrev_b32 v5, 16, v5
  v_mul_f32 v5, v5, v10
  v_mul_f32 v5, {fbits(0.15915494309189535)}, v5
  v_lshlrev_b32 v6, 16, v6
  v_lshlrev_b32 v7, 16, v7
  v_lshlrev_b32 v8, 16, v8
  v_lshlrev_b32 v9, 16, v9
  v_max3_f32 v11, |v6|, |v7|, |v8|
  v_max_f32 v11, v11, |v9|
  v_mul_f32 v11, v11, v10
""")
    if pf:
        A(f"  s_and_b32 s40, s2, 7\n  s_lshr_b32 s41, s16, 3\n  s_lshl_b32 s41, s41, 8\n  v_add_u32 v64, s41, v0")
        if pf == "a": gen_prefetch(A, 1, 40, 64, 20480, 36, 44, 65, 68)
        if pf == "d": gen_prefetch(A, 1, 40, 64, 20480, 36, 44, 65, 68, half=True)
        if pf == "b":
            gen_prefetch(A, 1, 40, 64, 20480, 36, 44, 65, 68, half=True)
            gen_prefetch(A, 2, 40, 64, 20480, 38, 52, 65, 72, half=True)
        if pf == "c":
            gen_prefetch(A, 1, 40, 64, 20480, 36, 44, 65, 68)
            gen_prefetch(A, 2, 40, 64, 20480, 38, 52, 65, 72, half=True)
    for sh in (8, 4, 2, 1):
        A(f"  s_nop 1\n  v_max_f32 v11, v11, v11 row_ror:{sh}")
    A(f"""
  s_nop 0
  v_readlane_b32 s25, v11, 0
  v_readlane_b32 s26, v11, 16
  v_readlane_b32 s27, v11, 32
  v_readlane_b32 s28, v11, 48
  v_mul_f32 v6, v6, v10
  v_mul_f32 v7, v7, v10
  s_max_u32 s25, s25, s26
  s_max_u32 s27, s27, s28
  s_max_u32 s25, s25, s27
  s_lshr_b32 s25, s25, 23
  s_max_u32 s25, s25, 1
  s_min_u32 s25, s25, 253
  s_sub_u32 s26, 254, s25
  s_lshl_b32 s26, s26, 23                    ; scale
  s_add_u32 s27, s25, 1
  s_lshl_b32 s27, s27, 23
  v_mul_f32 v6, s26, v6
  v_mul_f32 v7, s26, v7                      ; c' = v[6:7]
""")
    def pw(dst, p, t):
        if p == 1:
            A(f"  v_exp_f32 v{t}, v4\n  v_fract_f32 v{t+1}, v5")
        else:
            A(f"  v_mul_f32 v{t}, {fbits(float(p))}, v4\n  v_mul_f32 v{t+1}, {fbits(float(p))}, v5\n  v_exp_f32 v{t}, v{t}\n  v_fract_f32 v{t+1}, v{t+1}")
        A(f"""
  v_cos_f32 v{dst}, v{t+1}
  v_sin_f32 v{dst+1}, v{t+1}
  s_nop 0
  v_mul_f32 v{dst}, v{dst}, v{t}
  v_mul_f32 v{dst+1}, v{dst+1}, v{t}
""")
    tmp = [0]
    def cmul(d, a, b):
        t = 52 + 2 * (tmp[0] & 3); tmp[0] += 1
        A(f"  v_pk_mul_f32 {vr(t,2)}, {vr(a,2)}, {vr(b,2)} op_sel:[1,1] op_sel_hi:[1,0]")
        A(f"  v_pk_fma_f32 {vr(d,2)}, {vr(a,2)}, {vr(b,2)}, {vr(t,2)} op_sel_hi:[0,1,1] neg_lo:[0,0,1]")
    ow = [0]
    def putG(row, a, neg=False):
        o = 48 + (ow[0] & 3); ow[0] += 1
        if neg: A(f"  v_cvt_pk_f16_f32 v{o}, -v{a}, v{a+1}")
        else:   A(f"  v_cvt_pk_f16_f32 v{o}, v{a}, -v{a+1}")
        A(f"  ds_write_b32 v1, v{o} offset:{TG + row*TGS}")
    def putE(col, a):
        o = 48 + (ow[0] & 3); ow[0] += 1
        A(f"  v_cvt_pk_f16_f32 v{o}, v{a}, v{a+1}")
        A(f"  ds_write_b32 v1, v{o} offset:{TE + col*TGS}")
    A(f"  s_cmp_ge_u32 s3, 2\n  s_cbranch_scc1 {L}_part1")
    W = lambda j: 12 + 2 * (j - 1)
    pw(W(1), 1, 44)
    pw(28, 128, 40)
    putG(0, 6)
    cmul(W(2), W(1), W(1)); cmul(30, 6, 28)
    cmul(W(3), W(2), W(1)); cmul(W(4), W(2), W(2)); cmul(32, 30, 28)
    putG(8, 30)
    cmul(W(5), W(4), W(1)); cmul(W(6), W(4), W(2)); cmul(W(7), W(4), W(3)); cmul(W(8), W(4), W(4)); cmul(34, 32, 28)
    putG(16, 32); putG(20, 34)
    o = [36, 38, 40, 42]
    k = 0
    for j in range(1, 8):
        for hb, row0 in ((6, 0), (30, 8)):
            r = o[k & 3]; k += 1
            cmul(r, hb, W(j)); putG(row0 + j, r)
    for jj, j in enumerate((2, 4, 6)):
        for hb, row0 in ((32, 16), (34, 20)):
            r = o[k & 3]; k += 1
            cmul(r, hb, W(j)); putG(row0 + jj + 1, r)
    A(f"  v_pk_add_f32 {vr(W(7),2)}, {vr(W(7),2)}, {vr(W(8),2)} neg_lo:[0,1] neg_hi:[0,1]")
    A(f"  v_pk_add_f32 {vr(W(6),2)}, {vr(W(6),2)}, {vr(W(8),2)} neg_lo:[0,1] neg_hi:[0,1]")
    cmul(36, 30, W(7)); putG(41, 36)
    cmul(38, 34, W(6)); putG(42, 38)
    A(f"  s_branch {L}_tabdone\n{L}_part1:")
    pw(12, 8, 44)
    pw(28, 128, 40)
    pw(30, 512, 44)
    pw(32, 4, 40)
    A(f"  v_mov_b32 v48, 0x3c00\n  ds_write_b32 v1, v48 offset:{TE}")
    A(f"  v_mov_b32 v49, 0\n  ds_write_b32 v1, v49 offset:{TG + kimg.ROW_ZERO*TGS}")
    putE(1, 12)
    cmul(14, 12, 12); cmul(34, 6, 30)
    putE(2, 14)
    cmul(20, 14, 12); cmul(16, 14, 14)
    putE(3, 20); putE(4, 16)
    cmul(22, 16, 12); cmul(24, 16, 14); cmul(26, 16, 20); cmul(18, 16, 16)
    putE(5, 22); putE(6, 24); putE(7, 26); putE(8, 18)
    Ereg = {1: 12, 2: 14, 3: 20, 4: 16, 5: 22, 6: 24, 7: 26}
    hcur = 34
    for a in range(4, 17):
        hn = 70 - hcur
        if a < 16: cmul(hn, hcur, 28)
        if a < 8:
            putG(24 + 2 * (a - 4), hcur)
            cmul(40, hcur, 32); putG(25 + 2 * (a - 4), 40)
        elif a < 16:
            putG(32 + (a - 8), hcur)
            if a == 8: putG(kimg.ROW_N1024, hcur, neg=True)
        else:
            putG(40, hcur)
        b = a - 4 + 1
        if 1 <= b <= 7:
            cmul(42, 18, Ereg[b]); putE(8 + b, 42)
        hcur = hn
    A(f"""
{L}_tabdone:
  v_and_b32 v2, 15, v0
  v_bfe_u32 v3, v0, 4, 2
  v_mul_u32_u24 v8, {TGS}, v2
  v_lshl_add_u32 v8, v3, 4, v8
  s_mul_i32 s20, s3, {16*TGS}
  v_add_u32 v9, s20, v8
  v_mul_u32_u24 v10, 192, v2
  v_lshl_add_u32 v10, v3, 4, v10
  s_lshl_b32 s20, s3, 6
  v_add_u32 v10, s20, v10
  s_waitcnt lgkmcnt(0)
  s_barrier
  s_cmp_ge_u32 s3, 3
  s_cbranch_scc1 {L}_nomfma
""")
    for ks in range(4):
        A(f"  ds_read_b128 {vr(12+8*ks,4)}, v9 offset:{TG + 64*ks}")
        A(f"  ds_read_b128 {vr(16+8*ks,4)}, v8 offset:{TE + 64*ks}")
    for ks in range(8):
        b = 12 + 8 * (ks & 3)
        A(f"  s_waitcnt lgkmcnt({6 if ks < 5 else 2*(7-ks)})" if ks < 4 or True else "")
        A(f"  v_mfma_f32_16x16x32_f16 v[44:47], {vr(b,4)}, {vr(b+4,4)}, {'0' if ks == 0 else 'v[44:47]'}")
        if ks < 4:
            A(f"  ds_read_b128 {vr(b,4)}, v9 offset:{TG + 64*(ks+4)}")
            A(f"  ds_read_b128 {vr(b+4,4)}, v8 offset:{TE + 64*(ks+4)}")
    A(f"""
  s_nop 7
  ds_write_b128 v10, v[44:47] offset:{KFO}
{L}_nomfma:
  s_mul_i32 s20, s16, {kimg.KIMG_STRIDE}
  s_add_u32 s28, s14, s20
  s_addc_u32 s29, s15, 0
  s_add_u32 s28, s28, {WS_KIMG}
  s_addc_u32 s29, s29, 0
  s_mov_b32 s30, {kimg.IMG_BYTES}
  s_mov_b32 s31, 0x00020000
""")
    for k in range(4):
        A(f"  v_and_b32 v{12+2*k}, 0xffff, v{60+k}")
        A(f"  v_lshrrev_b32 v{13+2*k}, 16, v{60+k}")
        if kimg.NEL > 2048:
            A(f"  v_and_b32 v{32+2*k}, 0xffff, v{76+k}")
            A(f"  v_lshrrev_b32 v{33+2*k}, 16, v{76+k}")
    A("  v_lshlrev_b32 v2, 4, v0\n  s_movk_i32 s20, 0x1000\n  s_waitcnt lgkmcnt(0)\n  s_barrier")
    for k in range(8):
        A(f"  ds_read_b32 v{20+k}, v{12+k} offset:{KFO}")
    if kimg.NEL > 2048:
        A(f"  s_cmp_ge_u32 s3, {(kimg.NEL // 8 - 256 + 63) // 64}\n  s_cbranch_scc1 {L}_one")
        for k in range(8):
            A(f"  ds_read_b32 v{40+k}, v{32+k} offset:{KFO}")
        for k in range(4):
            A(f"  s_waitcnt lgkmcnt({6-2*k})")
            A(f"  v_cvt_pk_f16_f32 v{48+k}, v{40+2*k}, v{41+2*k}")
        A("  buffer_store_dwordx4 v[48:51], v2, s[28:31], s20 offen")
        A(f"{L}_one:")
    for k in range(4):
        A(f"  s_waitcnt lgkmcnt({6-2*k})")
        A(f"  v_cvt_pk_f16_f32 v{28+k}, v{20+2*k}, v{21+2*k}")
    A(f"""
  buffer_store_dwordx4 v[28:31], v2, s[28:31], 0 offen sc1
  s_cmp_lg_u32 s3, 3
  s_cbranch_scc1 {L}_done
  s_mov_b32 s30, {kimg.IMG_BYTES + 4}
  v_mov_b32 v3, s27
  v_mov_b32 v4, {kimg.IMG_BYTES}
  s_mul_i32 s20, s16, {UT_STRIDE}
  s_add_u32 s32, s14, s20
  s_addc_u32 s33, s15, 0
  s_mov_b32 s34, 128
  s_mov_b32 s35, 0x00020000
  v_and_b32 v5, 63, v0
  v_lshlrev_b32 v5, 2, v5
  v_mov_b32 v6, 0
  buffer_store_dword v3, v4, s[28:31], 0 offen
  buffer_store_dword v6, v5, s[32:35], 0 offen
  s_endpgm
{L}_pf:
""")
    if npf:
        A(f"""
  s_load_dwordx2 s[4:5], s[0:1], {KA['w1']}
  s_load_dwordx2 s[6:7], s[0:1], {KA['w2']}
  s_and_b32 s16, s2, 7
  s_lshr_b32 s17, s2, 3
  s_lshl_b32 s17, s17, 8
  v_add_u32 v1, s17, v0
""")
        if code:
            A(f"""
  s_getpc_b64 s[20:21]
{L}_pc:
  s_add_u32 s20, s20, code_pf_begin-{L}_pc
  s_addc_u32 s21, s21, 0
  s_mov_b32 s22, code_pf_end-code_pf_begin
  s_mov_b32 s23, 0x00020000
  v_lshlrev_b32 v2, 7, v1
  buffer_load_dword v12, v2, s[20:23], 0 offen
""")
        A("  s_waitcnt lgkmcnt(0)")
        nthr = npf // 8 * 256
        if "A" in pf: gen_prefetch(A, 1, 16, 1, nthr, 4, 8, 2, 4)
        if "B" in pf: gen_prefetch(A, 2, 16, 1, nthr, 6, 24, 2, 8, half=True)
        A("  s_waitcnt vmcnt(0)")
    A(f"{L}_done:\n  s_endpgm")
    A(".p2align 8\ncode_pf_begin:")
    A.kernel_desc(name, 80, 64)
    idx = [i * 4 for i in kimg.img] + [kimg.ZERO * 4] * (4096 - kimg.NEL)
    tbl = ".p2align 4\n.type kimg_idx,@object\nkimg_idx:\n"
    for i in range(0, 4096, 16):
        tbl += "  .short " + ", ".join(str(v) for v in idx[i:i+16]) + "\n"
    tbl += ".size kimg_idx, 8192"
    A.desc.append(tbl)

if __name__ == "__main__":
    A = Asm()
    gen_k1(A)
    print(A.text())
```

```python
from asmlib import *
import kimg
from pf import gen_prefetch

def gen_k2(A, name="k2_kernel", stamps=False, pf="", PF=6, WB=2, NCH=3):
    U0 = 1024
    W9 = U0 + 4096 + 512
    W7 = W9 + 2048 + 528
    W5 = W7 + 2048 + 256
    W3 = W5 + 4096 + 272
    U2 = W3 + 4096 + 128
    WAVE = U2 + 4096
    assert WAVE % 16 == 0
    RSTG = 32 * NCH + 16
    STG = NCH * WAVE
    LDS = STG + 128 * RSTG
    PERX = -(-(-(-640 // NCH)) // 8)
    NCONV = PERX * 8
    NT = 64 * NCH
    A.add_launch(name, 256 if pf else NCONV, NT, LDS)
    A.kernel_begin(name)
    L = name
    nst = [0]
    lq = []
    def stamp():
        if stamps:
            A(f"  s_memtime s[{50+2*nst[0]}:{51+2*nst[0]}]")
            lq.append(("stamp", nst[0])); lq.append(("stamp", nst[0]))
            nst[0] += 1
    def ds(tag, txt):
        A(txt); lq.append(tag)
    def lwait(tags):
        idxs = [i for i, t in enumerate(lq) if t in tags]
        if not idxs: return
        n = len(lq) - 1 - max(idxs)
        if any(t[0] == "stamp" for t in lq): n = 0
        n = min(n, 15)
        A(f"  s_waitcnt lgkmcnt({n})")
        del lq[:len(lq) - n]
    vq = []
    def vm(tag, txt): A(txt); vq.append(tag)
    def vwait(tag):
        idxs = [i for i, t in enumerate(vq) if t == tag]
        if not idxs: return
        A(f"  s_waitcnt vmcnt({len(vq) - 1 - max(idxs)})")
        del vq[:max(idxs) + 1]
    ACC, NDF, DF = 16, 10, 48
    SRC, OO, WA, WT = 88, 120, 152, 168
    vB0, vR0, vT16, vT8, vT4, vA4, vA8, vA16, vWr, vSt = 3, 4, 6, 7, 8, 9, 10, 11, 12, 13
    AOFF = 176
    aR0, aRC, aT = 0, 36, {4: 40, 8: 72, 16: 96}
    F = kimg.fam
    A(f"""
  s_cmp_ge_u32 s2, {NCONV}
  s_cbranch_scc1 {L}_pf
  {'s_memtime s[48:49]' if stamps else ''}
  s_load_dwordx2 s[6:7], s[0:1], {KA['ws']}
  v_lshrrev_b32 v1, 6, v0
  s_and_b32 s16, s2, 7
  s_mul_i32 s16, s16, {PERX}
  v_readfirstlane_b32 s3, v1           ; wave
  s_lshr_b32 s17, s2, 3
  s_add_u32 s16, s16, s17
  s_mul_i32 s17, s16, {NCH}
  s_cmp_ge_u32 s17, 640
  s_cbranch_scc1 {L}_done
  v_and_b32 v1, 63, v0                 ; lane
  s_add_u32 s17, s17, s3               ; channel d
  s_min_u32 s17, s17, 639
  s_mul_i32 s26, s3, {WAVE}
  v_lshl_add_u32 v{vWr}, v1, 4, s26
  v_pk_mov_b32 v[48:49], 0, 0
  v_pk_mov_b32 v[50:51], 0, 0
  v_lshlrev_b32 v2, 4, v1              ; lane*16
  s_mov_b32 exec_hi, 0xf
  ds_write_b128 v{vWr}, v[48:51] offset:{U0 - 576}
  ds_write_b128 v{vWr}, v[48:51] offset:{W7 - 576}
  s_mov_b32 exec_hi, 0
  ds_write_b128 v{vWr}, v[48:51] offset:{W9 - 512}
  s_mov_b32 exec_lo, 0x1ffff
  ds_write_b128 v{vWr}, v[48:51] offset:{W5 - 272}
  ds_write_b128 v{vWr}, v[48:51] offset:{W3 - 272}
  ds_write_b128 v{vWr}, v[48:51] offset:{U2 - 272}
  s_mov_b64 exec, -1
  s_mul_i32 s18, s17, {UT_STRIDE}
  s_mul_i32 s19, s17, {kimg.KIMG_STRIDE}
  s_add_u32 s19, s19, {WS_KIMG}
  s_mov_b32 s10, {128 + 4096}
  s_mov_b32 s11, 0x00020000
  s_mov_b32 s14, {kimg.IMG_BYTES}
  s_mov_b32 s15, 0x00020000
  s_mov_b32 s20, 128
  s_mov_b32 s23, 124
  s_add_u32 m0, s26, {U0}
  v_and_b32 v14, 15, v1                ; n / b
  v_lshrrev_b32 v15, 4, v1             ; g
  v_sub_u32 v48, 15, v14               ; q = 15 - n
  v_and_b32 v49, 1, v48
  v_and_b32 v50, 14, v48
  v_mul_u32_u24 v51, {2*F['R0'][1]}, v49
  v_lshl_add_u32 v51, v50, 1, v51
  v_lshl_add_u32 v{vR0}, v15, 4, v51
  v_and_b32 v52, 1, v15                ; hb
  v_lshrrev_b32 v53, 1, v15            ; pi
  v_lshlrev_b32 v54, 4, v52            ; 16*hb
  v_mul_u32_u24 v51, {2*F['T16'][1]}, v49
  v_lshl_add_u32 v51, v50, 1, v51
  v_mul_u32_u24 v55, {2*kimg.TLEN[16]}, v53
  v_add3_u32 v{vT16}, v51, v55, v54
  v_lshlrev_b32 v51, 2, v48
  v_mul_u32_u24 v55, {2*kimg.TLEN[8]}, v53
  v_add3_u32 v{vT8}, v51, v55, v54
  v_lshlrev_b32 v51, 3, v48
  v_mul_u32_u24 v55, {2*kimg.TLEN[4]}, v53
  v_add3_u32 v{vT4}, v51, v55, v54
  s_waitcnt lgkmcnt(0)
  s_add_u32 s8, s6, s18
  s_addc_u32 s9, s7, 0
  s_add_u32 s12, s6, s19
  s_addc_u32 s13, s7, 0
""")
    for i in range(4):
        vm("U", f"  buffer_load_dwordx4 v2, s[8:11], s20 offen offset:{1024*i} lds")
    def tload(tag, areg, va, off):
        vm(tag, f"  buffer_load_dwordx4 {ar(areg,4)}, v{va}, s[12:15], 0 offen offset:{off}")
    for k in list(range(14, -1, -2)) + [16]:
        tload(("R0", k), aR0 + 2 * k, vR0, 32 * (16 - k))
    A(f"  s_add_u32 m0, s26, {U2}\n  s_load_dword s27, s[12:13], {kimg.IMG_BYTES}      ; unscale")
    tload(("RC",), aRC, vR0, 2 * kimg.RC_OFF)
    for i in range(4):
        vm("U2", f"  buffer_load_dwordx4 v2, s[8:11], s23 offen offset:{1024*i} lds")
    for P, va in ((4, vT4), (8, vT8), (16, vT16)):
        for kap in range(16 // P + 4 - 1, -1, -1):
            tload(("T", P, kap), aT[P] + 4 * kap, va, 2 * F[f"T{P}"][0] + 32 * kap)
    A(f"""
  v_lshlrev_b32 v48, 5, v14
  v_lshl_add_u32 v48, v15, 4, v48
  s_add_u32 s22, s26, {U0 - 544}
  v_add_u32 v{vB0}, s22, v48
  v_bfe_u32 v48, v1, 2, 2              ; r
  v_lshl_add_u32 v48, v52, 3, v48      ; 8hb + r
  v_and_b32 v49, 3, v1
  v_lshlrev_b32 v49, 3, v49
  v_add_u32 v49, s26, v49              ; base + 8*c4
""")
    for P, va, ae, ao in ((4, vA4, W3, U2), (8, vA8, W5, W3 - 8), (16, vA16, W9, W7 - 16)):
        A(f"""
  v_mul_u32_u24 v50, {ao - ae}, v53
  v_mul_u32_u24 v51, {2*P}, v48
  v_add3_u32 v50, v50, v51, v49
  v_add_u32 v{va}, {ae - 32*P}, v50
""")
    A(f"""
  v_mul_u32_u24 v48, {RSTG}, v14
  v_mul_u32_u24 v49, {16*NCH}, v53
  v_lshl_add_u32 v48, v52, 3, v48
  s_lshl_b32 s22, s3, 4
  s_add_u32 s22, s22, {STG}
  v_add3_u32 v{vSt}, v48, v49, s22
""")
    stamp()
    E = lambda i, j: SRC + 8 * i + 2 + j
    O = lambda i, j: OO + 8 * i + 2 + j
    W = lambda i, j: WA + 4 * i + j
    V = lambda txt: (lambda: A(txt))
    sideA, sideB, sideC = [], [], []
    for i in range(4):
        sideA.append(lambda i=i: ds(("S", i), f"  ds_read_b64 {vr(E(i,-2),2)}, v{vWr} offset:{U0 + 1024*i - 8}"))
        sideA.append(lambda i=i: ds(("S", i), f"  ds_read_b128 {vr(E(i,0),4)}, v{vWr} offset:{U0 + 1024*i}"))
        sideA.append(lambda i=i: ds(("S", i), f"  ds_read_b64 {vr(E(i,4),2)}, v{vWr} offset:{U0 + 1024*i + 16}"))
    for i in range(4):
        sideA.append(lambda i=i: lwait({("S", i)}))
        for j in range(-1, 4): sideA.append(V(f"  v_alignbit_b32 v{O(i,j)}, v{E(i,j+1)}, v{E(i,j)}, 16"))
        for j in range(4): sideA.append(V(f"  v_pk_add_f16 v{W(i,j)}, v{O(i,j-1)}, v{E(i,j)}"))
        for j in range(4): sideA.append(V(f"  v_pk_add_f16 v{W(i,j)}, v{W(i,j)}, v{O(i,j)}"))
        sideA.append(lambda i=i: ds(("w",), f"  ds_write_b128 v{vWr}, {vr(W(i,0),4)} offset:{W3 + 1024*i}"))
        if i == 0:
            sideA.append(V(f"  v_pk_add_f16 v{WT+4}, v{W(0,0)}, v{E(0,1)}"))
            sideA.append(V(f"  v_pack_b32_f16 v{WT}, v{E(0,0)}, v{W(0,0)}"))
            sideA.append(V(f"  v_pk_add_f16 v{WT+5}, v{WT+4}, v{O(0,1)}"))
            sideA.append(V(f"  v_lshlrev_b32 v{WT+2}, 16, v{E(0,0)}"))
            sideA.append(V(f"  v_pack_b32_f16 v{WT+3}, v{W(0,0)}, v{WT+4}"))
            sideA.append(V(f"  v_pack_b32_f16 v{WT+1}, v{WT+4}, v{WT+5}"))
            def neg():
                A("  s_mov_b64 exec, 1")
                ds(("w",), f"  ds_write_b64 v{vWr}, {vr(WT,2)} offset:{W9 - 8}")
                ds(("w",), f"  ds_write_b64 v{vWr}, {vr(WT+2,2)} offset:{W7 - 8}")
                ds(("w",), f"  ds_write_b32 v{vWr}, v{WT} offset:{W5 - 4}")
                ds(("w",), f"  ds_write_b32 v{vWr}, v{WT+2} offset:{W3 - 4}")
                A("  s_mov_b64 exec, -1")
            sideA.append(neg)
    sideA.append(lambda: vwait("U2"))
    for i in range(4):
        for j in range(4): sideB.append(V(f"  v_pk_add_f16 v{W(i,j)}, v{W(i,j)}, v{E(i,j-1)}"))
        for j in range(4): sideB.append(V(f"  v_pk_add_f16 v{W(i,j)}, v{W(i,j)}, v{E(i,j+1)}"))
        sideB.append(lambda i=i: ds(("w",), f"  ds_write_b128 v{vWr}, {vr(W(i,0),4)} offset:{W5 + 1024*i}"))
    for i in range(2):
        for j in (-2, 4): sideC.append(V(f"  v_alignbit_b32 v{O(i,j)}, v{E(i,j+1)}, v{E(i,j)}, 16"))
        for j in range(4): sideC.append(V(f"  v_pk_add_f16 v{W(i,j)}, v{W(i,j)}, v{O(i,j-2)}"))
        for j in range(4): sideC.append(V(f"  v_pk_add_f16 v{W(i,j)}, v{W(i,j)}, v{O(i,j+1)}"))
        sideC.append(lambda i=i: ds(("w",), f"  ds_write_b128 v{vWr}, {vr(W(i,0),4)} offset:{W7 + 1024*i}"))
        for j in range(4): sideC.append(V(f"  v_pk_add_f16 v{W(i+2,j)}, v{W(i,j)}, v{E(i,j-2)}"))
        for j in range(4): sideC.append(V(f"  v_pk_add_f16 v{W(i+2,j)}, v{W(i+2,j)}, v{E(i,j+2)}"))
        sideC.append(lambda i=i: ds(("w",), f"  ds_write_b128 v{vWr}, {vr(W(i+2,0),4)} offset:{W9 + 1024*i}"))
    items = []
    for e in list(range(-14, 113, 2)) + [16 * t - 63 for t in range(3, 8)]:
        ms = []
        if e & 1:
            ms.append(((e + 63) // 16, ar(aRC, 4), ("RC",), True))
        else:
            t = -(-e // 16); k = 16 * t - e
            if t <= 7: ms.append((t, ar(aR0 + 2 * k, 4), ("R0", k), True))
            if k == 0 and t + 1 <= 7: ms.append((t + 1, ar(aR0 + 32, 4), ("R0", 16), True))
        items.append(("u", e, ms))
    start = {}
    for P in (4, 8, 16):
        s = 16 // P
        start[P] = len(items)
        for J in range(-1, s * 7 - 8 + s + 3 + 1):
            ms = []
            for t in range(8):
                kap = J - s * t + 8
                if 0 <= kap < s + 4: ms.append((t, ar(aT[P] + 4 * kap, 4), ("T", P, kap), False))
            items.append(("w", (P, J), ms))
    def load(idx):
        kind, x, _ = items[idx]
        r = DF + 4 * (idx % NDF)
        if kind == "u":
            ds(("D", idx), f"  ds_read_b128 {vr(r,4)}, v{vB0} offset:{32*(x+16)}")
        else:
            P, J = x
            va = {4: vA4, 8: vA8, 16: vA16}[P]
            for h in range(2):
                ds(("D", idx), f"  ds_read_b64_tr_b16 {vr(r+2*h,2)}, v{va} offset:{2*P*(16*(J+1)+4*h)}")
    A("  s_waitcnt lgkmcnt(0)"); lq.clear()
    vwait("U")
    stamp()
    assert PF + WB <= NDF
    for idx in range(PF): load(idx)
    mf_before = [0]
    for it in items: mf_before.append(mf_before[-1] + len(it[2]))
    dl = {P: mf_before[start[P] - PF] for P in start}
    side = [(op, 4) for op in sideA] + [(op, 8) for op in sideB] + [(op, 16) for op in sideC]
    cum = 0; rate = 0.0
    for ops, d in ((sideA, dl[4]), (sideB, dl[8]), (sideC, dl[16])):
        cum += len(ops); rate = max(rate, cum / (d - 1))
    si = 0; nm = 0
    inited = set()
    for idx, (kind, x, ms) in enumerate(items):
        if stamps and idx == start[4]: stamp()
        nxt = idx + PF
        if nxt < len(items):
            if items[nxt][0] == "w":
                P = items[nxt][1][0]
                while si < len(side) and side[si][1] <= P: side[si][0](); si += 1
            load(nxt)
        r = DF + 4 * (idx % NDF)
        for (t, treg, ttag, toep_is_A) in ms:
            if ttag in vq:
                if ttag[0] == "T": vwait(("T", ttag[1], 0))
                else: vwait(ttag)
            if ("D", idx) in lq:
                lwait({("D", idx + k) for k in range(WB)})
            acc = vr(ACC + 4 * t, 4)
            c = acc if t in inited else "0"
            inited.add(t)
            if toep_is_A: A(f"  v_mfma_f32_16x16x32_f16 {acc}, {treg}, {vr(r,4)}, {c}")
            else:         A(f"  v_mfma_f32_16x16x32_f16 {acc}, {vr(r,4)}, {treg}, {c}")
            nm += 1
            while si < len(side) and si <= rate * nm: side[si][0](); si += 1
    stamp()
    A(f"""
  s_mul_i32 s22, s16, {16*NCH}
  s_add_u32 s22, s22, {WS_Y8}
  s_add_u32 s8, s6, s22
  s_addc_u32 s9, s7, 0
  s_mov_b32 s10, {256 * XS}
  s_mov_b32 s11, 0x00020000
""")
    if NCH == 4:
        A("  v_lshrrev_b32 v52, 2, v0\n  v_and_b32 v53, 3, v0")
    else:
        A("  v_mul_u32_u24 v52, 21846, v0\n  v_lshrrev_b32 v52, 16, v52\n  v_mul_u32_u24 v53, 3, v52\n  v_sub_u32 v53, v0, v53")
    A(f"""
  v_lshrrev_b32 v48, 1, v52
  v_mul_u32_u24 v48, {RSTG}, v48
  v_and_b32 v49, 1, v52
  v_mul_u32_u24 v49, {16*NCH}, v49
  v_lshl_add_u32 v48, v53, 4, v48
  v_add3_u32 v48, v48, v49, {0}
  v_add_u32 v48, {STG}, v48
  v_mul_u32_u24 v49, {XS}, v52
  v_lshl_add_u32 v49, v53, 4, v49
  s_mul_i32 s22, s16, {NCH}
  v_add_u32 v53, s22, v53
  v_cmp_gt_u32 vcc, 0x280, v53
  v_mov_b32 v54, 0x40000000
  v_mov_b32 v50, s27
  v_cndmask_b32 v49, v54, v49, vcc
""")
    lq.clear()
    for t in range(8):
        a = ACC + 4 * t
        for r in (0, 2): A(f"  v_pk_mul_f32 {vr(a+r,2)}, {vr(a+r,2)}, v[50:51] op_sel_hi:[1,0]")
        A(f"  v_cvt_pk_bf16_f32 v{a}, v{a}, v{a+1}\n  v_cvt_pk_bf16_f32 v{a+1}, v{a+2}, v{a+3}")
        A(f"  ds_write_b64 v{vSt}, {vr(a,2)} offset:{16*RSTG*t}")
    A("  s_waitcnt lgkmcnt(0)\n  s_barrier")
    for i in range(4):
        A(f"  ds_read_b128 {vr(56+4*i,4)}, v48 offset:{32*RSTG*i}")
    for i in range(4):
        A(f"  s_waitcnt lgkmcnt({3-i})\n  s_mov_b32 s22, {64*XS*i}")
        A(f"  buffer_store_dwordx4 {vr(56+4*i,4)}, v49, s[8:11], s22 offen")
    if stamps:
        stamp()
        A("  s_waitcnt vmcnt(0)")
        stamp()
        A("  s_waitcnt lgkmcnt(0)")
        A.srd(8, 6, 0x100000, 0x2020000)
        A(f"  s_lshl_b32 s36, s2, 3\n  s_add_u32 s36, s36, s3\n  s_lshl_b32 s36, s36, 6\n  v_mov_b32 v2, s36")
        for k in range(nst[0]):
            A(f"  s_sub_u32 s36, s{50+2*k}, s48\n  v_mov_b32 v3, s36\n  buffer_store_dword v3, v2, s[8:11], 0 offen offset:{4*k}")
    A("  s_endpgm")
    A(f"{L}_pf:")
    if pf:
        nthr = (256 - NCONV) // 8 * NT
        A(f"""
  s_cmp_ge_u32 s2, 256
  s_cbranch_scc1 {L}_done
  s_load_dwordx2 s[4:5], s[0:1], {KA['w1']}
  s_and_b32 s16, s2, 7
  s_sub_u32 s17, s2, {NCONV}
  s_lshr_b32 s17, s17, 3
  s_mul_i32 s17, s17, {NT}
  v_add_u32 v1, s17, v0
  s_xor_b32 s18, s16, 1
  s_load_dwordx2 s[6:7], s[0:1], {KA['ws']}
  s_waitcnt lgkmcnt(0)
""")
        for c in pf:
            if c == "d":
                A(f"  v_lshlrev_b32 v2, 7, v1\n  global_load_dword v4, v2, s[6:7]")
            if c == "h": gen_prefetch(A, 1, 16, 1, nthr, 4, 8, 2, 4, half=True)
            if c == "o": gen_prefetch(A, 1, 18, 1, nthr, 4, 8, 2, 4, half=True)
            if c == "x": gen_prefetch(A, 1, 16, 1, nthr, 4, 8, 2, 4)
            A("  s_waitcnt vmcnt(0)")
    A(f"{L}_done:\n  s_endpgm")
    A.kernel_desc(name, AOFF + 116, 80, AOFF)
```

```python
from asmlib import *
from pf import gen_prefetch

def gen_k3(A, name="k3_kernel", pf="", mimic=1):
    YB = 0
    HB = 10240
    SB = HB + 10 * 1152
    LDS = SB + 8 * 96
    A.add_launch(name, 256, 640, LDS)
    A.kernel_begin(name)
    L = name
    A(f"""
  s_cmp_ge_u32 s2, 256
  s_cbranch_scc1 {L}_done
  s_load_dwordx2 s[4:5], s[0:1], {KA['x']}
  s_load_dwordx2 s[6:7], s[0:1], {KA['ws']}
  s_load_dwordx2 s[28:29], s[0:1], {KA['Dsk']}
  s_load_dwordx2 s[44:45], s[0:1], {KA['w1'] if pf == '1' else KA['w2']}
  v_lshrrev_b32 v1, 6, v0
  v_and_b32 v2, 7, v0                  ; t
  v_readfirstlane_b32 s3, v1           ; wave
  v_and_b32 v1, 63, v0                 ; lane
  v_lshrrev_b32 v3, 3, v1              ; qq
  s_lshl_b32 s16, s2, 3                ; token0
  v_add_u32 v4, s16, v2                ; token
  v_lshlrev_b32 v5, 3, v4
  v_mul_u32_u24 v4, 1280, v4
  s_lshl_b32 s17, s3, 7
  v_lshl_add_u32 v6, v3, 3, s17
  v_add_u32 v4, v4, v6                 ; x/h offset
  v_lshlrev_b32 v7, 4, v0              ; tid*16
  s_mul_i32 s18, s2, {XS}
  s_lshl_b32 s19, s3, 10
  s_add_u32 m0, s19, {YB}
  s_waitcnt lgkmcnt(0)
""")
    A.srd(8, 6, 256 * XS, WS_Y8)
    A("  buffer_load_dwordx4 v7, s[8:11], s18 offen lds")
    A.srd(12, 4, 2048 * 1280)
    A("  buffer_load_dwordx2 v[16:17], v4, s[12:15], 0 offen")
    A("  buffer_load_dwordx2 v[18:19], v4, s[12:15], 0 offen offset:64")
    A.srd(20, 6, 2048 * 8, WS_ST1)
    A("  buffer_load_dwordx2 v[14:15], v5, s[20:23], 0 offen")
    A.srd(24, 28, 1280)
    A("  buffer_load_dwordx2 v[20:21], v6, s[24:27], 0 offen")
    A("  buffer_load_dwordx2 v[22:23], v6, s[24:27], 0 offen offset:64")
    A.srd(32, 6, 2048 * 1280, WS_H)
    A.srd(36, 6, 8 * XT1, WS_HN8)
    A(f'''
  v_mul_u32_u24 v64, 52429, v0
  v_lshrrev_b32 v64, 22, v64
  v_mul_u32_u24 v65, {XT1 - 1280}, v64
  v_add_u32 v31, v65, v7
  s_mul_i32 s47, s2, 1280
''')
    A(f"""
  v_lshrrev_b32 v8, 4, v1
  v_lshlrev_b32 v8, 7, v8
  v_bfe_u32 v9, v1, 1, 1
  v_lshl_add_u32 v8, v9, 6, v8
  v_bfe_u32 v9, v1, 2, 2               ; r
  v_lshl_add_u32 v8, v9, 4, v8
  v_and_b32 v10, 1, v1
  v_lshl_add_u32 v8, v10, 3, v8
  v_add_u32 v8, s19, v8
  s_mul_i32 s40, s3, 1152
  s_add_u32 s40, s40, {HB}
  v_mul_u32_u24 v10, 144, v2
  v_lshl_add_u32 v10, v3, 3, v10
  v_add_u32 v10, s40, v10
  v_mul_u32_u24 v11, 144, v9
  v_lshrrev_b32 v12, 4, v1
  v_lshl_add_u32 v11, v12, 5, v11
  v_and_b32 v12, 3, v1
  v_lshl_add_u32 v11, v12, 3, v11
  v_add_u32 v11, s40, v11
  v_mul_u32_u24 v12, 96, v2
  v_add_u32 v12, {SB}, v12
  v_lshrrev_b32 v13, 5, v1
  v_lshl_add_u32 v13, v13, 2, v12
  s_lshl_b32 s41, s3, 3
  v_add_u32 v13, s41, v13
  s_waitcnt vmcnt(5)
  ds_read_b64_tr_b16 v[24:25], v8 offset:{YB}
  ds_read_b64_tr_b16 v[26:27], v8 offset:{YB + 512}
  s_waitcnt vmcnt(2)
""")
    X, Y, U = 32, 40, 48
    for k in range(4):
        A(f"  v_lshlrev_b32 v{X+2*k}, 16, v{16+k}\n  v_and_b32 v{X+2*k+1}, 0xffff0000, v{16+k}")
    def rnd8(a, t=24):
        for k in range(4): A(f"  v_cvt_pk_bf16_f32 v{66+k}, v{a+2*k}, v{a+2*k+1}")
        for k in range(4): A(f"  v_lshlrev_b32 v{a+2*k}, 16, v{66+k}\n  v_and_b32 v{a+2*k+1}, 0xffff0000, v{66+k}")
    for k in range(4):
        A(f"  v_pk_add_f32 {vr(U+2*k,2)}, {vr(X+2*k,2)}, v[14:15] op_sel_hi:[1,0] neg_lo:[0,1] neg_hi:[0,1]")
    rnd8(U)
    for k in range(4):
        A(f"  v_pk_mul_f32 {vr(U+2*k,2)}, {vr(U+2*k,2)}, v[14:15] op_sel:[0,1] op_sel_hi:[1,1]")
    rnd8(U)
    A("  s_waitcnt vmcnt(0)")
    if pf:
        A(f"  s_and_b32 s46, s2, 7\n  s_lshr_b32 s54, s2, 3\n  s_mul_i32 s54, s54, 640\n  v_add_u32 v64, s54, v0")
        gen_prefetch(A, 1 if pf == '1' else 2, 46, 64, 20480, 44, 48, 65, 70, half=(pf == 'H'))
    D = 56
    for k in range(4):
        A(f"  v_lshlrev_b32 v{D+2*k}, 16, v{20+k}\n  v_and_b32 v{D+2*k+1}, 0xffff0000, v{20+k}")
    for k in range(4):
        A(f"  v_pk_mul_f32 {vr(U+2*k,2)}, {vr(U+2*k,2)}, {vr(D+2*k,2)}")
    rnd8(U)
    A("  s_waitcnt lgkmcnt(0)")
    for k in range(4):
        A(f"  v_lshlrev_b32 v{Y+2*k}, 16, v{24+k}\n  v_and_b32 v{Y+2*k+1}, 0xffff0000, v{24+k}")
    for k in range(4):
        A(f"  v_pk_add_f32 {vr(Y+2*k,2)}, {vr(Y+2*k,2)}, {vr(U+2*k,2)}")
    rnd8(Y)
    for k in range(4):
        A(f"  v_pk_add_f32 {vr(X+2*k,2)}, {vr(X+2*k,2)}, {vr(Y+2*k,2)}")
    for k in range(4):
        A(f"  v_cvt_pk_bf16_f32 v{16+k}, v{X+2*k}, v{X+2*k+1}")
    A("  buffer_store_dwordx2 v[16:17], v4, s[32:35], 0 offen sc1")
    A("  buffer_store_dwordx2 v[18:19], v4, s[32:35], 0 offen offset:64 sc1")
    for k in range(4):
        A(f"  v_lshlrev_b32 v{X+2*k}, 16, v{16+k}\n  v_and_b32 v{X+2*k+1}, 0xffff0000, v{16+k}")
    for k in range(4):
        A(f"  v_pk_add_f32 {vr(X+2*k,2)}, {vr(X+2*k,2)}, v[14:15] op_sel_hi:[1,0] neg_lo:[0,1] neg_hi:[0,1]")
    A(f"""
  v_pk_add_f32 v[40:41], {vr(X,2)}, {vr(X+2,2)}
  v_pk_add_f32 v[42:43], {vr(X+4,2)}, {vr(X+6,2)}
  v_pk_mul_f32 v[44:45], {vr(X,2)}, {vr(X,2)}
  v_pk_mul_f32 v[46:47], {vr(X+2,2)}, {vr(X+2,2)}
  v_pk_add_f32 v[40:41], v[40:41], v[42:43]
  v_pk_fma_f32 v[44:45], {vr(X+4,2)}, {vr(X+4,2)}, v[44:45]
  v_pk_fma_f32 v[46:47], {vr(X+6,2)}, {vr(X+6,2)}, v[46:47]
  v_add_f32 v40, v40, v41
  v_pk_add_f32 v[44:45], v[44:45], v[46:47]
  s_nop 0
  v_add_f32 v41, v44, v45
  s_nop 1
  v_permlane32_swap_b32 v40, v41
  s_nop 1
  v_add_f32 v40, v40, v41
  v_mov_b32 v41, v40
  s_nop 1
  v_permlane16_swap_b32 v40, v41
  s_nop 1
  v_add_f32 v40, v40, v41
  s_nop 1
  v_add_f32 v40, v40, v40 row_ror:8
  s_mov_b32 s42, 0xff
  s_mov_b32 s43, 0xff
  s_mov_b64 exec, s[42:43]
  ds_write_b32 v13, v40
  s_mov_b64 exec, -1
  s_waitcnt lgkmcnt(0)
  s_barrier
""")
    for k in range(5):
        A(f"  ds_read_b128 {vr(40+4*k,4)}, v12 offset:{16*k}")
    A(f"""
  s_waitcnt lgkmcnt(3)
  v_pk_add_f32 v[40:41], v[40:41], v[42:43]
  v_pk_add_f32 v[44:45], v[44:45], v[46:47]
  s_waitcnt lgkmcnt(1)
  v_pk_add_f32 v[48:49], v[48:49], v[50:51]
  v_pk_add_f32 v[52:53], v[52:53], v[54:55]
  v_pk_add_f32 v[40:41], v[40:41], v[44:45]
  s_waitcnt lgkmcnt(0)
  v_pk_add_f32 v[56:57], v[56:57], v[58:59]
  v_pk_add_f32 v[48:49], v[48:49], v[52:53]
  v_pk_add_f32 v[40:41], v[40:41], v[56:57]
  s_mov_b32 s42, {fbits(1.0/640)}
  v_pk_add_f32 v[40:41], v[40:41], v[48:49]
  s_nop 0
  v_mul_f32 v40, s42, v40
  v_mul_f32 v41, s42, v41
  v_fma_f32 v41, -v40, v40, v41             ; var2
  v_max_f32 v41, 0, v41
  v_add_f32 v42, v40, v14                   ; mean2
  v_cvt_pk_bf16_f32 v43, v41, v42
  v_lshlrev_b32 v44, 16, v43                ; v2_bf
  v_and_b32 v43, 0xffff0000, v43            ; m2_bf
  v_add_f32 v44, {fbits(1e-5)}, v44
  v_cvt_pk_bf16_f32 v44, v44, v44
  v_lshlrev_b32 v44, 16, v44
  v_sqrt_f32 v44, v44
  v_sub_f32 v45, v43, v14                   ; m2_bf - m1
  v_cvt_pk_bf16_f32 v44, v44, v44
  v_lshlrev_b32 v44, 16, v44                ; sd2
  v_rcp_f32 v44, v44                        ; r2
  v_sub_f32 v46, v40, v45
  v_mul_f32 v46, v46, v44                   ; mean3
  v_mul_f32 v47, v41, v44
  v_mul_f32 v47, v47, v44                   ; var3
  v_cvt_pk_bf16_f32 v47, v47, v46
  v_and_b32 v46, 0xffff0000, v47            ; m3_bf
  v_mov_b32 v52, v46
  v_lshlrev_b32 v47, 16, v47
  v_add_f32 v47, {fbits(1e-5)}, v47
  v_cvt_pk_bf16_f32 v47, v47, v47
  v_lshlrev_b32 v47, 16, v47
  v_sqrt_f32 v47, v47
  v_fma_f32 v46, v45, v44, v46
  v_cvt_pk_bf16_f32 v47, v47, v47
  v_lshlrev_b32 v47, 16, v47
  v_rcp_f32 v47, v47                        ; r3
  s_nop 0
  v_mul_f32 v48, v44, v47                   ; A
  v_mul_f32 v50, v46, v47                   ; -B
""")
    if not mimic:
        for k in range(4):
            A(f"  v_pk_fma_f32 {vr(X+2*k,2)}, {vr(X+2*k,2)}, v[48:49], v[50:51] op_sel_hi:[1,0,0] neg_lo:[0,0,1] neg_hi:[0,0,1]")
    else:
        for k in range(4):
            A(f"  v_lshlrev_b32 v{X+2*k}, 16, v{16+k}\n  v_and_b32 v{X+2*k+1}, 0xffff0000, v{16+k}")
        for k in range(4):
            A(f"  v_pk_add_f32 {vr(X+2*k,2)}, {vr(X+2*k,2)}, v[42:43] op_sel:[0,1] op_sel_hi:[1,1] neg_lo:[0,1] neg_hi:[0,1]")
        rnd8(X)
        for k in range(4):
            A(f"  v_pk_mul_f32 {vr(X+2*k,2)}, {vr(X+2*k,2)}, v[44:45] op_sel_hi:[1,0]")
        rnd8(X)
        for k in range(4):
            A(f"  v_pk_add_f32 {vr(X+2*k,2)}, {vr(X+2*k,2)}, v[52:53] op_sel_hi:[1,0] neg_lo:[0,1] neg_hi:[0,1]")
        rnd8(X)
        for k in range(4):
            A(f"  v_pk_mul_f32 {vr(X+2*k,2)}, {vr(X+2*k,2)}, v[46:47] op_sel:[0,1] op_sel_hi:[1,1]")
    for k in range(4):
        A(f"  v_cvt_pk_bf16_f32 v{56+k}, v{X+2*k}, v{X+2*k+1}")
    A(f"""
  ds_write_b64 v10, v[56:57]
  ds_write_b64 v10, v[58:59] offset:64
  ds_read_b64_tr_b16 v[60:61], v11
  ds_read_b64_tr_b16 v[62:63], v11 offset:{4*144}
  s_waitcnt lgkmcnt(0)
  buffer_store_dwordx4 v[60:63], v31, s[36:39], s47 offen sc1
{L}_done:
  s_endpgm
""")
    A.kernel_desc(name, 72, 64)
```

```python
import numpy as np

GROWS = [j for j in range(8)] + [128 + j for j in range(8)] \
      + [256 + j for j in (0, 2, 4, 6)] + [384 + j for j in (0, 2, 4, 6)] \
      + [512, 516, 640, 644, 768, 772, 896, 900] \
      + [1024 + 128 * a for a in range(8)] + [2048]
ROW_D255, ROW_D510, ROW_N1024, ROW_ZERO = 41, 42, 43, 44
def kf_index(row, e):
    return e * 48 + row
def idx_of_pos(v):
    for r, g in enumerate(GROWS):
        if v >= g and (v - g) % 8 == 0 and (v - g) // 8 < 16:
            if r == 40 and v != 2048: continue
            return kf_index(r, (v - g) // 8)
    raise ValueError(v)
ZERO = kf_index(ROW_ZERO, 0)
def K0(j):
    if j < 0 or j > 255: return ZERO
    if j == 255: return kf_index(ROW_D255, 15)
    return idx_of_pos(j)
def KC(j):
    return kf_index(ROW_N1024, 0) if j in (1020, 1021) else ZERO
def T(P, par, q):
    hi = 128 if (P == 16 and par == 0) else 127
    if q < 64 or q > hi: return ZERO
    v = P * q + par * (P // 2)
    if v == 510: return kf_index(ROW_D510, 15)
    return idx_of_pos(v)

fam = {}
img = []
def add(name, R, ncopy):
    cs = (len(R) + 7) // 8 * 8
    fam[name] = (len(img), cs)
    for c in range(ncopy):
        v = R[c:]
        img.extend(v + [ZERO] * (cs - len(v)))
add("R0", [K0(287 - x) for x in range(304)] + [KC(1039 - x) for x in range(48)], 2)
RC_OFF = 304
TLEN = {}
for P in (4, 8, 16):
    s = 16 // P
    Q0 = 15 * s + 128
    n = (31 * s + 64 + 1 + 7) // 8 * 8
    TLEN[P] = n
    add(f"T{P}", [T(P, 0, Q0 - x) for x in range(n)] + [T(P, 1, Q0 - x) for x in range(n)], 2 if s == 1 else 1)
NEL = len(img)
IMG_BYTES = NEL * 2
KIMG_STRIDE = (IMG_BYTES + 16 + 127) // 128 * 128
if __name__ == "__main__":
    print(fam, TLEN, NEL, IMG_BYTES, KIMG_STRIDE)
```

```python
import sys, re
src, a, M, out = sys.argv[1], int(sys.argv[2]), int(sys.argv[3]), sys.argv[4]
s = open(src).read()
lines = s.split("\n"); o = []; kid = -1
for ln in lines:
    o.append(ln)
    if ln.endswith("_kernel:") and not ln.startswith(" "):
        kid += 1
        o += ["  s_memrealtime s[92:93]", "  s_load_dwordx2 s[98:99], s[0:1], 112", "  s_cmp_lg_u32 s2, 0", f"  s_cbranch_scc1 prb_skip{kid}",
              "  s_waitcnt lgkmcnt(0)", f"  v_mov_b32 v2, {0x2200000 + 64*kid}", "  v_mov_b32 v3, s92", "  global_store_dword v2, v3, s[98:99] sc1", f"prb_skip{kid}:"]
s = "\n".join(o)
s = re.sub(r"\.amdhsa_next_free_sgpr \d+", ".amdhsa_next_free_sgpr 102", s)
n = kid + 1
k = f"""
.globl spin_kernel
.p2align 8
.type spin_kernel,@function
spin_kernel:
  s_cmp_ge_u32 s2, 1
  s_cbranch_scc1 spin_done
  s_memrealtime s[12:13]
  s_load_dwordx2 s[8:9], s[0:1], 112
  s_load_dwordx2 s[20:21], s[0:1], 104
  s_waitcnt lgkmcnt(0)
  s_add_u32 s8, s8, 0x2200000
  s_addc_u32 s9, s9, 0
  s_load_dword s10, s[8:9], {64*a}
  s_load_dword s11, s[8:9], {64*min(a+1, n-1)}
  s_waitcnt lgkmcnt(0)
  {'s_mov_b32 s11, s12' if a + 1 >= n else ''}
  s_sub_u32 s10, s11, s10
  s_min_u32 s10, s10, 5000
  s_mul_i32 s18, s10, {M}
spin_loop:
  s_memrealtime s[14:15]
  s_waitcnt lgkmcnt(0)
  s_sub_u32 s16, s14, s12
  s_cmp_lt_u32 s16, s18
  s_cbranch_scc1 spin_loop
  v_mov_b32 v2, s10
  v_mov_b32 v0, 0
  global_store_dword v0, v2, s[20:21]
spin_done:
  s_endpgm
"""
s = s.replace("code_pf_end:\n", "code_pf_end:\n" + k)
s = s.replace('.amdgcn_target', "; @launch kernel=spin_kernel grid=(1,1,1) block=(64,1,1) lds=0\n.amdgcn_target", 1)
s += """.p2align 6
.amdhsa_kernel spin_kernel
  .amdhsa_next_free_vgpr 8
  .amdhsa_next_free_sgpr 32
  .amdhsa_accum_offset 8
  .amdhsa_group_segment_fixed_size 0
  .amdhsa_kernarg_size 120
  .amdhsa_user_sgpr_count 2
  .amdhsa_user_sgpr_kernarg_segment_ptr 1
  .amdhsa_system_sgpr_workgroup_id_x 1
.end_amdhsa_kernel
"""
open(out, "w").write(s)
```

```python
from asmlib import *

def gen_gemm(A, which, R=5, name=None, stamps=False, pfx=True, pfw=True, pf2=0, stag=1, lead=0, rot=0, nt='', map18=0, reps=1, mimic=1, xpf=0, ks2=1):
    name = name or f"gemm{which}_kernel"
    if which == 1:
        WSTR, WROWS, T, XOFF, XT = 3456, 2048, 32, WS_HN8, XT1
    else:
        WSTR, WROWS, T, XOFF, XT = 4096, 1728, 27, WS_G8, XT2
    WBYTES = WROWS * WSTR
    SLOT, WOFF = 18432, 10240
    LDS = R * SLOT
    NL, PER = 3, 6
    A.add_launch(name, 256, 512 if lead else 448, LDS)
    A.kernel_begin(name)
    L = name
    nst = [0]
    def stamp():
        if stamps:
            A(f"  s_memtime s[{50+2*nst[0]}:{51+2*nst[0]}]")
            nst[0] += 1
    A(f"""
  s_cmp_ge_u32 s2, 256
  s_cbranch_scc1 {L}_done
  {'s_memtime s[48:49]' if stamps else ''}
  {'s_memrealtime s[70:71]' if stamps else ''}
  s_load_dwordx2 s[4:5], s[0:1], {KA['w1'] if which == 1 else KA['w2']}
  s_load_dwordx2 s[6:7], s[0:1], {KA['ws']}
  v_lshrrev_b32 v1, 6, v0
  s_and_b32 s32, s2, 7                 ; xcd
  s_lshr_b32 s33, s2, 3                ; j
  v_readfirstlane_b32 s3, v1
  v_and_b32 v1, 63, v0                 ; lane
  s_add_u32 s34, s33, {rot if which == 2 else 0}
  s_and_b32 s34, s34, 7                ; j&7
  s_lshr_b32 s39, s33, 3               ; j>>3 (0..3)
  s_and_b32 s35, s32, 1
  s_lshl_b32 s35, s35, 2
  s_add_u32 s33, s39, s35              ; dtile (0..7)
  s_lshr_b32 s32, s32, 1               ; quarter
  s_mul_i32 s32, s32, {7 if which == 1 else 8}
  s_add_u32 s32, s32, s34              ; wtile
  {'s_and_b32 s32, s2, 7' if (map18 and which == 2) else ''}
  {'s_lshl_b32 s32, s32, 2' if (map18 and which == 2) else ''}
  {'s_bfe_u32 s36, s2, 0x20003' if (map18 and which == 2) else ''}
  {'s_add_u32 s32, s32, s36' if (map18 and which == 2) else ''}
  {'s_lshr_b32 s33, s2, 5' if (map18 and which == 2) else ''}
  s_mul_i32 s40, s33, {XT}
  s_add_u32 s40, s40, {XOFF}
""")
    if which == 1:
        A(f"""
  s_cmp_ge_u32 s34, 7
  s_cbranch_scc1 {L}_idle
  s_cmp_ge_u32 s32, 27
  s_cbranch_scc1 {L}_idle
""")
    A(f"""
  s_cmp_lt_u32 s3, 4
  s_cbranch_scc1 {L}_consumer
  s_cmp_eq_u32 s3, 7
  s_cbranch_scc1 {L}_toucher
""")
    A(f"""
  s_lshl_b32 s29, s39, 1
  s_add_u32 s29, s29, s34
  s_and_b32 s29, s29, 7
  s_lshl_b32 s29, s29, 1
  s_and_b32 s36, s2, {1 if stag == 1 else 0}
  s_add_u32 s29, s29, s36
  s_mul_i32 s29, s29, {T if stag else 0}
  s_lshr_b32 s29, s29, 4
  v_lshlrev_b32 v2, 4, v1              ; X voffset
  v_lshrrev_b32 v10, 3, v1
  v_mul_u32_u24 v10, {WSTR}, v10
  v_and_b32 v11, 7, v1
  v_bfe_u32 v12, v1, 4, 1
  v_lshlrev_b32 v12, 1, v12
  v_xor_b32 v11, v11, v12
  s_lshl_b32 s36, s32, 7
  v_add_u32 v10, s36, v10
  v_lshl_add_u32 v3, v11, 4, v10
  v_xor_b32 v11, 4, v11
  v_lshl_add_u32 v4, v11, 4, v10
  v_add_u32 v4, {8*WSTR - 1024}, v4
  v_add_u32 v5, {16*WSTR - 2048}, v3
  v_add_u32 v6, {16*WSTR - 2048}, v4
  s_waitcnt lgkmcnt(0)
  s_mov_b32 s8, s4
  s_mov_b32 s9, s5
  s_mov_b32 s10, {WBYTES}
  s_mov_b32 s11, 0x00020000
  s_add_u32 s12, s6, s40
  s_addc_u32 s13, s7, 0
  s_mov_b32 s14, {T * 10240}
  s_mov_b32 s15, 0x00020000
""")
    for ld in range(NL):
        if ld < NL - 1:
            A(f"  s_cmp_lg_u32 s3, {4 + ld}\n  s_cbranch_scc1 {L}_ld{ld+1}")
        if ld == 0:
            groups = [("X", 0, 4, 0), ("X", 4096, 2, 4096)]
        elif ld == 1:
            groups = [("X", 6144, 4, 6144), ("W", WOFF, 2, 0)]
        else:
            groups = [("W", WOFF + 2048, 4, 16 * WSTR), ("W", WOFF + 6144, 2, 48 * WSTR)]
        steps = [10240 if g[0] == 'X' else 64 * WSTR for g in groups]
        A(f"  s_mul_i32 s24, s29, {steps[0]}\n  s_mul_i32 s25, s29, {steps[1]}\n  s_add_u32 s24, s24, {groups[0][3]}\n  s_add_u32 s25, s25, {groups[1][3]}\n  s_mov_b32 s26, 0")
        def issue_tile():
            for gi, (kind, lrel, n, _) in enumerate(groups):
                A(f"  s_add_u32 m0, s26, {lrel}")
                if gi == 0:
                    A(f"  s_add_u32 s27, s26, {SLOT}")
                else:
                    A(f"  s_cmp_ge_u32 s27, {R * SLOT}")
                for k in range(n):
                    if kind == "X":
                        A(f"  buffer_load_dwordx4 v2, s[12:15], s{24+gi} offen offset:{1024*k} {'nt' if 'x' in nt else ''} lds")
                    else:
                        A(f"  buffer_load_dwordx4 v{3+k}, s[8:11], s{24+gi} offen offset:{1024*k} {'nt' if 'w' in nt else ''} lds")
            A(f"  s_cselect_b32 s26, 0, s27")
            for gi, (kind, lrel, n, _) in enumerate(groups):
                A(f"  s_add_u32 s{24+gi}, s{24+gi}, {steps[gi]}")
            A(f"  s_add_u32 s29, s29, 1\n  s_cmp_eq_u32 s29, {T}")
            A(f"  s_cselect_b32 s29, 0, s29\n  s_cselect_b32 s24, {groups[0][3]}, s24\n  s_cselect_b32 s25, {groups[1][3]}, s25")
        A(f"  s_mov_b32 s28, {R - 1}\n{L}_ld{ld}_pro:")
        issue_tile()
        A(f"  s_sub_u32 s28, s28, 1\n  s_cmp_lg_u32 s28, 0\n  s_cbranch_scc1 {L}_ld{ld}_pro")
        A(f"  s_mov_b32 s28, {T - (R - 1)}\n{L}_ld{ld}_loop:")
        A(f"  s_waitcnt vmcnt({PER * (R - 2)})\n  s_barrier")
        issue_tile()
        A(f"  s_sub_u32 s28, s28, 1\n  s_cmp_lg_u32 s28, 0\n  s_cbranch_scc1 {L}_ld{ld}_loop")
        for k in range(R - 1):
            A(f"  s_waitcnt vmcnt({PER * (R - 2 - k)})\n  s_barrier")
        A("  s_endpgm")
        if ld < NL - 1:
            A(f"{L}_ld{ld+1}:")
    A(f"{L}_toucher:")
    if lead:
        nsh = 7 if which == 1 else 8
        xs = -(-320 // nsh)
        NG = -(-T // 4)
        g0 = (R - 1) // 4
        A(f"""
  s_mul_i32 s36, s34, {xs}
  v_add_u32 v5, s36, v1
  v_cmp_gt_u32 vcc, {xs}, v1
  s_mov_b64 s[20:21], vcc
  v_cmp_gt_u32 vcc, 0x140, v5
  s_and_b64 vcc, vcc, s[20:21]
  v_lshlrev_b32 v5, 7, v5
  v_mov_b32 v7, 0x40000000
  v_cndmask_b32 v5, v7, v5, vcc
  s_lshl_b32 s36, s39, 6
  v_add_u32 v6, s36, v1
  v_mul_u32_u24 v6, {WSTR}, v6
  s_lshl_b32 s36, s32, 7
  v_add_u32 v6, s36, v6
  s_waitcnt lgkmcnt(0)
  s_mov_b32 s8, s4
  s_mov_b32 s9, s5
  s_mov_b32 s10, {WBYTES if pfw else 0}
  s_mov_b32 s11, 0x00020000
  s_add_u32 s12, s6, s40
  s_addc_u32 s13, s7, 0
  s_mov_b32 s14, {T * 10240 if pfx else 0}
  s_mov_b32 s15, 0x00020000
  s_mov_b32 s24, {g0 * 40960}
  s_mov_b32 s25, {g0 * 256 * WSTR}
""")
        def touch():
            A(f"""
  buffer_load_dword v8, v5, s[12:15], s24 offen
  buffer_load_dword v9, v6, s[8:11], s25 offen
  s_add_u32 s24, s24, 40960
  s_add_u32 s25, s25, {256 * WSTR}
""")
        pre = min(lead, NG - g0)
        for _ in range(pre): touch()
        rem = NG - g0 - pre
        nb = 0
        if rem > 0:
            A(f"  s_mov_b32 s28, {rem}\n{L}_tloop:")
            A("  s_barrier\n  s_barrier\n  s_barrier\n  s_barrier")
            touch()
            A(f"  s_sub_u32 s28, s28, 1\n  s_cmp_lg_u32 s28, 0\n  s_cbranch_scc1 {L}_tloop")
            nb = 4 * rem
        assert nb <= T
        if T - nb:
            A(f"  s_mov_b32 s28, {T - nb}\n{L}_tloop2:\n  s_barrier\n  s_sub_u32 s28, s28, 1\n  s_cmp_lg_u32 s28, 0\n  s_cbranch_scc1 {L}_tloop2")
    A("  s_endpgm")
    def touches(with_w):
        A(f"""
  s_lshl_b32 s36, s34, 8
  v_add_u32 v5, s36, v0
  v_lshlrev_b32 v5, 7, v5
  s_add_u32 s12, s6, s40
  s_addc_u32 s13, s7, 0
  s_mov_b32 s14, {T * 10240}
  s_mov_b32 s15, 0x00020000
""")
        if with_w:
            A(f"""
  s_lshl_b32 s36, s39, 8
  v_add_u32 v6, s36, v0
  v_mul_u32_u24 v6, {WSTR}, v6
  s_lshl_b32 s36, s32, 7
  v_add_u32 v6, s36, v6
  s_mov_b32 s8, s4
  s_mov_b32 s9, s5
  s_mov_b32 s10, {WBYTES}
  s_mov_b32 s11, 0x00020000
""")
        for i in range(2):
            if pfx and not lead: A(f"  s_mov_b32 s36, {i * 2048 * 128}\n  buffer_load_dword v30, v5, s[12:15], s36 offen")
            if pfw and with_w and not lead: A(f"  s_mov_b32 s36, {i * 1024 * WSTR}\n  buffer_load_dword v31, v6, s[8:11], s36 offen")
    if which == 1:
        A(f"{L}_idle:")
        A(f"  s_cmp_ge_u32 s3, 4\n  s_cbranch_scc1 {L}_idle2\n  s_waitcnt lgkmcnt(0)")
        touches(False)
        A(f"{L}_idle2:")
        two = False
        if xpf:
            A(f"""
  s_cmp_lg_u32 s34, 7
  s_cbranch_scc1 {L}_done
  s_waitcnt lgkmcnt(0)
  s_add_u32 s12, s6, s40
  s_addc_u32 s13, s7, 0
  s_mov_b32 s14, {T * 10240}
  s_mov_b32 s15, 0x00020000
  v_lshlrev_b32 v5, 7, v0
""")
            for k in range(-(-(T - xpf) * 80 // 448)):
                A(f"  s_mov_b32 s36, {xpf * 10240 + k * 448 * 128}\n  buffer_load_dword v{8 + (k & 3)}, v5, s[12:15], s36 offen")
        if pf2 == 18:
            A(f"""
  s_cmp_lg_u32 s34, 7
  s_cbranch_scc1 {L}_done
  s_load_dwordx2 s[20:21], s[0:1], {KA['w2']}
  s_and_b32 s16, s2, 7
  s_lshl_b32 s16, s16, 9
  s_mul_i32 s17, s39, 448
  v_add_u32 v1, s17, v0
  v_lshrrev_b32 v2, 2, v1
  v_lshlrev_b32 v2, 12, v2
  v_and_b32 v3, 3, v1
  v_lshl_add_u32 v2, v3, 7, v2
  v_add_u32 v2, s16, v2
  s_waitcnt lgkmcnt(0)
  s_mov_b32 s8, s20
  s_mov_b32 s9, s21
  s_mov_b32 s10, {1728 * 4096}
  s_mov_b32 s11, 0x00020000
""")
            for rep in range(reps):
                for k in range(4):
                    A(f"  s_mov_b32 s36, {k * 448 * 4096}\n  buffer_load_dword v{4 + (k & 3)}, v2, s[8:11], s36 offen")
                A("  s_waitcnt vmcnt(0)")
        elif pf2:
            A(f"""
  s_cmp_lg_u32 s34, 7
  s_cbranch_scc1 {L}_done
  s_load_dwordx2 s[20:21], s[0:1], {KA['w2']}
  s_and_b32 s16, s2, 7
  s_lshr_b32 s16, s16, 1
  s_lshl_b32 s16, s16, 10
  s_mul_i32 s17, s39, {512 if lead else 448}
  v_add_u32 v1, s17, v0
  v_lshrrev_b32 v2, 3, v1
  v_lshlrev_b32 v2, 12, v2
  v_and_b32 v3, 7, v1
  v_lshl_add_u32 v2, v3, 7, v2
  v_add_u32 v2, s16, v2
  s_waitcnt lgkmcnt(0)
  s_mov_b32 s8, s20
  s_mov_b32 s9, s21
  s_mov_b32 s10, {abs(pf2) * 4096}
  s_mov_b32 s11, 0x00020000
""")
            if pf2 < 0:
                A(f"  s_and_b32 s17, s2, 1\n  s_mul_i32 s17, s17, {864 * 4096}\n  s_add_u32 s8, s8, s17\n  s_addc_u32 s9, s9, 0")
                two = (pf2 == -1728)
                pf2 = 864
                A(f"  s_mov_b32 s10, {864 * 4096}")
            rr = 256 if lead else 224
            for k in range(-(-pf2 // rr)):
                A(f"  s_mov_b32 s36, {k * rr * 4096}\n  buffer_load_dword v{4 + (k & 3)}, v2, s[8:11], s36 offen")
            if two:
                A(f"  s_waitcnt vmcnt(0)\n  s_xor_b32 s17, s17, {864 * 4096}\n  s_add_u32 s8, s20, s17\n  s_addc_u32 s9, s21, 0")
                for k in range(-(-pf2 // rr)):
                    A(f"  s_mov_b32 s36, {k * rr * 4096}\n  buffer_load_dword v{4 + (k & 3)}, v2, s[8:11], s36 offen")
        A("  s_waitcnt vmcnt(0)\n  s_endpgm")
    XF, WF, ACC, RED = (32, 72, 88, 128) if ks2 else (32, 112, 128, 168)
    A(f"{L}_consumer:")
    A(f"""
  s_load_dwordx2 s[28:29], s[0:1], {KA['b1'] if which == 1 else KA['b2']}
  s_load_dwordx2 s[30:31], s[0:1], {KA['out']}
  {'s_and_b32 s38, s3, 1' if ks2 else 's_mov_b32 s38, 0'}                 ; ks
  v_lshrrev_b32 v12, 4, v1             ; g
  s_lshl_b32 s36, s38, 2
  v_add_u32 v13, s36, v12              ; 4ks+g
  v_mul_u32_u24 v13, 1280, v13
  v_and_b32 v14, 15, v1
  v_lshl_add_u32 v2, v14, 4, v13
  v_bfe_u32 v13, v1, 2, 2              ; r
  v_lshl_add_u32 v14, v12, 3, v13      ; 8g+r
  v_lshlrev_b32 v14, 7, v14
  v_and_b32 v15, 3, v1
  v_lshl_add_u32 v14, v15, 3, v14
  s_lshl_b32 s36, s38, 12
  s_add_u32 s36, s36, {WOFF}
  v_add_u32 v14, s36, v14
  v_lshrrev_b32 v13, 1, v13
  v_and_b32 v12, 1, v12
  v_lshl_or_b32 v13, v12, 1, v13       ; p
  v_xor_b32 v15, s3, v13
  v_lshl_add_u32 v3, v15, 5, v14
  {'v_xor_b32 v15, 1, v15' if ks2 else 'v_add_u32 v14, 0x1000, v14'}
  v_lshl_add_u32 v4, v15, 5, v14
  s_waitcnt lgkmcnt(0)
""")
    touches(True)
    if which == 1:
        A(f"""
  s_mul_i32 s36, s33, {XT2}
  s_add_u32 s36, s36, {WS_G8}
  s_add_u32 s16, s6, s36
  s_addc_u32 s17, s7, 0
  s_mov_b32 s18, {216 * 1280}
  s_mov_b32 s19, 0x00020000
""")
        A.srd(20, 28, 1728 * 2)
        A(f"""
  v_lshrrev_b32 v12, 4, v1             ; g
  s_lshl_b32 s36, s32, 6
  s_lshl_b32 s37, s3, 4
  s_add_u32 s36, s36, s37              ; f0 = wtile*64 + 16w
  v_lshlrev_b32 v13, 2, v12
  v_add_u32 v13, s36, v13
  v_lshlrev_b32 v13, 1, v13            ; (f0+4g)*2
  buffer_load_dwordx2 v[16:17], v13, s[20:23], 0 offen
  s_lshr_b32 s36, s36, 3
  v_lshrrev_b32 v13, 1, v12
  v_add_u32 v13, s36, v13
  v_mul_u32_u24 v13, 1280, v13
  v_and_b32 v14, 15, v1
  v_lshl_add_u32 v13, v14, 4, v13
  v_and_b32 v12, 1, v12
  v_lshl_add_u32 v7, v12, 8, v13
  v_lshl_add_u32 v8, v12, 3, v13
""")
    else:
        A.srd(16, 30, 2048 * 1280)
        A.srd(20, 6, 2048 * 1280, WS_H)
        A.srd(44, 28, 2048 * 2)
        A(f"""
  v_and_b32 v12, 15, v1
  s_lshl_b32 s36, s32, 6
  s_lshl_b32 s37, s3, 4
  s_add_u32 s36, s36, s37
  v_add_u32 v12, s36, v12              ; s
  v_lshlrev_b32 v13, 1, v12
  buffer_load_ushort v26, v13, s[44:47], 0 offen
  v_mul_u32_u24 v12, 1280, v12
  s_mul_i32 s36, s33, 160
  v_add_u32 v12, s36, v12
  v_lshrrev_b32 v13, 4, v1             ; g
  v_lshl_add_u32 v8, v13, 3, v12
  v_and_b32 v14, 1, v13
  v_lshl_add_u32 v12, v14, 5, v12      ; +(g&1)*32
  v_lshrrev_b32 v13, 1, v13
  v_lshl_add_u32 v7, v13, 4, v12       ; +(g>>1)*16
  buffer_load_dwordx4 v[16:19], v7, s[20:23], 0 offen
  buffer_load_dwordx4 v[20:23], v7, s[20:23], 0 offen offset:64
  buffer_load_dwordx2 v[24:25], v8, s[20:23], 0 offen offset:128
""")
    for k in range(0, 40, 2):
        A(f"  v_pk_mov_b32 {vr(ACC+k,2)}, 0, 0")
    EX = ((T + 1) % R) * SLOT
    if EX + 20480 > LDS or ((T - 1) % R) in ((T + 1) % R, (T + 2) % R): EX = None
    if EX is None:
        for c in range(R - 1):
            if (T - 1) % R not in (c, c + 1): EX = c * SLOT; break
    A(f"""
  s_mov_b32 s26, {SLOT}
  s_mul_i32 s36, s3, 5120
  s_add_u32 s36, s36, {EX}
  v_lshlrev_b32 v12, 4, v1
  v_add_u32 v28, s36, v12
  s_xor_b32 s36, s3, 1
  s_mul_i32 s36, s36, 5120
  s_add_u32 s36, s36, {EX}
  v_add_u32 v29, s36, v12
""")
    stamp()
    NXF = 5 if ks2 else 10
    def reads(st, first=False):
        a = (2, 3, 4) if first else (9, 10, 11)
        r = []
        if ks2:
            for j in range(2):
                for h in range(2):
                    r.append(f"  ds_read_b64_tr_b16 {vr(WF + st*8 + j*4 + h*2, 2)}, v{a[1+j]} offset:{h*512}")
            for m in range(5):
                r.append(f"  ds_read_b128 {vr(XF + st*20 + 4*m, 4)}, v{a[0]} offset:{256*m}")
        else:
            for j in range(2):
                for h in range(2):
                    r.append(f"  ds_read_b64_tr_b16 {vr(WF + st*8 + j*4 + h*2, 2)}, v{a[1+j]} offset:{h*512}")
                for m in range(5):
                    r.append(f"  ds_read_b128 {vr(XF + st*40 + j*20 + 4*m, 4)}, v{a[0]} offset:{5120*j + 256*m}")
        return r
    def mfmas(st):
        r = []
        if ks2:
            for m in range(5):
                for j in range(2):
                    acc = ACC + (m * 2 + j) * 4
                    xa = vr(XF + st * 20 + 4 * m, 4)
                    wf = vr(WF + st * 8 + j * 4, 4)
                    a, b = (wf, xa) if which == 1 else (xa, wf)
                    r.append(f"  v_mfma_f32_16x16x32_bf16 {vr(acc,4)}, {a}, {b}, {vr(acc,4)}")
        else:
            for j in range(2):
                for m in range(5):
                    acc = ACC + m * 8
                    xa = vr(XF + st * 40 + j * 20 + 4 * m, 4)
                    wf = vr(WF + st * 8 + j * 4, 4)
                    a, b = (wf, xa) if which == 1 else (xa, wf)
                    r.append(f"  v_mfma_f32_16x16x32_bf16 {vr(acc,4)}, {a}, {b}, {vr(acc,4)}")
        return r
    def addr_update():
        return [f"  v_add_u32 v9, s26, v2", f"  v_add_u32 v10, s26, v3", f"  v_add_u32 v11, s26, v4",
                f"  s_add_u32 s26, s26, {SLOT}", f"  s_cmp_ge_u32 s26, {R * SLOT}", f"  s_cselect_b32 s26, 0, s26"]
    def body(st_read, st_mfma):
        A("  s_barrier")
        rd = reads(st_read); mf = mfmas(st_mfma)
        ri = 0
        for k in range(10):
            n = -(-(len(rd) - ri) // (10 - k)) if k < 9 else len(rd) - ri
            n = min(len(rd) - ri, max(n, 1 if ks2 else 2 if k < 4 else 1))
            for _ in range(n): A(rd[ri]); ri += 1
            A(mf[k])
        for x in addr_update(): A(x)
        A("  s_waitcnt lgkmcnt(0)")
    A("  s_barrier")
    stamp()
    if stamps: A("  s_waitcnt lgkmcnt(0)")
    for x in reads(0, True): A(x)
    for x in addr_update(): A(x)
    A("  s_waitcnt lgkmcnt(0)")
    npair = (T - 1) // 2
    A(f"  s_mov_b32 s27, {npair}\n{L}_cloop:")
    body(1, 0)
    body(0, 1)
    A(f"  s_sub_u32 s27, s27, 1\n  s_cmp_lg_u32 s27, 0\n  s_cbranch_scc1 {L}_cloop")
    last = 0
    if (T - 1) % 2:
        body(1, 0); last = 1
    mf = mfmas(last)
    if ks2:
        for m in range(5): A(mf[2 * m + 1])
        for m in range(5): A(mf[2 * m])
    else:
        for x in mf: A(x)
    stamp()
    if ks2:
        A("  s_nop 2")
        for m in range(5):
            A(f"  ds_write_b128 v28, {vr(ACC + (m*2+1)*4, 4)} offset:{m*1024}")
    A("  s_waitcnt vmcnt(0)")
    if which == 1:
        A(f"""
  v_lshlrev_b32 v18, 16, v16
  v_and_b32 v19, 0xffff0000, v16
  v_lshlrev_b32 v20, 16, v17
  v_and_b32 v21, 0xffff0000, v17
  v_mov_b32 v22, {fbits(-2*0.7978845608028654*1.4426950408889634)}
  v_mov_b32 v24, {fbits(-2*0.7978845608028654*1.4426950408889634*0.044715)}
  v_mov_b32 v26, 1.0
""")
    else:
        A("  v_lshlrev_b32 v26, 16, v26")
        t = XF
        for k in range(10):
            A(f"  v_lshlrev_b32 v{t+2*k}, 16, v{16+k}")
            A(f"  v_and_b32 v{t+2*k+1}, 0xffff0000, v{16+k}")
    if ks2: A("  s_waitcnt lgkmcnt(0)")
    else: A("  s_nop 3")
    stamp()
    if ks2: A("  s_barrier")
    stamp()
    if ks2:
        for m in range(5):
            A(f"  ds_read_b128 {vr(RED + m*4, 4)}, v29 offset:{m*1024}")
    def rnd(a):
        A(f"  v_cvt_pk_bf16_f32 v{a+1}, v{a}, v{a+1}\n  v_cvt_pk_bf16_f32 v{a+3}, v{a+2}, v{a+3}")
        A(f"  v_lshlrev_b32 v{a}, 16, v{a+1}\n  v_and_b32 v{a+1}, 0xffff0000, v{a+1}")
        A(f"  v_lshlrev_b32 v{a+2}, 16, v{a+3}\n  v_and_b32 v{a+3}, 0xffff0000, v{a+3}")
    if which == 1:
        for m in range(5):
            acc = ACC + m * 8
            t = acc + 4
            if ks2:
                A(f"  s_waitcnt lgkmcnt({4-m})")
                for r in (0, 2): A(f"  v_pk_add_f32 {vr(acc+r,2)}, {vr(acc+r,2)}, {vr(RED+m*4+r,2)}")
            if mimic: rnd(acc)
            for r in (0, 2): A(f"  v_pk_add_f32 {vr(acc+r,2)}, {vr(acc+r,2)}, {vr(18+r,2)}")
            if mimic: rnd(acc)
            for r in (0, 2): A(f"  v_pk_mul_f32 {vr(t+r,2)}, {vr(acc+r,2)}, {vr(acc+r,2)}")
            for r in (0, 2): A(f"  v_pk_fma_f32 {vr(t+r,2)}, {vr(t+r,2)}, v[24:25], v[22:23] op_sel_hi:[1,0,0]")
            for r in (0, 2): A(f"  v_pk_mul_f32 {vr(t+r,2)}, {vr(t+r,2)}, {vr(acc+r,2)}")
            for r in range(4): A(f"  v_exp_f32 v{t+r}, v{t+r}")
            A("  s_nop 0")
            for r in (0, 2): A(f"  v_pk_add_f32 {vr(t+r,2)}, {vr(t+r,2)}, v[26:27] op_sel_hi:[1,0]")
            for r in range(4): A(f"  v_rcp_f32 v{t+r}, v{t+r}")
            A("  s_nop 0")
            for r in (0, 2): A(f"  v_pk_mul_f32 {vr(acc+r,2)}, {vr(acc+r,2)}, {vr(t+r,2)}")
            o = XF + (m >> 1) * 4 + (m & 1) * 2
            A(f"  v_cvt_pk_bf16_f32 v{o}, v{acc}, v{acc+1}")
            A(f"  v_cvt_pk_bf16_f32 v{o+1}, v{acc+2}, v{acc+3}")
            if m & 1:
                b = XF + (m >> 1) * 4
                A(f"  s_nop 1\n  v_permlane16_swap_b32 v{b}, v{b+2}\n  v_permlane16_swap_b32 v{b+1}, v{b+3}")
                A(f"  buffer_store_dwordx4 {vr(b,4)}, v7, s[16:19], 0 offen offset:{512*(m>>1)} sc1")
            elif m == 4:
                A(f"  buffer_store_dwordx2 {vr(o,2)}, v8, s[16:19], 0 offen offset:1024 sc1")
    else:
        for m in range(5):
            acc = ACC + m * 8
            if ks2:
                A(f"  s_waitcnt lgkmcnt({4-m})")
                for r in (0, 2): A(f"  v_pk_add_f32 {vr(acc+r,2)}, {vr(acc+r,2)}, {vr(RED+m*4+r,2)}")
            rnd(acc)
            for r in (0, 2): A(f"  v_pk_add_f32 {vr(acc+r,2)}, {vr(acc+r,2)}, v[26:27] op_sel_hi:[1,0]")
            rnd(acc)
            if m & 1:
                a0 = ACC + (m - 1) * 8
                A("  s_nop 1")
                for r in range(4):
                    A(f"  v_permlane16_swap_b32 v{a0+r}, v{acc+r}")
                t = XF + (m >> 1) * 8
                A("  s_nop 0")
                for k, src in enumerate((a0, a0 + 2, acc, acc + 2)):
                    A(f"  v_pk_add_f32 {vr(t+2*k,2)}, {vr(t+2*k,2)}, {vr(src,2)}")
                o = WF + (m >> 1) * 4
                for k in range(4):
                    A(f"  v_cvt_pk_bf16_f32 v{o+k}, v{t+2*k}, v{t+2*k+1}")
                A(f"  buffer_store_dwordx4 {vr(o,4)}, v7, s[16:19], 0 offen offset:{64*(m>>1)}")
            elif m == 4:
                t = XF + 16
                for k in range(2):
                    A(f"  v_pk_add_f32 {vr(t+2*k,2)}, {vr(t+2*k,2)}, {vr(acc+2*k,2)}")
                o = WF + 8
                for k in range(2):
                    A(f"  v_cvt_pk_bf16_f32 v{o+k}, v{t+2*k}, v{t+2*k+1}")
                A(f"  buffer_store_dwordx2 {vr(o,2)}, v8, s[16:19], 0 offen offset:128")
    if stamps:
        stamp()
        A("  s_waitcnt vmcnt(0)")
        stamp()
        A("  s_memrealtime s[72:73]")
        A("  s_waitcnt lgkmcnt(0)")
        A.srd(8, 6, 0x100000, 0x2000000 + (which - 1) * 0x10000)
        A(f"  s_lshl_b32 s36, s2, 2\n  s_add_u32 s36, s36, s3\n  s_lshl_b32 s36, s36, 6\n  v_mov_b32 v2, s36")
        for k in range(nst[0]):
            A(f"  s_sub_u32 s36, s{50+2*k}, s48\n  v_mov_b32 v3, s36\n  buffer_store_dword v3, v2, s[8:11], 0 offen offset:{4*k}")
        A(f"  s_sub_u32 s36, s72, s70\n  v_mov_b32 v3, s36\n  buffer_store_dword v3, v2, s[8:11], 0 offen offset:52")
        A(f"  v_mov_b32 v3, s70\n  buffer_store_dword v3, v2, s[8:11], 0 offen offset:60")
    A(f"{L}_done:\n  s_endpgm")
    A.kernel_desc(name, 152 if ks2 else 168, 80)
```

```python
from asmlib import *
import kimg
from pf import gen_prefetch

LOG2E = 1.4426950408889634
def f32r(x):
    return struct.unpack("<f", struct.pack("<f", x))[0]

NLN = 128
def gen_k1(A, name="k1_kernel", pf="", npf=0, code=False, stamps=False, nend=0, pend=''):
    RS = 1312
    TGS = 544
    TG, TE, KFO = 0, 48 * TGS, 64 * TGS
    LDS = KFO + 768 * 4
    NWG = npf + NLN + 640 + nend
    A.add_launch(name, NWG, 256, LDS)
    A.kernel_begin(name)
    L = name
    A(f"""
  s_cmp_ge_u32 s2, {NWG}
  s_cbranch_scc1 {L}_done
  s_cmp_lt_u32 s2, {npf}
  s_cbranch_scc1 {L}_pf
  s_cmp_ge_u32 s2, {NWG - nend}
  s_cbranch_scc1 {L}_pfe
  s_sub_u32 s2, s2, {npf}
  s_cmp_ge_u32 s2, {NLN}
  s_cbranch_scc1 {L}_kgen
  ; ---------------- LN1 ----------------
  s_load_dwordx2 s[4:5], s[0:1], {KA['x']}
  s_load_dwordx2 s[6:7], s[0:1], {KA['ws']}
  s_and_b32 s16, s2, 7
  s_lshl_b32 s16, s16, 4
  s_lshr_b32 s17, s2, 3
  s_add_u32 s16, s16, s17
  s_lshl_b32 s16, s16, 4               ; t0
  v_lshrrev_b32 v1, 4, v0              ; row
  v_and_b32 v2, 15, v0                 ; q
  v_add_u32 v3, s16, v1
  v_mul_u32_u24 v3, 1280, v3
  v_lshl_add_u32 v3, v2, 4, v3
  s_waitcnt lgkmcnt(0)
""")
    A.srd(8, 4, 2048 * 1280)
    for i in range(5):
        A(f"  buffer_load_dwordx4 {vr(8+4*i,4)}, v3, s[8:11], 0 offen offset:{256*i}")
    A.srd(12, 6, 640 * UT_STRIDE, WS_UT)
    A.srd(20, 6, 2048 * 8, WS_ST1)
    A(f"""
  v_mul_u32_u24 v4, {RS}, v1
  v_lshl_add_u32 v4, v2, 4, v4
  v_bfe_u32 v5, v0, 4, 1               ; th
  v_bfe_u32 v6, v0, 2, 2               ; r
  v_lshl_add_u32 v5, v5, 3, v6
  v_mul_u32_u24 v5, {RS}, v5
  v_bfe_u32 v6, v0, 5, 1               ; cgl
  v_lshl_add_u32 v5, v6, 5, v5
  v_and_b32 v7, 3, v0
  v_lshl_add_u32 v5, v7, 3, v5
  v_lshrrev_b32 v7, 6, v0              ; wave
  v_mul_u32_u24 v72, 320, v7
  v_add_u32 v5, v5, v72
  v_mul_u32_u24 v72, 160, v7
  v_lshl_add_u32 v72, v6, 4, v72
  v_add_u32 v72, v72, v2
  v_mul_u32_u24 v72, {UT_STRIDE}, v72
  v_bfe_u32 v6, v0, 4, 1
  v_lshl_add_u32 v72, v6, 4, v72
  s_lshl_b32 s17, s16, 1
  s_add_u32 s17, s17, 128
  v_add_u32 v6, s17, v72
  v_add_u32 v7, s16, v1
  v_lshlrev_b32 v7, 3, v7
""")
    X = 32
    for i in range(5):
        A(f"  s_waitcnt vmcnt({4-i})")
        for k in range(4):
            A(f"  v_lshlrev_b32 v{X+8*i+2*k}, 16, v{8+4*i+k}")
            A(f"  v_and_b32 v{X+8*i+2*k+1}, 0xffff0000, v{8+4*i+k}")
        if i == 0:
            A(f"  v_pk_add_f32 v[72:73], {vr(X,2)}, {vr(X+2,2)}")
            A(f"  v_pk_add_f32 v[74:75], {vr(X+4,2)}, {vr(X+6,2)}")
        else:
            for k in range(4):
                a = 72 + 2 * (k & 1)
                A(f"  v_pk_add_f32 {vr(a,2)}, {vr(a,2)}, {vr(X+8*i+2*k,2)}")
    def rowsum(v):
        for sh in (8, 4, 2, 1):
            A(f"  s_nop 1\n  v_add_f32 v{v}, v{v}, v{v} row_ror:{sh}")
    A(f"""
  v_pk_add_f32 v[72:73], v[72:73], v[74:75]
  s_nop 0
  v_add_f32 v72, v72, v73
""")
    rowsum(72)
    A(f"  v_mul_f32 v72, {fbits(-1.0/640)}, v72     ; -mean")
    for k in range(20):
        A(f"  v_pk_add_f32 {vr(X+2*k,2)}, {vr(X+2*k,2)}, v[72:73] op_sel_hi:[1,0]")
    A(f"  v_pk_mul_f32 v[74:75], {vr(X,2)}, {vr(X,2)}")
    A(f"  v_pk_mul_f32 v[76:77], {vr(X+2,2)}, {vr(X+2,2)}")
    for k in range(2, 20):
        a = 74 + 2 * (k & 1)
        A(f"  v_pk_fma_f32 {vr(a,2)}, {vr(X+2*k,2)}, {vr(X+2*k,2)}, {vr(a,2)}")
    A(f"""
  v_pk_add_f32 v[74:75], v[74:75], v[76:77]
  s_nop 0
  v_add_f32 v74, v74, v75
""")
    rowsum(74)
    A(f"""
  v_mul_f32 v74, {fbits(1.0/640)}, v74      ; var
  v_cvt_pk_bf16_f32 v75, v74, -v72
  v_lshlrev_b32 v74, 16, v75
  v_and_b32 v78, 0xffff0000, v75            ; m_bf
  v_add_f32 v74, {fbits(1e-5)}, v74
  v_cvt_pk_bf16_f32 v74, v74, v74
  v_lshlrev_b32 v74, 16, v74
  v_sqrt_f32 v74, v74
  s_nop 0
  v_cvt_pk_bf16_f32 v74, v74, v74
  v_lshlrev_b32 v74, 16, v74
  v_rcp_f32 v79, v74                        ; rs
  v_sub_f32 v76, -v72, v78
  v_mov_b32 v74, v79
""")
    def rnd(k):
        A(f"  v_cvt_pk_bf16_f32 v{X+2*k+1}, v{X+2*k}, v{X+2*k+1}")
        A(f"  v_lshlrev_b32 v{X+2*k}, 16, v{X+2*k+1}\n  v_and_b32 v{X+2*k+1}, 0xffff0000, v{X+2*k+1}")
    for k in range(20):
        A(f"  v_lshlrev_b32 v{X+2*k}, 16, v{8+k}\n  v_and_b32 v{X+2*k+1}, 0xffff0000, v{8+k}")
        A(f"  v_pk_add_f32 {vr(X+2*k,2)}, {vr(X+2*k,2)}, v[78:79] op_sel_hi:[1,0] neg_lo:[0,1] neg_hi:[0,1]")
    for k in range(20): rnd(k)
    for k in range(20):
        A(f"  v_pk_mul_f32 {vr(X+2*k,2)}, {vr(X+2*k,2)}, v[74:75] op_sel_hi:[1,0]")
    for k in range(20): rnd(k)
    for k in range(20):
        A(f"  v_cvt_pk_f16_f32 v{8+k}, v{X+2*k}, v{X+2*k+1}")
        if k % 4 == 3:
            A(f"  ds_write_b128 v4, {vr(8+k-3,4)} offset:{256*(k//4)}")
    A(f"""
  v_cmp_eq_u32 vcc, 0, v2
  s_and_saveexec_b64 s[24:25], vcc
  buffer_store_dwordx2 v[78:79], v7, s[20:23], 0 offen
  s_mov_b64 exec, s[24:25]
  s_waitcnt lgkmcnt(0)
  s_barrier
""")
    for k in range(5):
        for h in range(2):
            A(f"  ds_read_b64_tr_b16 {vr(32+4*k+2*h,2)}, v5 offset:{64*k + 4*h*RS}")
    for k in range(5):
        A(f"  s_waitcnt lgkmcnt({8-2*k})")
        A(f"  s_mov_b32 s17, {32*k*UT_STRIDE}")
        A(f"  buffer_store_dwordx4 {vr(32+4*k,4)}, v6, s[12:15], s17 offen")
    A("  s_endpgm")
    Lhi = f32r(LOG2E); Llo = LOG2E - Lhi
    A(f"""
{L}_kgen:
  {'s_memtime s[60:61]' if stamps else ''}
  s_sub_u32 s16, s2, {NLN}                ; channel d
  s_load_dwordx4 s[4:7], s[0:1], {KA['logA']}
  s_load_dwordx4 s[8:11], s[0:1], {KA['Cre']}
  s_load_dwordx2 s[12:13], s[0:1], {KA['logdt']}
  s_load_dwordx2 s[14:15], s[0:1], {KA['ws']}
  s_load_dwordx2 s[36:37], s[0:1], {KA['w1']}
  s_load_dwordx2 s[38:39], s[0:1], {KA['w2']}
  s_getpc_b64 s[18:19]
  s_add_u32 s18, s18, kimg_idx@rel32@lo+4
  s_addc_u32 s19, s19, kimg_idx@rel32@hi+12
  v_lshrrev_b32 v1, 6, v0
  v_lshlrev_b32 v2, 4, v0
  v_readfirstlane_b32 s3, v1              ; wave
  global_load_dwordx4 v[60:63], v2, s[18:19]
  {'v_add_u32 v2, 0x1000, v2' if kimg.NEL > 2048 else ''}
  {'global_load_dwordx4 v[76:79], v2, s[18:19]' if kimg.NEL > 2048 else ''}
  v_and_b32 v1, 127, v0                   ; mode
  s_lshl_b32 s17, s16, 8
  v_lshl_add_u32 v2, v1, 1, s17
  v_xor_b32 v3, 128, v2
  s_lshl_b32 s20, s16, 1
  s_and_b32 s21, s20, 0xfffffffc
  s_waitcnt lgkmcnt(0)
  {'s_memtime s[62:63]' if stamps else ''}
  s_load_dword s22, s[12:13], s21
  global_load_ushort v4, v2, s[4:5]       ; logA
  global_load_ushort v5, v2, s[6:7]       ; Aim
  global_load_ushort v6, v2, s[8:9]       ; Cre
  global_load_ushort v7, v2, s[10:11]     ; Cim
  global_load_ushort v8, v3, s[8:9]
  global_load_ushort v9, v3, s[10:11]
  v_lshlrev_b32 v1, 2, v1
  s_waitcnt lgkmcnt(0)
  s_and_b32 s20, s20, 2
  s_lshl_b32 s20, s20, 3
  s_lshr_b32 s22, s22, s20
  s_lshl_b32 s22, s22, 16
  s_mov_b32 s23, {fbits(Lhi)}
  s_mov_b32 s24, {fbits(Llo)}
  v_mov_b32 v10, s22
""")
    def exp_bf16(dst, src, t1, t2):
        A(f"""
  v_mul_f32 v{t1}, s23, v{src}
  v_fma_f32 v{t2}, v{src}, s23, -v{t1}
  v_fma_f32 v{t2}, v{src}, s24, v{t2}
  v_exp_f32 v{t1}, v{t1}
  v_mul_f32 v{t2}, {fbits(0.6931471805599453)}, v{t2}
  v_fma_f32 v{dst}, v{t1}, v{t2}, v{t1}
  v_cvt_pk_bf16_f32 v{dst}, v{dst}, v{dst}
  v_lshlrev_b32 v{dst}, 16, v{dst}
""")
    exp_bf16(10, 10, 11, 12)
    A(f"""
  s_waitcnt vmcnt(5)
  v_lshlrev_b32 v4, 16, v4
""")
    exp_bf16(4, 4, 11, 12)
    A(f"""
  v_mul_f32 v4, v4, v10
  v_mul_f32 v4, {fbits(-LOG2E)}, v4
  s_waitcnt vmcnt(0)
  {'s_memtime s[64:65]' if stamps else ''}
  v_lshlrev_b32 v5, 16, v5
  v_mul_f32 v5, v5, v10
  v_mul_f32 v5, {fbits(0.15915494309189535)}, v5
  v_lshlrev_b32 v6, 16, v6
  v_lshlrev_b32 v7, 16, v7
  v_lshlrev_b32 v8, 16, v8
  v_lshlrev_b32 v9, 16, v9
  v_max3_f32 v11, |v6|, |v7|, |v8|
  v_max_f32 v11, v11, |v9|
  v_mul_f32 v11, v11, v10
""")
    if pf:
        A(f"  s_and_b32 s40, s2, 7\n  s_lshr_b32 s41, s16, 3\n  s_lshl_b32 s41, s41, 8\n  v_add_u32 v64, s41, v0")
        if pf == "a": gen_prefetch(A, 1, 40, 64, 20480, 36, 44, 65, 68)
        if pf == "d": gen_prefetch(A, 1, 40, 64, 20480, 36, 44, 65, 68, half=True)
        if pf == "b":
            gen_prefetch(A, 1, 40, 64, 20480, 36, 44, 65, 68, half=True)
            gen_prefetch(A, 2, 40, 64, 20480, 38, 52, 65, 72, half=True)
        if pf == "c":
            gen_prefetch(A, 1, 40, 64, 20480, 36, 44, 65, 68)
            gen_prefetch(A, 2, 40, 64, 20480, 38, 52, 65, 72, half=True)
    for sh in (8, 4, 2, 1):
        A(f"  s_nop 1\n  v_max_f32 v11, v11, v11 row_ror:{sh}")
    A(f"""
  s_nop 0
  v_readlane_b32 s25, v11, 0
  v_readlane_b32 s26, v11, 16
  v_readlane_b32 s27, v11, 32
  v_readlane_b32 s28, v11, 48
  v_mul_f32 v6, v6, v10
  v_mul_f32 v7, v7, v10
  s_max_u32 s25, s25, s26
  s_max_u32 s27, s27, s28
  s_max_u32 s25, s25, s27
  s_lshr_b32 s25, s25, 23
  s_max_u32 s25, s25, 1
  s_min_u32 s25, s25, 253
  s_sub_u32 s26, 254, s25
  s_lshl_b32 s26, s26, 23                    ; scale
  s_add_u32 s27, s25, 1
  s_lshl_b32 s27, s27, 23
  v_mul_f32 v6, s26, v6
  v_mul_f32 v7, s26, v7                      ; c' = v[6:7]
""")
    def pw(dst, p, t):
        if p == 1:
            A(f"  v_exp_f32 v{t}, v4\n  v_fract_f32 v{t+1}, v5")
        else:
            A(f"  v_mul_f32 v{t}, {fbits(float(p))}, v4\n  v_mul_f32 v{t+1}, {fbits(float(p))}, v5\n  v_exp_f32 v{t}, v{t}\n  v_fract_f32 v{t+1}, v{t+1}")
        A(f"""
  v_cos_f32 v{dst}, v{t+1}
  v_sin_f32 v{dst+1}, v{t+1}
  s_nop 0
  v_mul_f32 v{dst}, v{dst}, v{t}
  v_mul_f32 v{dst+1}, v{dst+1}, v{t}
""")
    tmp = [0]
    def cmul(d, a, b):
        t = 52 + 2 * (tmp[0] & 3); tmp[0] += 1
        A(f"  v_pk_mul_f32 {vr(t,2)}, {vr(a,2)}, {vr(b,2)} op_sel:[1,1] op_sel_hi:[1,0]")
        A(f"  v_pk_fma_f32 {vr(d,2)}, {vr(a,2)}, {vr(b,2)}, {vr(t,2)} op_sel_hi:[0,1,1] neg_lo:[0,0,1]")
    ow = [0]
    def putG(row, a, neg=False):
        o = 48 + (ow[0] & 3); ow[0] += 1
        if neg: A(f"  v_cvt_pk_f16_f32 v{o}, -v{a}, v{a+1}")
        else:   A(f"  v_cvt_pk_f16_f32 v{o}, v{a}, -v{a+1}")
        A(f"  ds_write_b32 v1, v{o} offset:{TG + row*TGS}")
    def putE(col, a):
        o = 48 + (ow[0] & 3); ow[0] += 1
        A(f"  v_cvt_pk_f16_f32 v{o}, v{a}, v{a+1}")
        A(f"  ds_write_b32 v1, v{o} offset:{TE + col*TGS}")
    A(f"  s_cmp_ge_u32 s3, 2\n  s_cbranch_scc1 {L}_part1")
    W = lambda j: 12 + 2 * (j - 1)
    pw(W(1), 1, 44)
    pw(28, 128, 40)
    putG(0, 6)
    cmul(W(2), W(1), W(1)); cmul(30, 6, 28)
    cmul(W(3), W(2), W(1)); cmul(W(4), W(2), W(2)); cmul(32, 30, 28)
    putG(8, 30)
    cmul(W(5), W(4), W(1)); cmul(W(6), W(4), W(2)); cmul(W(7), W(4), W(3)); cmul(W(8), W(4), W(4)); cmul(34, 32, 28)
    putG(16, 32); putG(20, 34)
    o = [36, 38, 40, 42]
    k = 0
    for j in range(1, 8):
        for hb, row0 in ((6, 0), (30, 8)):
            r = o[k & 3]; k += 1
            cmul(r, hb, W(j)); putG(row0 + j, r)
    for jj, j in enumerate((2, 4, 6)):
        for hb, row0 in ((32, 16), (34, 20)):
            r = o[k & 3]; k += 1
            cmul(r, hb, W(j)); putG(row0 + jj + 1, r)
    A(f"  v_pk_add_f32 {vr(W(7),2)}, {vr(W(7),2)}, {vr(W(8),2)} neg_lo:[0,1] neg_hi:[0,1]")
    A(f"  v_pk_add_f32 {vr(W(6),2)}, {vr(W(6),2)}, {vr(W(8),2)} neg_lo:[0,1] neg_hi:[0,1]")
    cmul(36, 30, W(7)); putG(41, 36)
    cmul(38, 34, W(6)); putG(42, 38)
    A(f"  s_branch {L}_tabdone\n{L}_part1:")
    pw(12, 8, 44)
    pw(28, 128, 40)
    pw(30, 512, 44)
    pw(32, 4, 40)
    A(f"  v_mov_b32 v48, 0x3c00\n  ds_write_b32 v1, v48 offset:{TE}")
    A(f"  v_mov_b32 v49, 0\n  ds_write_b32 v1, v49 offset:{TG + kimg.ROW_ZERO*TGS}")
    putE(1, 12)
    cmul(14, 12, 12); cmul(34, 6, 30)
    putE(2, 14)
    cmul(20, 14, 12); cmul(16, 14, 14)
    putE(3, 20); putE(4, 16)
    cmul(22, 16, 12); cmul(24, 16, 14); cmul(26, 16, 20); cmul(18, 16, 16)
    putE(5, 22); putE(6, 24); putE(7, 26); putE(8, 18)
    Ereg = {1: 12, 2: 14, 3: 20, 4: 16, 5: 22, 6: 24, 7: 26}
    hcur = 34
    for a in range(4, 17):
        hn = 70 - hcur
        if a < 16: cmul(hn, hcur, 28)
        if a < 8:
            putG(24 + 2 * (a - 4), hcur)
            cmul(40, hcur, 32); putG(25 + 2 * (a - 4), 40)
        elif a < 16:
            putG(32 + (a - 8), hcur)
            if a == 8: putG(kimg.ROW_N1024, hcur, neg=True)
        else:
            putG(40, hcur)
        b = a - 4 + 1
        if 1 <= b <= 7:
            cmul(42, 18, Ereg[b]); putE(8 + b, 42)
        hcur = hn
    A(f"""
{L}_tabdone:
  v_and_b32 v2, 15, v0
  v_bfe_u32 v3, v0, 4, 2
  v_mul_u32_u24 v8, {TGS}, v2
  v_lshl_add_u32 v8, v3, 4, v8
  s_mul_i32 s20, s3, {16*TGS}
  v_add_u32 v9, s20, v8
  v_mul_u32_u24 v10, 192, v2
  v_lshl_add_u32 v10, v3, 4, v10
  s_lshl_b32 s20, s3, 6
  v_add_u32 v10, s20, v10
  s_waitcnt lgkmcnt(0)
  {'s_memtime s[66:67]' if stamps else ''}
  s_barrier
  {'s_memtime s[68:69]' if stamps else ''}
  {'s_waitcnt lgkmcnt(0)' if stamps else ''}
  s_cmp_ge_u32 s3, 3
  s_cbranch_scc1 {L}_nomfma
""")
    for ks in range(4):
        A(f"  ds_read_b128 {vr(12+8*ks,4)}, v9 offset:{TG + 64*ks}")
        A(f"  ds_read_b128 {vr(16+8*ks,4)}, v8 offset:{TE + 64*ks}")
    for ks in range(8):
        b = 12 + 8 * (ks & 3)
        A(f"  s_waitcnt lgkmcnt({6 if ks < 5 else 2*(7-ks)})" if ks < 4 or True else "")
        A(f"  v_mfma_f32_16x16x32_f16 v[44:47], {vr(b,4)}, {vr(b+4,4)}, {'0' if ks == 0 else 'v[44:47]'}")
        if ks < 4:
            A(f"  ds_read_b128 {vr(b,4)}, v9 offset:{TG + 64*(ks+4)}")
            A(f"  ds_read_b128 {vr(b+4,4)}, v8 offset:{TE + 64*(ks+4)}")
    A(f"""
  s_nop 7
  ds_write_b128 v10, v[44:47] offset:{KFO}
{L}_nomfma:
  s_mul_i32 s20, s16, {kimg.KIMG_STRIDE}
  s_add_u32 s28, s14, s20
  s_addc_u32 s29, s15, 0
  s_add_u32 s28, s28, {WS_KIMG}
  s_addc_u32 s29, s29, 0
  s_mov_b32 s30, {kimg.IMG_BYTES}
  s_mov_b32 s31, 0x00020000
""")
    for k in range(4):
        A(f"  v_and_b32 v{12+2*k}, 0xffff, v{60+k}")
        A(f"  v_lshrrev_b32 v{13+2*k}, 16, v{60+k}")
        if kimg.NEL > 2048:
            A(f"  v_and_b32 v{32+2*k}, 0xffff, v{76+k}")
            A(f"  v_lshrrev_b32 v{33+2*k}, 16, v{76+k}")
    A("  v_lshlrev_b32 v2, 4, v0\n  s_movk_i32 s20, 0x1000\n  s_waitcnt lgkmcnt(0)\n  s_barrier")
    if stamps: A("  s_memtime s[70:71]\n  s_waitcnt lgkmcnt(0)")
    for k in range(8):
        A(f"  ds_read_b32 v{20+k}, v{12+k} offset:{KFO}")
    if kimg.NEL > 2048:
        A(f"  s_cmp_ge_u32 s3, {(kimg.NEL // 8 - 256 + 63) // 64}\n  s_cbranch_scc1 {L}_one")
        for k in range(8):
            A(f"  ds_read_b32 v{40+k}, v{32+k} offset:{KFO}")
        for k in range(4):
            A(f"  s_waitcnt lgkmcnt({6-2*k})")
            A(f"  v_cvt_pk_f16_f32 v{48+k}, v{40+2*k}, v{41+2*k}")
        A("  buffer_store_dwordx4 v[48:51], v2, s[28:31], s20 offen")
        A(f"{L}_one:")
    for k in range(4):
        A(f"  s_waitcnt lgkmcnt({6-2*k})")
        A(f"  v_cvt_pk_f16_f32 v{28+k}, v{20+2*k}, v{21+2*k}")
    A(f"""
  buffer_store_dwordx4 v[28:31], v2, s[28:31], 0 offen sc1
""")
    if stamps:
        A("  s_memtime s[72:73]\n  s_waitcnt vmcnt(0)\n  s_memtime s[74:75]\n  s_waitcnt lgkmcnt(0)")
        A.srd(76, 14, 0x100000, 0x2040000)
        A(f"  s_lshl_b32 s80, s16, 2\n  s_add_u32 s80, s80, s3\n  s_lshl_b32 s80, s80, 5\n  v_mov_b32 v70, s80")
        for k in range(7):
            A(f"  s_sub_u32 s80, s{62+2*k}, s60\n  v_mov_b32 v71, s80\n  buffer_store_dword v71, v70, s[76:79], 0 offen offset:{4*k}")
    A(f"""
  s_cmp_lg_u32 s3, 3
  s_cbranch_scc1 {L}_done
  s_mov_b32 s30, {kimg.IMG_BYTES + 4}
  v_mov_b32 v3, s27
  v_mov_b32 v4, {kimg.IMG_BYTES}
  s_mul_i32 s20, s16, {UT_STRIDE}
  s_add_u32 s32, s14, s20
  s_addc_u32 s33, s15, 0
  s_mov_b32 s34, 128
  s_mov_b32 s35, 0x00020000
  v_and_b32 v5, 63, v0
  v_lshlrev_b32 v5, 2, v5
  v_mov_b32 v6, 0
  buffer_store_dword v3, v4, s[28:31], 0 offen
  buffer_store_dword v6, v5, s[32:35], 0 offen
  s_endpgm
{L}_pf:
""")
    if npf:
        A(f"""
  s_load_dwordx2 s[4:5], s[0:1], {KA['w1']}
  s_load_dwordx2 s[6:7], s[0:1], {KA['w2']}
  s_and_b32 s16, s2, 7
  s_lshr_b32 s17, s2, 3
  s_lshl_b32 s17, s17, 8
  v_add_u32 v1, s17, v0
""")
        if code:
            A(f"""
  s_getpc_b64 s[20:21]
{L}_pc:
  s_add_u32 s20, s20, code_pf_begin-{L}_pc
  s_addc_u32 s21, s21, 0
  s_mov_b32 s22, code_pf_end-code_pf_begin
  s_mov_b32 s23, 0x00020000
  v_lshlrev_b32 v2, 7, v1
  buffer_load_dword v12, v2, s[20:23], 0 offen
""")
        A("  s_waitcnt lgkmcnt(0)")
        nthr = npf // 8 * 256
        if "A" in pf: gen_prefetch(A, 1, 16, 1, nthr, 4, 8, 2, 4)
        if "B" in pf: gen_prefetch(A, 2, 16, 1, nthr, 6, 24, 2, 8, half=True)
        A("  s_waitcnt vmcnt(0)")
    A("  s_endpgm")
    A(f"{L}_pfe:")
    if nend:
        assert (NWG - nend) % 8 == 0 and nend % 8 == 0
        A(f"""
  s_load_dwordx2 s[4:5], s[0:1], {KA['w1']}
  s_load_dwordx2 s[6:7], s[0:1], {KA['w2']}
  s_and_b32 s16, s2, 7
  s_sub_u32 s17, s2, {NWG - nend}
  s_lshr_b32 s17, s17, 3
  s_lshl_b32 s17, s17, 8
  v_add_u32 v1, s17, v0
  s_waitcnt lgkmcnt(0)
""")
        nthr = nend // 8 * 256
        if "h" in pend: gen_prefetch(A, 1, 16, 1, nthr, 4, 8, 2, 4, half=True)
        if "w" in pend:
            A.srd(24, 6, 1728 * 4096)
            A(f"  s_lshl_b32 s28, s16, 9\n  v_lshrrev_b32 v2, 2, v1\n  v_lshlrev_b32 v2, 12, v2\n  v_and_b32 v3, 3, v1\n  v_lshl_add_u32 v2, v3, 7, v2\n  v_add_u32 v2, s28, v2")
            for k in range(-(-1728 * 4 // nthr)):
                A(f"  s_mov_b32 s28, {k * (nthr // 4) * 4096}\n  buffer_load_dword v{4 + (k & 1)}, v2, s[24:27], s28 offen")
    A(f"{L}_done:\n  s_endpgm")
    A(".p2align 8\ncode_pf_begin:")
    A.kernel_desc(name, 80, 96 if stamps else 64)
    idx = [i * 4 for i in kimg.img] + [kimg.ZERO * 4] * (4096 - kimg.NEL)
    tbl = ".p2align 4\n.type kimg_idx,@object\nkimg_idx:\n"
    for i in range(0, 4096, 16):
        tbl += "  .short " + ", ".join(str(v) for v in idx[i:i+16]) + "\n"
    tbl += ".size kimg_idx, 8192"
    A.desc.append(tbl)

if __name__ == "__main__":
    A = Asm()
    gen_k1(A)
    print(A.text())
```

```python
from asmlib import *
import kimg
from pf import gen_prefetch

def gen_k2(A, name="k2_kernel", stamps=False, pf="", PF=6, WB=2, NCH=3):
    U0 = 1024
    W9 = U0 + 4096 + 512
    W7 = W9 + 2048 + 528
    W5 = W7 + 2048 + 256
    W3 = W5 + 4096 + 272
    U2 = W3 + 4096 + 128
    WAVE = U2 + 4096
    assert WAVE % 16 == 0
    RSTG = 32 * NCH + 16
    STG = NCH * WAVE
    LDS = STG + 128 * RSTG
    PERX = -(-(-(-640 // NCH)) // 8)
    NCONV = PERX * 8
    NT = 64 * NCH
    A.add_launch(name, 256 if pf else NCONV, NT, LDS)
    A.kernel_begin(name)
    L = name
    nst = [0]
    lq = []
    def stamp():
        if stamps:
            A(f"  s_memtime s[{50+2*nst[0]}:{51+2*nst[0]}]")
            lq.append(("stamp", nst[0])); lq.append(("stamp", nst[0]))
            nst[0] += 1
    def ds(tag, txt):
        A(txt); lq.append(tag)
    def lwait(tags):
        idxs = [i for i, t in enumerate(lq) if t in tags]
        if not idxs: return
        n = len(lq) - 1 - max(idxs)
        if any(t[0] == "stamp" for t in lq): n = 0
        n = min(n, 15)
        A(f"  s_waitcnt lgkmcnt({n})")
        del lq[:len(lq) - n]
    vq = []
    def vm(tag, txt): A(txt); vq.append(tag)
    def vwait(tag):
        idxs = [i for i, t in enumerate(vq) if t == tag]
        if not idxs: return
        A(f"  s_waitcnt vmcnt({len(vq) - 1 - max(idxs)})")
        del vq[:max(idxs) + 1]
    ACC, NDF, DF = 16, 10, 48
    SRC, OO, WA, WT = 88, 120, 152, 168
    vB0, vR0, vT16, vT8, vT4, vA4, vA8, vA16, vWr, vSt = 3, 4, 6, 7, 8, 9, 10, 11, 12, 13
    AOFF = 176
    aR0, aRC, aT = 0, 36, {4: 40, 8: 72, 16: 96}
    F = kimg.fam
    A(f"""
  s_cmp_ge_u32 s2, {NCONV}
  s_cbranch_scc1 {L}_pf
  {'s_memtime s[48:49]' if stamps else ''}
  s_load_dwordx2 s[6:7], s[0:1], {KA['ws']}
  v_lshrrev_b32 v1, 6, v0
  s_and_b32 s16, s2, 7
  s_mul_i32 s16, s16, {PERX}
  v_readfirstlane_b32 s3, v1           ; wave
  s_lshr_b32 s17, s2, 3
  s_add_u32 s16, s16, s17
  s_mul_i32 s17, s16, {NCH}
  s_cmp_ge_u32 s17, 640
  s_cbranch_scc1 {L}_done
  v_and_b32 v1, 63, v0                 ; lane
  s_add_u32 s17, s17, s3               ; channel d
  s_min_u32 s17, s17, 639
  s_mul_i32 s26, s3, {WAVE}
  v_lshl_add_u32 v{vWr}, v1, 4, s26
  v_pk_mov_b32 v[48:49], 0, 0
  v_pk_mov_b32 v[50:51], 0, 0
  v_lshlrev_b32 v2, 4, v1              ; lane*16
  s_mov_b32 exec_hi, 0xf
  ds_write_b128 v{vWr}, v[48:51] offset:{U0 - 576}
  ds_write_b128 v{vWr}, v[48:51] offset:{W7 - 576}
  s_mov_b32 exec_hi, 0
  ds_write_b128 v{vWr}, v[48:51] offset:{W9 - 512}
  s_mov_b32 exec_lo, 0x1ffff
  ds_write_b128 v{vWr}, v[48:51] offset:{W5 - 272}
  ds_write_b128 v{vWr}, v[48:51] offset:{W3 - 272}
  ds_write_b128 v{vWr}, v[48:51] offset:{U2 - 272}
  s_mov_b64 exec, -1
  s_mul_i32 s18, s17, {UT_STRIDE}
  s_mul_i32 s19, s17, {kimg.KIMG_STRIDE}
  s_add_u32 s19, s19, {WS_KIMG}
  s_mov_b32 s10, {128 + 4096}
  s_mov_b32 s11, 0x00020000
  s_mov_b32 s14, {kimg.IMG_BYTES}
  s_mov_b32 s15, 0x00020000
  s_mov_b32 s20, 128
  s_mov_b32 s23, 124
  s_add_u32 m0, s26, {U0}
  v_and_b32 v14, 15, v1                ; n / b
  v_lshrrev_b32 v15, 4, v1             ; g
  v_sub_u32 v48, 15, v14               ; q = 15 - n
  v_and_b32 v49, 1, v48
  v_and_b32 v50, 14, v48
  v_mul_u32_u24 v51, {2*F['R0'][1]}, v49
  v_lshl_add_u32 v51, v50, 1, v51
  v_lshl_add_u32 v{vR0}, v15, 4, v51
  v_and_b32 v52, 1, v15                ; hb
  v_lshrrev_b32 v53, 1, v15            ; pi
  v_lshlrev_b32 v54, 4, v52            ; 16*hb
  v_mul_u32_u24 v51, {2*F['T16'][1]}, v49
  v_lshl_add_u32 v51, v50, 1, v51
  v_mul_u32_u24 v55, {2*kimg.TLEN[16]}, v53
  v_add3_u32 v{vT16}, v51, v55, v54
  v_lshlrev_b32 v51, 2, v48
  v_mul_u32_u24 v55, {2*kimg.TLEN[8]}, v53
  v_add3_u32 v{vT8}, v51, v55, v54
  v_lshlrev_b32 v51, 3, v48
  v_mul_u32_u24 v55, {2*kimg.TLEN[4]}, v53
  v_add3_u32 v{vT4}, v51, v55, v54
  s_waitcnt lgkmcnt(0)
  s_add_u32 s8, s6, s18
  s_addc_u32 s9, s7, 0
  s_add_u32 s12, s6, s19
  s_addc_u32 s13, s7, 0
""")
    for i in range(4):
        vm("U", f"  buffer_load_dwordx4 v2, s[8:11], s20 offen offset:{1024*i} lds")
    def tload(tag, areg, va, off):
        vm(tag, f"  buffer_load_dwordx4 {ar(areg,4)}, v{va}, s[12:15], 0 offen offset:{off}")
    for k in list(range(14, -1, -2)) + [16]:
        tload(("R0", k), aR0 + 2 * k, vR0, 32 * (16 - k))
    A(f"  s_add_u32 m0, s26, {U2}\n  s_load_dword s27, s[12:13], {kimg.IMG_BYTES}      ; unscale")
    tload(("RC",), aRC, vR0, 2 * kimg.RC_OFF)
    for i in range(4):
        vm("U2", f"  buffer_load_dwordx4 v2, s[8:11], s23 offen offset:{1024*i} lds")
    for P, va in ((4, vT4), (8, vT8), (16, vT16)):
        for kap in range(16 // P + 4 - 1, -1, -1):
            tload(("T", P, kap), aT[P] + 4 * kap, va, 2 * F[f"T{P}"][0] + 32 * kap)
    A(f"""
  v_lshlrev_b32 v48, 5, v14
  v_lshl_add_u32 v48, v15, 4, v48
  s_add_u32 s22, s26, {U0 - 544}
  v_add_u32 v{vB0}, s22, v48
  v_bfe_u32 v48, v1, 2, 2              ; r
  v_lshl_add_u32 v48, v52, 3, v48      ; 8hb + r
  v_and_b32 v49, 3, v1
  v_lshlrev_b32 v49, 3, v49
  v_add_u32 v49, s26, v49              ; base + 8*c4
""")
    for P, va, ae, ao in ((4, vA4, W3, U2), (8, vA8, W5, W3 - 8), (16, vA16, W9, W7 - 16)):
        A(f"""
  v_mul_u32_u24 v50, {ao - ae}, v53
  v_mul_u32_u24 v51, {2*P}, v48
  v_add3_u32 v50, v50, v51, v49
  v_add_u32 v{va}, {ae - 32*P}, v50
""")
    A(f"""
  v_mul_u32_u24 v48, {RSTG}, v14
  v_mul_u32_u24 v49, {16*NCH}, v53
  v_lshl_add_u32 v48, v52, 3, v48
  s_lshl_b32 s22, s3, 4
  s_add_u32 s22, s22, {STG}
  v_add3_u32 v{vSt}, v48, v49, s22
""")
    stamp()
    E = lambda i, j: SRC + 8 * i + 2 + j
    O = lambda i, j: OO + 8 * i + 2 + j
    W = lambda i, j: WA + 4 * i + j
    V = lambda txt: (lambda: A(txt))
    sideA, sideB, sideC = [], [], []
    for i in range(4):
        sideA.append(lambda i=i: ds(("S", i), f"  ds_read_b64 {vr(E(i,-2),2)}, v{vWr} offset:{U0 + 1024*i - 8}"))
        sideA.append(lambda i=i: ds(("S", i), f"  ds_read_b128 {vr(E(i,0),4)}, v{vWr} offset:{U0 + 1024*i}"))
        sideA.append(lambda i=i: ds(("S", i), f"  ds_read_b64 {vr(E(i,4),2)}, v{vWr} offset:{U0 + 1024*i + 16}"))
    for i in range(4):
        sideA.append(lambda i=i: lwait({("S", i)}))
        for j in range(-1, 4): sideA.append(V(f"  v_alignbit_b32 v{O(i,j)}, v{E(i,j+1)}, v{E(i,j)}, 16"))
        for j in range(4): sideA.append(V(f"  v_pk_add_f16 v{W(i,j)}, v{O(i,j-1)}, v{E(i,j)}"))
        for j in range(4): sideA.append(V(f"  v_pk_add_f16 v{W(i,j)}, v{W(i,j)}, v{O(i,j)}"))
        sideA.append(lambda i=i: ds(("w",), f"  ds_write_b128 v{vWr}, {vr(W(i,0),4)} offset:{W3 + 1024*i}"))
        if i == 0:
            sideA.append(V(f"  v_pk_add_f16 v{WT+4}, v{W(0,0)}, v{E(0,1)}"))
            sideA.append(V(f"  v_pack_b32_f16 v{WT}, v{E(0,0)}, v{W(0,0)}"))
            sideA.append(V(f"  v_pk_add_f16 v{WT+5}, v{WT+4}, v{O(0,1)}"))
            sideA.append(V(f"  v_lshlrev_b32 v{WT+2}, 16, v{E(0,0)}"))
            sideA.append(V(f"  v_pack_b32_f16 v{WT+3}, v{W(0,0)}, v{WT+4}"))
            sideA.append(V(f"  v_pack_b32_f16 v{WT+1}, v{WT+4}, v{WT+5}"))
            def neg():
                A("  s_mov_b64 exec, 1")
                ds(("w",), f"  ds_write_b64 v{vWr}, {vr(WT,2)} offset:{W9 - 8}")
                ds(("w",), f"  ds_write_b64 v{vWr}, {vr(WT+2,2)} offset:{W7 - 8}")
                ds(("w",), f"  ds_write_b32 v{vWr}, v{WT} offset:{W5 - 4}")
                ds(("w",), f"  ds_write_b32 v{vWr}, v{WT+2} offset:{W3 - 4}")
                A("  s_mov_b64 exec, -1")
            sideA.append(neg)
    sideA.append(lambda: vwait("U2"))
    for i in range(4):
        for j in range(4): sideB.append(V(f"  v_pk_add_f16 v{W(i,j)}, v{W(i,j)}, v{E(i,j-1)}"))
        for j in range(4): sideB.append(V(f"  v_pk_add_f16 v{W(i,j)}, v{W(i,j)}, v{E(i,j+1)}"))
        sideB.append(lambda i=i: ds(("w",), f"  ds_write_b128 v{vWr}, {vr(W(i,0),4)} offset:{W5 + 1024*i}"))
    for i in range(2):
        for j in (-2, 4): sideC.append(V(f"  v_alignbit_b32 v{O(i,j)}, v{E(i,j+1)}, v{E(i,j)}, 16"))
        for j in range(4): sideC.append(V(f"  v_pk_add_f16 v{W(i,j)}, v{W(i,j)}, v{O(i,j-2)}"))
        for j in range(4): sideC.append(V(f"  v_pk_add_f16 v{W(i,j)}, v{W(i,j)}, v{O(i,j+1)}"))
        sideC.append(lambda i=i: ds(("w",), f"  ds_write_b128 v{vWr}, {vr(W(i,0),4)} offset:{W7 + 1024*i}"))
        for j in range(4): sideC.append(V(f"  v_pk_add_f16 v{W(i+2,j)}, v{W(i,j)}, v{E(i,j-2)}"))
        for j in range(4): sideC.append(V(f"  v_pk_add_f16 v{W(i+2,j)}, v{W(i+2,j)}, v{E(i,j+2)}"))
        sideC.append(lambda i=i: ds(("w",), f"  ds_write_b128 v{vWr}, {vr(W(i+2,0),4)} offset:{W9 + 1024*i}"))
    items = []
    for e in list(range(-14, 113, 2)) + [16 * t - 63 for t in range(3, 8)]:
        ms = []
        if e & 1:
            ms.append(((e + 63) // 16, ar(aRC, 4), ("RC",), True))
        else:
            t = -(-e // 16); k = 16 * t - e
            if t <= 7: ms.append((t, ar(aR0 + 2 * k, 4), ("R0", k), True))
            if k == 0 and t + 1 <= 7: ms.append((t + 1, ar(aR0 + 32, 4), ("R0", 16), True))
        items.append(("u", e, ms))
    start = {}
    for P in (4, 8, 16):
        s = 16 // P
        start[P] = len(items)
        for J in range(-1, s * 7 - 8 + s + 3 + 1):
            ms = []
            for t in range(8):
                kap = J - s * t + 8
                if 0 <= kap < s + 4: ms.append((t, ar(aT[P] + 4 * kap, 4), ("T", P, kap), False))
            items.append(("w", (P, J), ms))
    def load(idx):
        kind, x, _ = items[idx]
        r = DF + 4 * (idx % NDF)
        if kind == "u":
            ds(("D", idx), f"  ds_read_b128 {vr(r,4)}, v{vB0} offset:{32*(x+16)}")
        else:
            P, J = x
            va = {4: vA4, 8: vA8, 16: vA16}[P]
            for h in range(2):
                ds(("D", idx), f"  ds_read_b64_tr_b16 {vr(r+2*h,2)}, v{va} offset:{2*P*(16*(J+1)+4*h)}")
    A("  s_waitcnt lgkmcnt(0)"); lq.clear()
    vwait("U")
    stamp()
    assert PF + WB <= NDF
    for idx in range(PF): load(idx)
    mf_before = [0]
    for it in items: mf_before.append(mf_before[-1] + len(it[2]))
    dl = {P: mf_before[start[P] - PF] for P in start}
    side = [(op, 4) for op in sideA] + [(op, 8) for op in sideB] + [(op, 16) for op in sideC]
    cum = 0; rate = 0.0
    for ops, d in ((sideA, dl[4]), (sideB, dl[8]), (sideC, dl[16])):
        cum += len(ops); rate = max(rate, cum / (d - 1))
    si = 0; nm = 0
    inited = set()
    for idx, (kind, x, ms) in enumerate(items):
        if stamps and idx == start[4]: stamp()
        nxt = idx + PF
        if nxt < len(items):
            if items[nxt][0] == "w":
                P = items[nxt][1][0]
                while si < len(side) and side[si][1] <= P: side[si][0](); si += 1
            load(nxt)
        r = DF + 4 * (idx % NDF)
        for (t, treg, ttag, toep_is_A) in ms:
            if ttag in vq:
                if ttag[0] == "T": vwait(("T", ttag[1], 0))
                else: vwait(ttag)
            if ("D", idx) in lq:
                lwait({("D", idx + k) for k in range(WB)})
            acc = vr(ACC + 4 * t, 4)
            c = acc if t in inited else "0"
            inited.add(t)
            if toep_is_A: A(f"  v_mfma_f32_16x16x32_f16 {acc}, {treg}, {vr(r,4)}, {c}")
            else:         A(f"  v_mfma_f32_16x16x32_f16 {acc}, {vr(r,4)}, {treg}, {c}")
            nm += 1
            while si < len(side) and si <= rate * nm: side[si][0](); si += 1
    stamp()
    A(f"""
  s_mul_i32 s22, s16, {16*NCH}
  s_add_u32 s22, s22, {WS_Y8}
  s_add_u32 s8, s6, s22
  s_addc_u32 s9, s7, 0
  s_mov_b32 s10, {256 * XS}
  s_mov_b32 s11, 0x00020000
""")
    if NCH == 4:
        A("  v_lshrrev_b32 v52, 2, v0\n  v_and_b32 v53, 3, v0")
    else:
        A("  v_mul_u32_u24 v52, 21846, v0\n  v_lshrrev_b32 v52, 16, v52\n  v_mul_u32_u24 v53, 3, v52\n  v_sub_u32 v53, v0, v53")
    A(f"""
  v_lshrrev_b32 v48, 1, v52
  v_mul_u32_u24 v48, {RSTG}, v48
  v_and_b32 v49, 1, v52
  v_mul_u32_u24 v49, {16*NCH}, v49
  v_lshl_add_u32 v48, v53, 4, v48
  v_add3_u32 v48, v48, v49, {0}
  v_add_u32 v48, {STG}, v48
  v_mul_u32_u24 v49, {XS}, v52
  v_lshl_add_u32 v49, v53, 4, v49
  s_mul_i32 s22, s16, {NCH}
  v_add_u32 v53, s22, v53
  v_cmp_gt_u32 vcc, 0x280, v53
  v_mov_b32 v54, 0x40000000
  v_mov_b32 v50, s27
  v_cndmask_b32 v49, v54, v49, vcc
""")
    lq.clear()
    for t in range(8):
        a = ACC + 4 * t
        for r in (0, 2): A(f"  v_pk_mul_f32 {vr(a+r,2)}, {vr(a+r,2)}, v[50:51] op_sel_hi:[1,0]")
        A(f"  v_cvt_pk_bf16_f32 v{a}, v{a}, v{a+1}\n  v_cvt_pk_bf16_f32 v{a+1}, v{a+2}, v{a+3}")
        A(f"  ds_write_b64 v{vSt}, {vr(a,2)} offset:{16*RSTG*t}")
    A("  s_waitcnt lgkmcnt(0)\n  s_barrier")
    for i in range(4):
        A(f"  ds_read_b128 {vr(56+4*i,4)}, v48 offset:{32*RSTG*i}")
    for i in range(4):
        A(f"  s_waitcnt lgkmcnt({3-i})\n  s_mov_b32 s22, {64*XS*i}")
        A(f"  buffer_store_dwordx4 {vr(56+4*i,4)}, v49, s[8:11], s22 offen")
    if stamps:
        stamp()
        A("  s_waitcnt vmcnt(0)")
        stamp()
        A("  s_waitcnt lgkmcnt(0)")
        A.srd(8, 6, 0x100000, 0x2020000)
        A(f"  s_lshl_b32 s36, s2, 3\n  s_add_u32 s36, s36, s3\n  s_lshl_b32 s36, s36, 6\n  v_mov_b32 v2, s36")
        for k in range(nst[0]):
            A(f"  s_sub_u32 s36, s{50+2*k}, s48\n  v_mov_b32 v3, s36\n  buffer_store_dword v3, v2, s[8:11], 0 offen offset:{4*k}")
    A("  s_endpgm")
    A(f"{L}_pf:")
    if pf:
        nthr = (256 - NCONV) // 8 * NT
        A(f"""
  s_cmp_ge_u32 s2, 256
  s_cbranch_scc1 {L}_done
  s_load_dwordx2 s[4:5], s[0:1], {KA['w1']}
  s_and_b32 s16, s2, 7
  s_sub_u32 s17, s2, {NCONV}
  s_lshr_b32 s17, s17, 3
  s_mul_i32 s17, s17, {NT}
  v_add_u32 v1, s17, v0
  s_xor_b32 s18, s16, 1
  s_load_dwordx2 s[6:7], s[0:1], {KA['ws']}
  s_load_dwordx2 s[20:21], s[0:1], {KA['w2']}
  s_waitcnt lgkmcnt(0)
""")
        for c in pf:
            if c == "w":
                A.srd(24, 20, 1728 * 4096)
                A(f"  s_lshl_b32 s28, s16, 9\n  v_lshrrev_b32 v2, 2, v1\n  v_lshlrev_b32 v2, 12, v2\n  v_and_b32 v3, 3, v1\n  v_lshl_add_u32 v2, v3, 7, v2\n  v_add_u32 v2, s28, v2")
                for k in range(-(-1728 * 4 // nthr)):
                    A(f"  s_mov_b32 s28, {k * (nthr // 4) * 4096}\n  buffer_load_dword v{4 + (k & 1)}, v2, s[24:27], s28 offen")
                continue
            if c == "d":
                A(f"  v_lshlrev_b32 v2, 7, v1\n  global_load_dword v4, v2, s[6:7]")
            if c == "h": gen_prefetch(A, 1, 16, 1, nthr, 4, 8, 2, 4, half=True)
            if c == "o": gen_prefetch(A, 1, 18, 1, nthr, 4, 8, 2, 4, half=True)
            if c == "x": gen_prefetch(A, 1, 16, 1, nthr, 4, 8, 2, 4)
            A("  s_waitcnt vmcnt(0)")
    A(f"{L}_done:\n  s_endpgm")
    A.kernel_desc(name, AOFF + 116, 80, AOFF)
```

```python
from asmlib import *

def gen_k3(A, name="k3_kernel", NW=5, mimic=0):
    NQ = 20 // NW
    CW = 640 // NW
    YB = 0
    HROW = 2 * CW + 16
    HB = 10240
    SB = HB + NW * 8 * HROW
    SROW = 48 if NW == 5 else 96
    LDS = SB + 8 * SROW
    A.add_launch(name, 256, 64 * NW, LDS)
    A.kernel_begin(name)
    L = name
    NE = 4 * NQ
    RX, RD, RY = 16, 16 + 2 * NQ, 16 + 4 * NQ
    X = 16 + 6 * NQ
    X += X & 1
    U = X + NE
    Y = U + NE
    T = Y + NE
    A(f"""
  s_cmp_ge_u32 s2, 256
  s_cbranch_scc1 {L}_done
  s_load_dwordx2 s[4:5], s[0:1], {KA['x']}
  s_load_dwordx2 s[6:7], s[0:1], {KA['ws']}
  s_load_dwordx2 s[28:29], s[0:1], {KA['Dsk']}
  v_lshrrev_b32 v1, 6, v0
  v_and_b32 v2, 7, v0                  ; t
  v_readfirstlane_b32 s3, v1           ; wave
  v_and_b32 v1, 63, v0                 ; lane
  v_lshrrev_b32 v3, 3, v1              ; qq
  s_lshl_b32 s16, s2, 3                ; token0
  v_add_u32 v4, s16, v2                ; token
  v_lshlrev_b32 v5, 3, v4
  v_mul_u32_u24 v4, 1280, v4
  s_mul_i32 s17, s3, {2*CW}
  v_lshl_add_u32 v6, v3, 3, s17
  v_add_u32 v4, v4, v6                 ; x/h offset
  v_lshlrev_b32 v7, 4, v1              ; lane*16
  s_mul_i32 s18, s2, {XS}
  s_mul_i32 s19, s3, {16*CW}
  s_add_u32 s18, s18, s19
  s_add_u32 m0, s19, {YB}
  s_mov_b32 s10, {256 * XS}
  s_mov_b32 s11, 0x00020000
  s_mov_b32 s14, {2048 * 1280}
  s_mov_b32 s15, 0x00020000
  s_mov_b32 s22, {2048 * 8}
  s_mov_b32 s23, 0x00020000
  s_mov_b32 s26, 1280
  s_mov_b32 s27, 0x00020000
  s_waitcnt lgkmcnt(0)
  s_add_u32 s8, s6, {WS_Y8}
  s_addc_u32 s9, s7, 0
  s_mov_b32 s12, s4
  s_mov_b32 s13, s5
""")
    for i in range(NQ // 2):
        A(f"  buffer_load_dwordx4 v7, s[8:11], s18 offen offset:{1024*i} lds")
    for i in range(NQ):
        A(f"  buffer_load_dwordx2 {vr(RX+2*i,2)}, v4, s[12:15], 0 offen offset:{64*i}")
    A(f"  s_add_u32 s20, s6, {WS_ST1}\n  s_addc_u32 s21, s7, 0")
    A("  buffer_load_dwordx2 v[14:15], v5, s[20:23], 0 offen")
    A("  s_mov_b32 s24, s28\n  s_mov_b32 s25, s29")
    for i in range(NQ):
        A(f"  buffer_load_dwordx2 {vr(RD+2*i,2)}, v6, s[24:27], 0 offen offset:{64*i}")
    A.srd(32, 6, 2048 * 1280, WS_H)
    A.srd(36, 6, 8 * XT1, WS_HN8)
    A(f"""
  v_lshrrev_b32 v8, 4, v1
  v_lshlrev_b32 v8, 7, v8
  v_bfe_u32 v9, v1, 1, 1
  v_lshl_add_u32 v8, v9, 6, v8
  v_bfe_u32 v9, v1, 2, 2               ; r
  v_lshl_add_u32 v8, v9, 4, v8
  v_and_b32 v10, 1, v1
  v_lshl_add_u32 v8, v10, 3, v8
  v_add_u32 v8, s19, v8
  s_mul_i32 s40, s3, {8*HROW}
  s_add_u32 s40, s40, {HB}
  v_mul_u32_u24 v10, {HROW}, v2
  v_lshl_add_u32 v10, v3, 3, v10
  v_add_u32 v10, s40, v10
  v_mul_u32_u24 v11, {HROW}, v9
  v_lshrrev_b32 v12, 4, v1
  v_lshl_add_u32 v11, v12, 5, v11
  v_and_b32 v12, 3, v1
  v_lshl_add_u32 v11, v12, 3, v11
  v_add_u32 v11, s40, v11
  v_mul_u32_u24 v12, {SROW}, v2
  v_add_u32 v12, {SB}, v12
  v_lshrrev_b32 v13, 5, v1
  v_lshl_add_u32 v13, v13, 2, v12
  s_lshl_b32 s41, s3, 3
  v_add_u32 v13, s41, v13
  s_mul_i32 s47, s2, 1280
  s_mul_i32 s42, s3, {CW}
""")
    VO = T + 24
    for i in range(NQ // 2):
        A(f"""
  v_add_u32 v{T}, s42, v1
  {f'v_add_u32 v{T}, {64*i}, v{T}' if i else ''}
  v_mul_u32_u24 v{T+1}, 52429, v{T}
  v_lshrrev_b32 v{T+1}, 22, v{T+1}
  v_mul_u32_u24 v{T+1}, {XT1 - 1280}, v{T+1}
  v_lshl_add_u32 v{VO+i}, v{T}, 4, v{T+1}
""")
    A(f"  s_waitcnt vmcnt({2*NQ + 1})")
    for i in range(NQ):
        A(f"  ds_read_b64_tr_b16 {vr(RY+2*i,2)}, v8 offset:{YB + 512*i}")
    A(f"  s_waitcnt vmcnt({NQ})")
    def unpack(dst, src):
        for k in range(NE // 2):
            A(f"  v_lshlrev_b32 v{dst+2*k}, 16, v{src+k}\n  v_and_b32 v{dst+2*k+1}, 0xffff0000, v{src+k}")
    def rnd(a):
        for k in range(NE // 2): A(f"  v_cvt_pk_bf16_f32 v{T+k}, v{a+2*k}, v{a+2*k+1}")
        unpack(a, T)
    P = range(NE // 2)
    unpack(X, RX)
    for k in P: A(f"  v_pk_add_f32 {vr(U+2*k,2)}, {vr(X+2*k,2)}, v[14:15] op_sel_hi:[1,0] neg_lo:[0,1] neg_hi:[0,1]")
    rnd(U)
    for k in P: A(f"  v_pk_mul_f32 {vr(U+2*k,2)}, {vr(U+2*k,2)}, v[14:15] op_sel:[0,1] op_sel_hi:[1,1]")
    rnd(U)
    A("  s_waitcnt vmcnt(0)")
    unpack(Y, RD)
    for k in P: A(f"  v_pk_mul_f32 {vr(U+2*k,2)}, {vr(U+2*k,2)}, {vr(Y+2*k,2)}")
    rnd(U)
    A("  s_waitcnt lgkmcnt(0)")
    unpack(Y, RY)
    for k in P: A(f"  v_pk_add_f32 {vr(Y+2*k,2)}, {vr(Y+2*k,2)}, {vr(U+2*k,2)}")
    rnd(Y)
    for k in P: A(f"  v_pk_add_f32 {vr(X+2*k,2)}, {vr(X+2*k,2)}, {vr(Y+2*k,2)}")
    for k in P: A(f"  v_cvt_pk_bf16_f32 v{RX+k}, v{X+2*k}, v{X+2*k+1}")
    for i in range(NQ):
        A(f"  buffer_store_dwordx2 {vr(RX+2*i,2)}, v4, s[32:35], 0 offen offset:{64*i} sc1")
    unpack(X, RX)
    for k in P: A(f"  v_pk_add_f32 {vr(X+2*k,2)}, {vr(X+2*k,2)}, v[14:15] op_sel_hi:[1,0] neg_lo:[0,1] neg_hi:[0,1]")
    S1, S2 = T, T + 4
    A(f"  v_pk_add_f32 {vr(S1,2)}, {vr(X,2)}, {vr(X+2,2)}\n  v_pk_add_f32 {vr(S1+2,2)}, {vr(X+4,2)}, {vr(X+6,2)}")
    A(f"  v_pk_mul_f32 {vr(S2,2)}, {vr(X,2)}, {vr(X,2)}\n  v_pk_mul_f32 {vr(S2+2,2)}, {vr(X+2,2)}, {vr(X+2,2)}")
    for k in range(2, NE // 2):
        if k >= 4: A(f"  v_pk_add_f32 {vr(S1+2*(k&1),2)}, {vr(S1+2*(k&1),2)}, {vr(X+2*k,2)}")
        A(f"  v_pk_fma_f32 {vr(S2+2*(k&1),2)}, {vr(X+2*k,2)}, {vr(X+2*k,2)}, {vr(S2+2*(k&1),2)}")
    A(f"""
  v_pk_add_f32 {vr(S1,2)}, {vr(S1,2)}, {vr(S1+2,2)}
  v_pk_add_f32 {vr(S2,2)}, {vr(S2,2)}, {vr(S2+2,2)}
  s_mov_b32 s42, 0xff
  v_add_f32 v{S1}, v{S1}, v{S1+1}
  v_add_f32 v{S1+1}, v{S2}, v{S2+1}
  s_mov_b32 s43, 0xff
  s_nop 0
  v_permlane32_swap_b32 v{S1}, v{S1+1}
  s_nop 1
  v_add_f32 v{S1}, v{S1}, v{S1+1}
  v_mov_b32 v{S1+1}, v{S1}
  s_nop 1
  v_permlane16_swap_b32 v{S1}, v{S1+1}
  s_nop 1
  v_add_f32 v{S1}, v{S1}, v{S1+1}
  s_nop 1
  v_add_f32 v{S1}, v{S1}, v{S1} row_ror:8
  s_mov_b64 exec, s[42:43]
  ds_write_b32 v13, v{S1}
  s_mov_b64 exec, -1
  s_waitcnt lgkmcnt(0)
  s_barrier
""")
    nr = (NW * 8 + 15) // 16
    for k in range(nr):
        if k == nr - 1 and (NW * 8) % 16:
            A(f"  ds_read_b64 {vr(T+4*k,2)}, v12 offset:{16*k}")
        else:
            A(f"  ds_read_b128 {vr(T+4*k,4)}, v12 offset:{16*k}")
    A("  s_waitcnt lgkmcnt(0)")
    pairs = [T + 2 * k for k in range(NW)]
    while len(pairs) > 1:
        nx = []
        for k in range(0, len(pairs) - 1, 2):
            A(f"  v_pk_add_f32 {vr(pairs[k],2)}, {vr(pairs[k],2)}, {vr(pairs[k+1],2)}"); nx.append(pairs[k])
        if len(pairs) & 1: nx.append(pairs[-1])
        pairs = nx
    a = T
    A(f"""
  s_mov_b32 s42, {fbits(1.0/640)}
  v_mul_f32 v{a}, s42, v{a}
  v_mul_f32 v{a+1}, s42, v{a+1}
  v_fma_f32 v{a+1}, -v{a}, v{a}, v{a+1}       ; var2
  v_max_f32 v{a+1}, 0, v{a+1}
  v_add_f32 v{a+2}, v{a}, v14                 ; mean2
  v_cvt_pk_bf16_f32 v{a+3}, v{a+1}, v{a+2}
  v_lshlrev_b32 v{a+4}, 16, v{a+3}            ; v2_bf
  v_and_b32 v{a+3}, 0xffff0000, v{a+3}        ; m2_bf
  v_add_f32 v{a+4}, {fbits(1e-5)}, v{a+4}
  v_cvt_pk_bf16_f32 v{a+4}, v{a+4}, v{a+4}
  v_lshlrev_b32 v{a+4}, 16, v{a+4}
  v_sqrt_f32 v{a+4}, v{a+4}
  v_sub_f32 v{a+5}, v{a+3}, v14               ; m2_bf - m1
  v_cvt_pk_bf16_f32 v{a+4}, v{a+4}, v{a+4}
  v_lshlrev_b32 v{a+4}, 16, v{a+4}            ; sd2
  v_rcp_f32 v{a+4}, v{a+4}                    ; r2
  v_sub_f32 v{a+6}, v{a}, v{a+5}
  v_mul_f32 v{a+6}, v{a+6}, v{a+4}            ; mean3
  v_mul_f32 v{a+7}, v{a+1}, v{a+4}
  v_mul_f32 v{a+7}, v{a+7}, v{a+4}            ; var3
  v_cvt_pk_bf16_f32 v{a+7}, v{a+7}, v{a+6}
  v_and_b32 v{a+6}, 0xffff0000, v{a+7}        ; m3_bf
  v_lshlrev_b32 v{a+7}, 16, v{a+7}
  v_add_f32 v{a+7}, {fbits(1e-5)}, v{a+7}
  v_cvt_pk_bf16_f32 v{a+7}, v{a+7}, v{a+7}
  v_lshlrev_b32 v{a+7}, 16, v{a+7}
  v_sqrt_f32 v{a+7}, v{a+7}
  v_fma_f32 v{a+6}, v{a+5}, v{a+4}, v{a+6}
  v_cvt_pk_bf16_f32 v{a+7}, v{a+7}, v{a+7}
  v_lshlrev_b32 v{a+7}, 16, v{a+7}
  v_rcp_f32 v{a+7}, v{a+7}                    ; r3
  s_nop 0
  v_mul_f32 v{a+8}, v{a+4}, v{a+7}            ; A
  v_mul_f32 v{a+10}, v{a+6}, v{a+7}           ; -B
""")
    for k in P:
        A(f"  v_pk_fma_f32 {vr(X+2*k,2)}, {vr(X+2*k,2)}, {vr(a+8,2)}, {vr(a+10,2)} op_sel_hi:[1,0,0] neg_lo:[0,0,1] neg_hi:[0,0,1]")
    for k in P:
        A(f"  v_cvt_pk_bf16_f32 v{U+k}, v{X+2*k}, v{X+2*k+1}")
        if k & 1: A(f"  ds_write_b64 v10, {vr(U+k-1,2)} offset:{64*(k>>1)}")
    for i in range(NQ // 2):
        A(f"  ds_read_b64_tr_b16 {vr(Y+4*i,2)}, v11 offset:{128*i}")
        A(f"  ds_read_b64_tr_b16 {vr(Y+4*i+2,2)}, v11 offset:{128*i + 4*HROW}")
    for i in range(NQ // 2):
        A(f"  s_waitcnt lgkmcnt({2*(NQ//2 - 1 - i)})")
        A(f"  buffer_store_dwordx4 {vr(Y+4*i,4)}, v{VO+i}, s[36:39], s47 offen sc1")
    A(f"{L}_done:\n  s_endpgm")
    A.kernel_desc(name, VO + 4, 56)
```

```python
from asmlib import *
import kimg_v2 as kimg
from pf import gen_prefetch

LOG2E = 1.4426950408889634
def f32r(x):
    return struct.unpack("<f", struct.pack("<f", x))[0]
NLN = 128
WS_U8 = WS_UT
US = 640 * 32 + 128
WS_SY = 0x1D00000

def gen_k12(A, name="k12_kernel", nend=0, pend="", code=True, stamps=False, PF=5, WB=2, prio=1, slp=2, grp=0, cpf=0):
    RS = 1312
    TGS = 544
    TG, TE, KFO = 0, 48 * TGS, 64 * TGS
    LDS = 40960
    KI = 0
    AB = 6656
    U0 = AB + 576
    W9 = U0 + 4096 + 512
    W7 = W9 + 2048 + 528
    W5 = W7 + 2048 + 256
    W3 = W5 + 4096 + 272
    U2 = W3 + 4096 + 128
    AE = U2 + 4096
    assert kimg.IMG_BYTES <= AB and AE <= KFO + 0 and AE % 16 == 0, AE
    EXS = [1024 * i for i in range(6)] + [AE + 1024 * i for i in range((LDS - AE) // 1024)]
    assert len(EXS) >= 15
    NWG = NLN + 640 + nend
    A.add_launch(name, NWG, 256, LDS)
    A.kernel_begin(name)
    L = name
    A(f"""
  s_cmp_ge_u32 s2, {NLN + 640}
  s_cbranch_scc1 {L}_pfe
  s_cmp_ge_u32 s2, {NLN}
  s_cbranch_scc1 {L}_kgen
  ; ---------------- LN1 ----------------
  {'s_memtime s[60:61]' if stamps else ''}
  s_load_dwordx2 s[4:5], s[0:1], {KA['x']}
  s_load_dwordx2 s[6:7], s[0:1], {KA['ws']}
  s_load_dwordx2 s[28:29], s[0:1], {KA['dbg']}
  {'s_setprio 3' if prio else ''}
  s_lshl_b32 s16, s2, 4                ; t0
  v_lshrrev_b32 v1, 4, v0              ; row
  v_and_b32 v2, 15, v0                 ; q
  v_add_u32 v3, s16, v1
  v_mul_u32_u24 v3, 1280, v3
  v_lshl_add_u32 v3, v2, 4, v3
  s_waitcnt lgkmcnt(0)
""")
    A(f"""
  s_add_u32 s30, s6, {WS_SY}
  s_addc_u32 s31, s7, 0
  v_readfirstlane_b32 s19, v0
  s_lshl_b32 s18, s2, 8
  s_add_u32 s19, s19, s18
  s_cmp_lg_u32 s19, 192
  s_cbranch_scc1 {L}_noinit
  v_and_b32 v72, 63, v0
  v_lshlrev_b32 v72, 5, v72
  v_pk_mov_b32 v[76:77], 0, 0
  v_pk_mov_b32 v[78:79], 0, 0
  global_store_dwordx4 v72, v[76:79], s[30:31] sc1
  global_store_dwordx4 v72, v[76:79], s[30:31] offset:16 sc1
{L}_noinit:
""")
    A.srd(8, 4, 2048 * 1280)
    for i in range(5):
        A(f"  buffer_load_dwordx4 {vr(8+4*i,4)}, v3, s[8:11], 0 offen offset:{256*i}")
    A.srd(12, 6, 128 * US, WS_U8)
    A.srd(20, 6, 2048 * 8, WS_ST1)
    A(f"""
  v_mul_u32_u24 v4, {RS}, v1
  v_lshl_add_u32 v4, v2, 4, v4
  v_bfe_u32 v5, v0, 4, 1               ; th
  v_bfe_u32 v6, v0, 2, 2               ; r
  v_lshl_add_u32 v5, v5, 3, v6
  v_mul_u32_u24 v5, {RS}, v5
  v_bfe_u32 v6, v0, 5, 1               ; cgl
  v_lshl_add_u32 v5, v6, 5, v5
  v_and_b32 v7, 3, v0
  v_lshl_add_u32 v5, v7, 3, v5
  v_lshrrev_b32 v7, 6, v0              ; wave
  v_mul_u32_u24 v72, 320, v7
  v_add_u32 v5, v5, v72
  v_mul_u32_u24 v72, 160, v7
  v_lshl_add_u32 v72, v6, 4, v72
  v_add_u32 v72, v72, v2
  v_lshlrev_b32 v72, 5, v72
  v_and_b32 v6, 16, v0                 ; th*16
  s_mul_i32 s17, s2, {US}
  v_add3_u32 v6, v6, v72, s17
  v_add_u32 v7, s16, v1
  v_lshlrev_b32 v7, 3, v7
""")
    X = 32
    for i in range(5):
        A(f"  s_waitcnt vmcnt({4-i})")
        for k in range(4):
            A(f"  v_lshlrev_b32 v{X+8*i+2*k}, 16, v{8+4*i+k}")
            A(f"  v_and_b32 v{X+8*i+2*k+1}, 0xffff0000, v{8+4*i+k}")
        if i == 0:
            A(f"  v_pk_add_f32 v[72:73], {vr(X,2)}, {vr(X+2,2)}")
            A(f"  v_pk_add_f32 v[74:75], {vr(X+4,2)}, {vr(X+6,2)}")
        else:
            for k in range(4):
                a = 72 + 2 * (k & 1)
                A(f"  v_pk_add_f32 {vr(a,2)}, {vr(a,2)}, {vr(X+8*i+2*k,2)}")
    A(f"""
  s_cmp_lg_u32 s19, 192
  s_cbranch_scc1 {L}_noinit2
  v_mov_b32 v76, 0
  v_mov_b32 v77, 1
  global_store_dword v76, v77, s[28:29] sc1
{L}_noinit2:
""")
    if stamps: A("  s_memtime s[62:63]")
    def rowsum(v):
        for sh in (8, 4, 2, 1):
            A(f"  s_nop 1\n  v_add_f32 v{v}, v{v}, v{v} row_ror:{sh}")
    A("  v_pk_add_f32 v[72:73], v[72:73], v[74:75]\n  s_nop 0\n  v_add_f32 v72, v72, v73")
    rowsum(72)
    A(f"  v_mul_f32 v72, {fbits(-1.0/640)}, v72     ; -mean")
    D = 80
    for k in range(20):
        A(f"  v_pk_add_f32 {vr(D+2*k,2)}, {vr(X+2*k,2)}, v[72:73] op_sel_hi:[1,0]")
    A(f"  v_pk_mul_f32 v[74:75], {vr(D,2)}, {vr(D,2)}")
    A(f"  v_pk_mul_f32 v[76:77], {vr(D+2,2)}, {vr(D+2,2)}")
    for k in range(2, 20):
        a = 74 + 2 * (k & 1)
        A(f"  v_pk_fma_f32 {vr(a,2)}, {vr(D+2*k,2)}, {vr(D+2*k,2)}, {vr(a,2)}")
    A(f"""
  v_cvt_pk_bf16_f32 v78, -v72, -v72
  v_pk_add_f32 v[74:75], v[74:75], v[76:77]
  v_and_b32 v78, 0xffff0000, v78            ; m_bf
  v_add_f32 v74, v74, v75
""")
    def rnd(k):
        A(f"  v_cvt_pk_bf16_f32 v{X+2*k+1}, v{X+2*k}, v{X+2*k+1}")
        A(f"  v_lshlrev_b32 v{X+2*k}, 16, v{X+2*k+1}\n  v_and_b32 v{X+2*k+1}, 0xffff0000, v{X+2*k+1}")
    chain = []
    for sh in (8, 4, 2, 1): chain.append(f"  v_add_f32 v74, v74, v74 row_ror:{sh}")
    chain += [f"  v_mul_f32 v74, {fbits(1.0/640)}, v74", "  v_cvt_pk_bf16_f32 v74, v74, v74", "  v_lshlrev_b32 v74, 16, v74",
              f"  v_add_f32 v74, {fbits(1e-5)}, v74", "  v_cvt_pk_bf16_f32 v74, v74, v74", "  v_lshlrev_b32 v74, 16, v74",
              "  v_sqrt_f32 v74, v74", "  v_cvt_pk_bf16_f32 v74, v74, v74", "  v_lshlrev_b32 v74, 16, v74", "  v_rcp_f32 v79, v74"]
    for k in range(20):
        A(f"  v_pk_add_f32 {vr(X+2*k,2)}, {vr(X+2*k,2)}, v[78:79] op_sel_hi:[1,0] neg_lo:[0,1] neg_hi:[0,1]")
        rnd(k)
        if k < len(chain): A(chain[k])
    for k in range(20):
        A(f"  v_pk_mul_f32 {vr(X+2*k,2)}, {vr(X+2*k,2)}, v[78:79] op_sel:[0,1] op_sel_hi:[1,1]")
    for k in range(20):
        rnd(k)
        A(f"  v_cvt_pk_f16_f32 v{8+k}, v{X+2*k}, v{X+2*k+1}")
        if k % 4 == 3:
            A(f"  ds_write_b128 v4, {vr(8+k-3,4)} offset:{256*(k//4)}")
    A(f"""
  s_movk_i32 s26, 0x1000
  v_mov_b32 v120, 0
  global_load_dword v121, v120, s[28:29] sc1
  v_cmp_eq_u32 vcc, 0, v2
  s_and_saveexec_b64 s[24:25], vcc
  buffer_store_dwordx2 v[78:79], v7, s[20:23], 0 offen
  s_mov_b64 exec, s[24:25]
  {'s_memtime s[64:65]' if stamps else ''}
  s_waitcnt lgkmcnt(0)
  s_barrier
""")
    for k in range(5):
        for h in range(2):
            A(f"  ds_read_b64_tr_b16 {vr(32+4*k+2*h,2)}, v5 offset:{64*k + 4*h*RS}")
    for k in range(5):
        A(f"  s_waitcnt lgkmcnt({8-2*k})")
        A(f"  buffer_store_dwordx4 {vr(32+4*k,4)}, v6, s[12:15], {'0' if k < 4 else 's26'} offen offset:{1024*(k&3)} sc1")
    A(f"""
  {'s_memtime s[66:67]' if stamps else ''}
  s_waitcnt vmcnt(0)
  {'s_memtime s[68:69]' if stamps else ''}
  s_barrier
  {'s_memtime s[70:71]' if stamps else ''}
  v_cmp_eq_u32 vcc, 0, v0
  s_and_saveexec_b64 s[24:25], vcc
  s_cbranch_execz {L}_done
  s_mov_b32 s21, 200000
{L}_ipoll:
  v_cmp_eq_u32 vcc, 0, v121
  s_sub_u32 s21, s21, 1
  s_cmp_eq_u32 s21, 0
  s_cbranch_scc1 {L}_iok
  s_cbranch_vccz {L}_iok
  global_load_dword v121, v120, s[28:29] sc1
  s_waitcnt vmcnt(0)
  s_branch {L}_ipoll
{L}_iok:
  s_lshr_b32 s17, s2, 3
  s_lshl_b32 s17, s17, 7
  s_and_b32 s18, s2, 7
  s_lshl_b32 s18, s18, 2
  s_add_u32 s17, s17, s18
  v_mov_b32 v1, s17
  v_mov_b32 v2, 1
  global_store_dword v1, v2, s[30:31] sc1
""")
    if stamps:
        A("  s_waitcnt vmcnt(0)\n  s_memtime s[72:73]\n  s_waitcnt lgkmcnt(0)")
        A.srd(84, 6, 0x100000, 0x2060000)
        A(f"  s_lshl_b32 s83, s2, 5\n  v_mov_b32 v4, s83")
        for k in range(6):
            A(f"  s_sub_u32 s83, s{62+2*k}, s60\n  v_mov_b32 v5, s83\n  buffer_store_dword v5, v4, s[84:87], 0 offen offset:{4*k}")
    A("  s_endpgm")
    Lhi = f32r(LOG2E); Llo = LOG2E - Lhi
    nst = [0]
    def stamp():
        if stamps:
            A(f"  s_memtime s[{62+2*nst[0]}:{63+2*nst[0]}]\n  s_waitcnt lgkmcnt(0)")
            nst[0] += 1
    A(f"""
{L}_kgen:
  {'s_memtime s[60:61]' if stamps else ''}
  s_sub_u32 s16, s2, {NLN}
  s_and_b32 s17, s16, 7
  s_mul_i32 s17, s17, 80
  s_lshr_b32 s16, s16, 3
  s_add_u32 s16, s16, s17
  s_load_dwordx4 s[4:7], s[0:1], {KA['logA']}
  s_load_dwordx4 s[8:11], s[0:1], {KA['Cre']}
  s_load_dwordx2 s[12:13], s[0:1], {KA['logdt']}
  s_load_dwordx4 s[36:39], s[0:1], {KA['dbg']}
  s_load_dwordx2 s[40:41], s[0:1], {KA['w1']}
  s_getpc_b64 s[18:19]
  s_add_u32 s18, s18, kimg_idx@rel32@lo+4
  s_addc_u32 s19, s19, kimg_idx@rel32@hi+12
  v_lshrrev_b32 v1, 6, v0
  v_lshlrev_b32 v2, 4, v0
  v_readfirstlane_b32 s3, v1              ; wave
  global_load_dwordx4 v[60:63], v2, s[18:19]
  v_add_u32 v2, 0x1000, v2
  global_load_dwordx4 v[64:67], v2, s[18:19]
  v_and_b32 v1, 127, v0                   ; mode
  s_lshl_b32 s17, s16, 8
  v_lshl_add_u32 v2, v1, 1, s17
  v_xor_b32 v3, 128, v2
  s_lshl_b32 s20, s16, 1
  s_and_b32 s21, s20, 0xfffffffc
  s_waitcnt lgkmcnt(0)
  s_load_dword s22, s[12:13], s21
  global_load_ushort v4, v2, s[4:5]       ; logA
  global_load_ushort v5, v2, s[6:7]       ; Aim
  global_load_ushort v6, v2, s[8:9]       ; Cre
  global_load_ushort v7, v2, s[10:11]     ; Cim
  global_load_ushort v8, v3, s[8:9]
  global_load_ushort v9, v3, s[10:11]
  v_lshlrev_b32 v1, 2, v1
  s_waitcnt lgkmcnt(0)
  s_and_b32 s20, s20, 2
  s_lshl_b32 s20, s20, 3
  s_lshr_b32 s22, s22, s20
  s_lshl_b32 s22, s22, 16
  s_mov_b32 s23, {fbits(Lhi)}
  s_mov_b32 s24, {fbits(Llo)}
  v_mov_b32 v10, s22
""")
    def exp_bf16(dst, src, t1, t2):
        A(f"""
  v_mul_f32 v{t1}, s23, v{src}
  v_fma_f32 v{t2}, v{src}, s23, -v{t1}
  v_fma_f32 v{t2}, v{src}, s24, v{t2}
  v_exp_f32 v{t1}, v{t1}
  v_mul_f32 v{t2}, {fbits(0.6931471805599453)}, v{t2}
  v_fma_f32 v{dst}, v{t1}, v{t2}, v{t1}
  v_cvt_pk_bf16_f32 v{dst}, v{dst}, v{dst}
  v_lshlrev_b32 v{dst}, 16, v{dst}
""")
    exp_bf16(10, 10, 11, 12)
    A("  s_waitcnt vmcnt(5)\n  v_lshlrev_b32 v4, 16, v4")
    exp_bf16(4, 4, 11, 12)
    A(f"""
  v_mul_f32 v4, v4, v10
  v_mul_f32 v4, {fbits(-LOG2E)}, v4
  s_waitcnt vmcnt(0)
  v_lshlrev_b32 v5, 16, v5
  v_mul_f32 v5, v5, v10
  v_mul_f32 v5, {fbits(0.15915494309189535)}, v5
  v_lshlrev_b32 v6, 16, v6
  v_lshlrev_b32 v7, 16, v7
  v_lshlrev_b32 v8, 16, v8
  v_lshlrev_b32 v9, 16, v9
  v_max3_f32 v11, |v6|, |v7|, |v8|
  v_max_f32 v11, v11, |v9|
  v_mul_f32 v11, v11, v10
""")
    for sh in (8, 4, 2, 1):
        A(f"  s_nop 1\n  v_max_f32 v11, v11, v11 row_ror:{sh}")
    A(f"""
  s_nop 0
  v_readlane_b32 s25, v11, 0
  v_readlane_b32 s26, v11, 16
  v_readlane_b32 s27, v11, 32
  v_readlane_b32 s28, v11, 48
  v_mul_f32 v6, v6, v10
  v_mul_f32 v7, v7, v10
  s_max_u32 s25, s25, s26
  s_max_u32 s27, s27, s28
  s_max_u32 s25, s25, s27
  s_lshr_b32 s25, s25, 23
  s_max_u32 s25, s25, 1
  s_min_u32 s25, s25, 253
  s_sub_u32 s26, 254, s25
  s_lshl_b32 s26, s26, 23
  s_add_u32 s27, s25, 1
  s_lshl_b32 s27, s27, 23
  v_mul_f32 v6, s26, v6
  v_mul_f32 v7, s26, v7
""")
    def pw(dst, p, t):
        if p == 1:
            A(f"  v_exp_f32 v{t}, v4\n  v_fract_f32 v{t+1}, v5")
        else:
            A(f"  v_mul_f32 v{t}, {fbits(float(p))}, v4\n  v_mul_f32 v{t+1}, {fbits(float(p))}, v5\n  v_exp_f32 v{t}, v{t}\n  v_fract_f32 v{t+1}, v{t+1}")
        A(f"  v_cos_f32 v{dst}, v{t+1}\n  v_sin_f32 v{dst+1}, v{t+1}\n  s_nop 0\n  v_mul_f32 v{dst}, v{dst}, v{t}\n  v_mul_f32 v{dst+1}, v{dst+1}, v{t}")
    tmp = [0]
    def cmul(d, a, b):
        t = 52 + 2 * (tmp[0] & 3); tmp[0] += 1
        A(f"  v_pk_mul_f32 {vr(t,2)}, {vr(a,2)}, {vr(b,2)} op_sel:[1,1] op_sel_hi:[1,0]")
        A(f"  v_pk_fma_f32 {vr(d,2)}, {vr(a,2)}, {vr(b,2)}, {vr(t,2)} op_sel_hi:[0,1,1] neg_lo:[0,0,1]")
    ow = [0]
    def putG(row, a, neg=False):
        o = 48 + (ow[0] & 3); ow[0] += 1
        if neg: A(f"  v_cvt_pk_f16_f32 v{o}, -v{a}, v{a+1}")
        else:   A(f"  v_cvt_pk_f16_f32 v{o}, v{a}, -v{a+1}")
        A(f"  ds_write_b32 v1, v{o} offset:{TG + row*TGS}")
    def putE(col, a):
        o = 48 + (ow[0] & 3); ow[0] += 1
        A(f"  v_cvt_pk_f16_f32 v{o}, v{a}, v{a+1}")
        A(f"  ds_write_b32 v1, v{o} offset:{TE + col*TGS}")
    A(f"  s_cmp_ge_u32 s3, 2\n  s_cbranch_scc1 {L}_part1")
    Wp = lambda j: 12 + 2 * (j - 1)
    pw(Wp(1), 1, 44); pw(28, 128, 40)
    putG(0, 6)
    cmul(Wp(2), Wp(1), Wp(1)); cmul(30, 6, 28)
    cmul(Wp(3), Wp(2), Wp(1)); cmul(Wp(4), Wp(2), Wp(2)); cmul(32, 30, 28)
    putG(8, 30)
    cmul(Wp(5), Wp(4), Wp(1)); cmul(Wp(6), Wp(4), Wp(2)); cmul(Wp(7), Wp(4), Wp(3)); cmul(Wp(8), Wp(4), Wp(4)); cmul(34, 32, 28)
    putG(16, 32); putG(20, 34)
    o = [36, 38, 40, 42]; k = 0
    for j in range(1, 8):
        for hb, row0 in ((6, 0), (30, 8)):
            r = o[k & 3]; k += 1
            cmul(r, hb, Wp(j)); putG(row0 + j, r)
    for jj, j in enumerate((2, 4, 6)):
        for hb, row0 in ((32, 16), (34, 20)):
            r = o[k & 3]; k += 1
            cmul(r, hb, Wp(j)); putG(row0 + jj + 1, r)
    A(f"  v_pk_add_f32 {vr(Wp(7),2)}, {vr(Wp(7),2)}, {vr(Wp(8),2)} neg_lo:[0,1] neg_hi:[0,1]")
    A(f"  v_pk_add_f32 {vr(Wp(6),2)}, {vr(Wp(6),2)}, {vr(Wp(8),2)} neg_lo:[0,1] neg_hi:[0,1]")
    cmul(36, 30, Wp(7)); putG(41, 36)
    cmul(38, 34, Wp(6)); putG(42, 38)
    A(f"  s_branch {L}_tabdone\n{L}_part1:")
    pw(12, 8, 44); pw(28, 128, 40); pw(30, 512, 44); pw(32, 4, 40)
    A(f"  v_mov_b32 v48, 0x3c00\n  ds_write_b32 v1, v48 offset:{TE}")
    A(f"  v_mov_b32 v49, 0\n  ds_write_b32 v1, v49 offset:{TG + kimg.ROW_ZERO*TGS}")
    putE(1, 12)
    cmul(14, 12, 12); cmul(34, 6, 30)
    putE(2, 14)
    cmul(20, 14, 12); cmul(16, 14, 14)
    putE(3, 20); putE(4, 16)
    cmul(22, 16, 12); cmul(24, 16, 14); cmul(26, 16, 20); cmul(18, 16, 16)
    putE(5, 22); putE(6, 24); putE(7, 26); putE(8, 18)
    Ereg = {1: 12, 2: 14, 3: 20, 4: 16, 5: 22, 6: 24, 7: 26}
    hcur = 34
    for a in range(4, 17):
        hn = 70 - hcur
        if a < 16: cmul(hn, hcur, 28)
        if a < 8:
            putG(24 + 2 * (a - 4), hcur)
            cmul(40, hcur, 32); putG(25 + 2 * (a - 4), 40)
        elif a < 16:
            putG(32 + (a - 8), hcur)
            if a == 8: putG(kimg.ROW_N1024, hcur, neg=True)
        else:
            putG(40, hcur)
        b = a - 4 + 1
        if 1 <= b <= 7:
            cmul(42, 18, Ereg[b]); putE(8 + b, 42)
        hcur = hn
    A(f"""
{L}_tabdone:
  v_and_b32 v2, 15, v0
  v_bfe_u32 v3, v0, 4, 2
  v_mul_u32_u24 v8, {TGS}, v2
  v_lshl_add_u32 v8, v3, 4, v8
  s_mul_i32 s20, s3, {16*TGS}
  v_add_u32 v9, s20, v8
  v_mul_u32_u24 v10, 192, v2
  v_lshl_add_u32 v10, v3, 4, v10
  s_lshl_b32 s20, s3, 6
  v_add_u32 v10, s20, v10
  v_mov_b32 v124, 0
  global_load_dword v125, v124, s[36:37] sc1
  s_waitcnt lgkmcnt(0)
  s_barrier
  s_cmp_ge_u32 s3, 3
  s_cbranch_scc1 {L}_nomfma
""")
    for ks in range(4):
        A(f"  ds_read_b128 {vr(12+8*ks,4)}, v9 offset:{TG + 64*ks}")
        A(f"  ds_read_b128 {vr(16+8*ks,4)}, v8 offset:{TE + 64*ks}")
    for ks in range(8):
        b = 12 + 8 * (ks & 3)
        A(f"  s_waitcnt lgkmcnt({6 if ks < 5 else 2*(7-ks)})")
        A(f"  v_mfma_f32_16x16x32_f16 v[44:47], {vr(b,4)}, {vr(b+4,4)}, {'0' if ks == 0 else 'v[44:47]'}")
        if ks < 4:
            A(f"  ds_read_b128 {vr(b,4)}, v9 offset:{TG + 64*(ks+4)}")
            A(f"  ds_read_b128 {vr(b+4,4)}, v8 offset:{TE + 64*(ks+4)}")
    A(f"  s_nop 7\n  ds_write_b128 v10, v[44:47] offset:{KFO}\n{L}_nomfma:")
    for k in range(8):
        A(f"  v_and_b32 v{12+2*k}, 0xffff, v{60+k}")
        A(f"  v_lshrrev_b32 v{13+2*k}, 16, v{60+k}")
    A("  v_lshlrev_b32 v2, 4, v0\n  v_pk_mov_b32 v[56:57], 0, 0\n  v_pk_mov_b32 v[58:59], 0, 0\n  v_and_b32 v1, 63, v0\n  v_lshlrev_b32 v3, 4, v1")
    A("  s_waitcnt lgkmcnt(0)\n  s_barrier")
    stamp()
    n2 = kimg.NEL // 8 - 256
    for k in range(8): A(f"  ds_read_b32 v{28+k}, v{12+k} offset:{KFO}")
    A(f"  s_cmp_ge_u32 s3, 3\n  s_cbranch_scc1 {L}_pads")
    for k in range(8): A(f"  ds_read_b32 v{36+k}, v{20+k} offset:{KFO}")
    for k in range(4):
        A(f"  s_waitcnt lgkmcnt({6-2*k})\n  v_cvt_pk_f16_f32 v{48+k}, v{36+2*k}, v{37+2*k}")
    assert n2 <= 192 and 4096 + 16 * 192 > AB
    A(f"""
  v_cmp_gt_u32 vcc, {n2}, v0
  s_and_saveexec_b64 s[24:25], vcc
  ds_write_b128 v2, v[48:51] offset:{KI + 4096}
  s_mov_b64 exec, -1
  s_branch {L}_img1
{L}_pads:
  s_mov_b32 exec_hi, 0xf
  ds_write_b128 v3, v[56:59] offset:{U0 - 576}
  ds_write_b128 v3, v[56:59] offset:{W7 - 576}
  s_mov_b32 exec_hi, 0
  ds_write_b128 v3, v[56:59] offset:{W9 - 512}
  s_mov_b32 exec_lo, 0x1ffff
  ds_write_b128 v3, v[56:59] offset:{W5 - 272}
  ds_write_b128 v3, v[56:59] offset:{W3 - 272}
  ds_write_b128 v3, v[56:59] offset:{U2 - 272}
  s_mov_b64 exec, -1
{L}_img1:
  s_waitcnt lgkmcnt(0)
""")
    for k in range(4): A(f"  v_cvt_pk_f16_f32 v{44+k}, v{28+2*k}, v{29+2*k}")
    A(f"  ds_write_b128 v2, v[44:47] offset:{KI}")
    F = kimg.fam
    vB0, vTo, vTo2, vAa, vAb, vWr, vEx, vU = 4, 5, 6, 7, 8, 9, 10, 11
    A(f"""
  v_and_b32 v14, 15, v1                ; n / b
  v_lshrrev_b32 v15, 4, v1             ; g
  v_lshlrev_b32 v48, 5, v14
  v_lshl_add_u32 v48, v15, 4, v48
  v_add_u32 v{vB0}, {U0 - 544}, v48
  v_sub_u32 v48, 15, v14               ; q
  v_and_b32 v49, 3, v48
  v_and_b32 v50, 12, v48
  v_and_b32 v52, 1, v15                ; hb
  v_lshrrev_b32 v53, 1, v15            ; pi
  v_lshlrev_b32 v54, 4, v52
  v_bfe_u32 v56, v1, 2, 2              ; r
  v_lshl_add_u32 v56, v52, 3, v56      ; 8hb + r
  v_and_b32 v57, 3, v1
  v_lshlrev_b32 v57, 3, v57            ; 8*c4
  v_mov_b32 v{vWr}, v2
  v_mov_b32 v{vEx}, v3                 ; lane*16
  v_lshrrev_b32 v{vU}, 1, v0
  v_mul_u32_u24 v{vU}, {US}, v{vU}
  v_and_b32 v51, 1, v0
  v_lshl_add_u32 v{vU}, v51, 4, v{vU}
  s_lshl_b32 s20, s16, 5
  v_add_u32 v{vU}, s20, v{vU}
  s_add_u32 s8, s38, {WS_U8}
  s_addc_u32 s9, s39, 0
  s_mov_b32 s10, {128 * US}
  s_mov_b32 s11, 0x00020000
  s_add_u32 s12, s38, {WS_Y8}
  s_addc_u32 s13, s39, 0
  s_mov_b32 s14, {256 * XS}
  s_mov_b32 s15, 0x00020000
  s_waitcnt lgkmcnt(0)
  s_barrier
""")
    TP, ACC, NDF, DF = 16, 60, 8, 92
    def taddr(fam_, dst):
        if fam_ == "R0":
            A(f"  v_mul_u32_u24 v51, {2*F['R0'][1]}, v49\n  v_lshl_add_u32 v51, v50, 1, v51\n  v_lshl_add_u32 v{dst}, v15, 4, v51")
        elif fam_ == "T16":
            A(f"  v_mul_u32_u24 v51, {2*F['T16'][1]}, v49\n  v_lshl_add_u32 v51, v50, 1, v51\n  v_mul_u32_u24 v55, {2*kimg.TLEN[16]}, v53\n  v_add3_u32 v{dst}, v51, v55, v54")
        elif fam_ == "T8":
            A(f"  v_and_b32 v51, 1, v48\n  v_mul_u32_u24 v51, {2*F['T8'][1]}, v51\n  v_and_b32 v55, 14, v48\n  v_lshl_add_u32 v51, v55, 2, v51\n  v_mul_u32_u24 v55, {2*kimg.TLEN[8]}, v53\n  v_add3_u32 v{dst}, v51, v55, v54")
        else:
            A(f"  v_lshlrev_b32 v51, 3, v48\n  v_mul_u32_u24 v55, {2*kimg.TLEN[4]}, v53\n  v_add3_u32 v{dst}, v51, v55, v54")
    def aaddr(P, dst):
        ae, ao = {4: (W3, U2), 8: (W5, W3 - 8), 16: (W9, W7 - 16)}[P]
        A(f"  v_mul_u32_u24 v51, {ao - ae}, v53\n  v_mul_u32_u24 v55, {2*P}, v56\n  v_add3_u32 v51, v51, v55, v57\n  v_add_u32 v{dst}, {ae - 32*P}, v51")
    def tread(reg, va, off):
        A(f"  ds_read_b64 {vr(reg,2)}, v{va} offset:{off}\n  ds_read_b64 {vr(reg+2,2)}, v{va} offset:{off+8}")
    treg = {}
    A(f"  s_cmp_ge_u32 s3, 2\n  s_cbranch_scc1 {L}_tBC")
    taddr("R0", vTo)
    for k in range(0, 17, 2):
        treg[("R0", k)] = TP + 2 * k; tread(TP + 2 * k, vTo, KI + 32 * (16 - k))
    treg[("RC",)] = TP + 36; tread(TP + 36, vTo, KI + 2 * kimg.RC_OFF)
    A(f"  s_branch {L}_tdone\n{L}_tBC:\n  s_cmp_eq_u32 s3, 3\n  s_cbranch_scc1 {L}_tC")
    taddr("T4", vTo); aaddr(4, vAa)
    for kap in range(8):
        treg[("T", 4, kap)] = TP + 4 * kap; tread(TP + 4 * kap, vTo, KI + 2 * F["T4"][0] + 32 * kap)
    A(f"  s_branch {L}_tdone\n{L}_tC:")
    taddr("T8", vTo); taddr("T16", vTo2); aaddr(8, vAa); aaddr(16, vAb)
    for kap in range(6):
        treg[("T", 8, kap)] = TP + 4 * kap; tread(TP + 4 * kap, vTo, KI + 2 * F["T8"][0] + 32 * kap)
    for kap in range(5):
        treg[("T", 16, kap)] = TP + 24 + 4 * kap; tread(TP + 24 + 4 * kap, vTo2, KI + 2 * F["T16"][0] + 32 * kap)
    A(f"{L}_tdone:")
    stamp()
    A(f"""
  s_cmp_lg_u32 s3, 0
  s_cbranch_scc1 {L}_polled
  v_mov_b32 v12, 0
  s_mov_b32 s21, 200000
  s_add_u32 s30, s38, {WS_SY}
  s_addc_u32 s31, s39, 0
  s_waitcnt vmcnt(0)
{L}_poll0:
  v_cmp_eq_u32 vcc, 0, v125
  s_sub_u32 s21, s21, 1
  s_cmp_eq_u32 s21, 0
  s_cbranch_scc1 {L}_polled
  s_cbranch_vccz {L}_poll1a
  global_load_dword v125, v12, s[36:37] sc1
  s_waitcnt vmcnt(0)
  s_branch {L}_poll0
{L}_poll1a:
  v_lshrrev_b32 v12, 2, v1
  v_lshlrev_b32 v12, 7, v12
  v_and_b32 v13, 3, v1
  v_lshl_add_u32 v12, v13, 3, v12
{L}_poll:
  global_load_dwordx2 v[126:127], v12, s[30:31] sc1
  s_sub_u32 s21, s21, 1
  s_waitcnt vmcnt(0)
  v_and_b32 v13, v126, v127
  v_cmp_ne_u32 vcc, 1, v13
  s_cmp_eq_u32 s21, 0
  s_cbranch_scc1 {L}_polled
  s_cbranch_vccz {L}_polled
  s_sleep {slp}
  s_branch {L}_poll
{L}_polled:
  s_barrier
""")
    stamp()
    def conv_pf(lab):
        A(f"  s_cmp_ge_u32 s3, 2\n  s_cbranch_scc1 {L}_{lab}")
        A(f"  s_and_b32 s42, s2, 7\n  s_sub_u32 s43, s2, {NLN}\n  s_lshr_b32 s43, s43, 3\n  s_lshl_b32 s43, s43, 7\n  v_add_u32 v124, s43, v0")
        gen_prefetch(A, 1, 42, 124, 80 * 128, 40, 44, 125, 127, half=True)
        A(f"{L}_{lab}:")
    SRC, OO, WA, WT = 92, 100, 108, 60
    E = lambda j: SRC + 2 + j
    O = lambda j: OO + 2 + j
    W = lambda a, j: WA + 4 * a + j
    A(f"""
  buffer_load_dwordx4 {vr(E(0),4)}, v{vU}, s[8:11], 0 offen sc1
  s_waitcnt vmcnt(0)
  ds_write_b128 v{vWr}, {vr(E(0),4)} offset:{U0}
  s_waitcnt lgkmcnt(0)
  s_barrier
""")
    stamp()
    if cpf == 1: conv_pf("cpf")
    A(f"  ds_read_b64 {vr(E(-2),2)}, v{vWr} offset:{U0 - 8}\n  ds_read_b64 {vr(E(4),2)}, v{vWr} offset:{U0 + 16}")
    for j in range(0, 3): A(f"  v_alignbit_b32 v{O(j)}, v{E(j+1)}, v{E(j)}, 16")
    A(f"  v_pk_mov_b32 {vr(WT+10,2)}, {vr(E(0),2)}, {vr(E(2),2)} op_sel:[1,0]")
    A("  s_waitcnt lgkmcnt(0)")
    for j in (-1, 3, -2, 4): A(f"  v_alignbit_b32 v{O(j)}, v{E(j+1)}, v{E(j)}, 16")
    A(f"  v_pk_mov_b32 {vr(WT+8,2)}, {vr(E(-2),2)}, {vr(E(0),2)} op_sel:[1,0]")
    def chainw(dst, src, x, y, off):
        for j in range(4): A(f"  v_pk_add_f16 v{W(dst,j)}, v{src(j)}, v{x(j)}")
        for j in range(4): A(f"  v_pk_add_f16 v{W(dst,j)}, v{W(dst,j)}, v{y(j)}")
        A(f"  ds_write_b128 v{vWr}, {vr(W(dst,0),4)} offset:{off}")
    A(f"  ds_write_b128 v{vWr}, {vr(WT+8,4)} offset:{U2}")
    chainw(0, lambda j: O(j-1), E, O, W3)
    chainw(1, lambda j: W(0,j), lambda j: E(j-1), lambda j: E(j+1), W5)
    A(f"  s_cmp_ge_u32 s3, 2\n  s_cbranch_scc1 {L}_prepdone")
    chainw(2, lambda j: W(1,j), lambda j: O(j-2), lambda j: O(j+1), W7)
    chainw(3, lambda j: W(2,j), lambda j: E(j-2), lambda j: E(j+2), W9)
    A(f"""
  s_cmp_lg_u32 s3, 0
  s_cbranch_scc1 {L}_prepdone
  v_pack_b32_f16 v{WT}, v{E(0)}, v{W(0,0)}
  v_pack_b32_f16 v{WT+1}, v{W(1,0)}, v{W(2,0)}
  v_lshlrev_b32 v{WT+2}, 16, v{E(0)}
  v_pack_b32_f16 v{WT+3}, v{W(0,0)}, v{W(1,0)}
  s_mov_b64 exec, 1
  ds_write_b64 v{vWr}, {vr(WT,2)} offset:{W9 - 8}
  ds_write_b64 v{vWr}, {vr(WT+2,2)} offset:{W7 - 8}
  ds_write_b32 v{vWr}, v{WT} offset:{W5 - 4}
  ds_write_b32 v{vWr}, v{WT+2} offset:{W3 - 4}
  s_mov_b64 exec, -1
{L}_prepdone:
  s_waitcnt lgkmcnt(0)
  s_barrier
""")
    stamp()
    if cpf == 2: conv_pf("cpf")
    def role(kind, tiles):
        lq = []
        def ds(tag, txt): A(txt); lq.append(tag)
        def lwait(tags):
            idxs = [i for i, t in enumerate(lq) if t in tags]
            if not idxs: return
            n = min(len(lq) - 1 - max(idxs), 15)
            A(f"  s_waitcnt lgkmcnt({n})"); del lq[:len(lq) - n]
        items = []
        if kind == "A":
            for e in list(range(-14, 113, 2)) + [16 * t - 63 for t in range(3, 8)]:
                ms = []
                if e & 1: ms.append(((e + 63) // 16, ("RC",), True))
                else:
                    t = -(-e // 16); k = 16 * t - e
                    ms.append((t, ("R0", k), True))
                    if k == 0: ms.append((t + 1, ("R0", 16), True))
                ms = [m for m in ms if m[0] in tiles]
                if ms: items.append(("u", e, ms))
        else:
            for P in ((4,) if kind == "B" else (8, 16)):
                s = 16 // P
                for J in range(-1, s * 7 - 8 + s + 3 + 1):
                    ms = [(t, ("T", P, J - s * t + 8), False) for t in range(8) if 0 <= J - s * t + 8 < s + 4]
                    items.append(("w", (P, J), ms))
        accr = {t: ACC + 4 * i for i, t in enumerate(tiles)}
        def load(idx):
            kd, x, _ = items[idx]
            r = DF + 4 * (idx % NDF)
            if kd == "u":
                ds(("D", idx), f"  ds_read_b128 {vr(r,4)}, v{vB0} offset:{32*(x+16)}")
            else:
                P, J = x
                va = vAb if P == 16 else vAa
                for h in range(2):
                    ds(("D", idx), f"  ds_read_b64_tr_b16 {vr(r+2*h,2)}, v{va} offset:{2*P*(16*(J+1)+4*h)}")
        assert PF + WB <= NDF + 1
        for idx in range(PF): load(idx)
        inited = set()
        for idx, (kd, x, ms) in enumerate(items):
            if idx + PF < len(items): load(idx + PF)
            r = DF + 4 * (idx % NDF)
            for (t, ttag, toepA) in ms:
                if ("D", idx) in lq: lwait({("D", idx + k) for k in range(WB)})
                acc = vr(accr[t], 4); c = acc if t in inited else "0"; inited.add(t)
                tr_ = vr(treg[ttag], 4)
                if toepA: A(f"  v_mfma_f32_16x16x32_f16 {acc}, {tr_}, {vr(r,4)}, {c}")
                else:     A(f"  v_mfma_f32_16x16x32_f16 {acc}, {vr(r,4)}, {tr_}, {c}")
        return accr
    exB = {t: EXS[t] for t in range(8)}
    exC = {t: EXS[7 + t] for t in range(1, 8)}
    A(f"  s_cmp_ge_u32 s3, 2\n  s_cbranch_scc1 {L}_rBC\n  s_cmp_eq_u32 s3, 1\n  s_cbranch_scc1 {L}_rA2")
    def finA(tiles):
        accr = role("A", tiles)
        if stamps: A(f"  s_memtime s[{62+2*nst[0]}:{63+2*nst[0]}]")
        A(f"""
  v_and_b32 v14, 15, v1
  v_lshrrev_b32 v15, 4, v1
  v_and_b32 v12, 1, v15
  v_lshlrev_b32 v12, 5, v12
  v_lshl_add_u32 v12, v14, 1, v12
  v_lshrrev_b32 v13, 1, v15
  v_add_u32 v12, v12, v13
  v_mul_u32_u24 v12, {XS}, v12
  s_lshl_b32 s20, s16, 4
  v_add_u32 v12, s20, v12
  v_mov_b32 v14, s27
  s_waitcnt lgkmcnt(0)
  s_barrier
""")
        n = 0
        for i, t in enumerate(tiles):
            A(f"  ds_read_b128 {vr(DF+8*i,4)}, v{vEx} offset:{exB[t]}"); n += 1
            if t in exC: A(f"  ds_read_b128 {vr(DF+8*i+4,4)}, v{vEx} offset:{exC[t]}"); n += 1
        for i, t in enumerate(tiles):
            a = accr[t]
            n -= 2 if t in exC else 1
            A(f"  s_waitcnt lgkmcnt({n})")
            for r in (0, 2): A(f"  v_pk_add_f32 {vr(a+r,2)}, {vr(a+r,2)}, {vr(DF+8*i+r,2)}")
            if t in exC:
                for r in (0, 2): A(f"  v_pk_add_f32 {vr(a+r,2)}, {vr(a+r,2)}, {vr(DF+8*i+4+r,2)}")
            for r in (0, 2): A(f"  v_pk_mul_f32 {vr(a+r,2)}, {vr(a+r,2)}, v[14:15] op_sel_hi:[1,0]")
            o = TP + 4 * (i >> 1) + 2 * (i & 1)
            A(f"  v_cvt_pk_bf16_f32 v{o}, v{a}, v{a+1}\n  v_cvt_pk_bf16_f32 v{o+1}, v{a+2}, v{a+3}")
            if i & 1:
                b = TP + 4 * (i >> 1)
                A(f"  s_mov_b32 s20, {32 * (t - 1) * XS}\n  s_nop 0\n  v_permlane16_swap_b32 v{b}, v{b+2}\n  v_permlane16_swap_b32 v{b+1}, v{b+3}")
                A(f"  buffer_store_dwordx4 {vr(b,4)}, v12, s[12:15], s20 offen")
        A(f"  s_branch {L}_fin")
    finA([0, 1, 2, 3])
    A(f"{L}_rA2:")
    finA([4, 5, 6, 7])
    A(f"{L}_rBC:\n  s_cmp_eq_u32 s3, 3\n  s_cbranch_scc1 {L}_rC")
    def finBC(kind, tiles, ex):
        accr = role(kind, tiles)
        if stamps: A(f"  s_memtime s[{62+2*nst[0]}:{63+2*nst[0]}]")
        A("  s_nop 1")
        for t in tiles:
            A(f"  ds_write_b128 v{vEx}, {vr(accr[t],4)} offset:{ex[t]}")
        A(f"  s_waitcnt lgkmcnt(0)\n  s_barrier\n  s_branch {L}_fin")
    finBC("B", list(range(8)), exB)
    A(f"{L}_rC:")
    finBC("C", list(range(1, 8)), exC)
    A(f"{L}_fin:")
    if stamps:
        nst[0] += 1
        A(f"  s_waitcnt vmcnt(0)\n  s_memtime s[{62+2*nst[0]}:{63+2*nst[0]}]\n  s_waitcnt lgkmcnt(0)"); nst[0] += 1
        A.srd(84, 38, 0x100000, 0x2040000)
        A(f"  s_lshl_b32 s83, s16, 2\n  s_add_u32 s83, s83, s3\n  s_lshl_b32 s83, s83, 5\n  v_mov_b32 v2, s83")
        for k in range(nst[0]):
            A(f"  s_sub_u32 s83, s{62+2*k}, s60\n  v_mov_b32 v3, s83\n  buffer_store_dword v3, v2, s[84:87], 0 offen offset:{4*k}")
    A("  s_endpgm")
    A(f"{L}_pfe:")
    if nend:
        A(f"""
  s_cmp_ge_u32 s2, {NWG}
  s_cbranch_scc1 {L}_done
  s_load_dwordx2 s[4:5], s[0:1], {KA['w1']}
  s_and_b32 s16, s2, 7
  s_sub_u32 s17, s2, {NLN + 640}
  s_lshr_b32 s17, s17, 3
  s_lshl_b32 s17, s17, 8
  v_add_u32 v1, s17, v0
""")
        if code:
            A(f"""
  s_getpc_b64 s[20:21]
{L}_pc:
  s_add_u32 s20, s20, code_pf_begin-{L}_pc
  s_addc_u32 s21, s21, 0
  s_mov_b32 s22, code_pf_end-code_pf_begin
  s_mov_b32 s23, 0x00020000
  v_lshlrev_b32 v2, 7, v1
  buffer_load_dword v12, v2, s[20:23], 0 offen
""")
        A("  s_waitcnt lgkmcnt(0)")
        if "h" in pend: gen_prefetch(A, 1, 16, 1, nend // 8 * 256, 4, 8, 2, 4, half=True)
    A(f"{L}_done:\n  s_endpgm")
    A(".p2align 8\ncode_pf_begin:")
    A.kernel_desc(name, 128, 96 if stamps else 56)
    idx = [i * 4 for i in kimg.img] + [kimg.ZERO * 4] * (4096 - kimg.NEL)
    tbl = ".p2align 4\n.type kimg_idx,@object\nkimg_idx:\n"
    for i in range(0, 4096, 16):
        tbl += "  .short " + ", ".join(str(v) for v in idx[i:i+16]) + "\n"
    tbl += ".size kimg_idx, 8192"
    A.desc.append(tbl)
```

```python
import numpy as np

GROWS = [j for j in range(8)] + [128 + j for j in range(8)] \
      + [256 + j for j in (0, 2, 4, 6)] + [384 + j for j in (0, 2, 4, 6)] \
      + [512, 516, 640, 644, 768, 772, 896, 900] \
      + [1024 + 128 * a for a in range(8)] + [2048]
ROW_D255, ROW_D510, ROW_N1024, ROW_ZERO = 41, 42, 43, 44
def kf_index(row, e):
    return e * 48 + row
def idx_of_pos(v):
    for r, g in enumerate(GROWS):
        if v >= g and (v - g) % 8 == 0 and (v - g) // 8 < 16:
            if r == 40 and v != 2048: continue
            return kf_index(r, (v - g) // 8)
    raise ValueError(v)
ZERO = kf_index(ROW_ZERO, 0)
def K0(j):
    if j < 0 or j > 255: return ZERO
    if j == 255: return kf_index(ROW_D255, 15)
    return idx_of_pos(j)
def KC(j):
    return kf_index(ROW_N1024, 0) if j in (1020, 1021) else ZERO
def T(P, par, q):
    hi = 128 if (P == 16 and par == 0) else 127
    if q < 64 or q > hi: return ZERO
    v = P * q + par * (P // 2)
    if v == 510: return kf_index(ROW_D510, 15)
    return idx_of_pos(v)

fam = {}
img = []
def add(name, R, shift):
    n = len(R)
    cs = (n + 3) // 4 * 4
    while shift < 4 and cs % 64 != 32: cs += 4
    fam[name] = (len(img), cs)
    for c in range(4 // shift):
        v = R[c * shift:]
        img.extend(v + [ZERO] * (cs - len(v)))
add("R0", [K0(287 - x) for x in range(304)] + [KC(1039 - x) for x in range(48)], 1)
RC_OFF = 304
TLEN = {}
for P in (16, 8, 4):
    s = 16 // P
    Q0 = 15 * s + 128
    n = (31 * s + 64 + 1 + 7) // 8 * 8
    TLEN[P] = n
    add(f"T{P}", [T(P, 0, Q0 - x) for x in range(n)] + [T(P, 1, Q0 - x) for x in range(n)], s)
while len(img) % 8: img.append(ZERO)
NEL = len(img)
IMG_BYTES = NEL * 2
KIMG_STRIDE = (IMG_BYTES + 16 + 127) // 128 * 128
if __name__ == "__main__":
    print(fam, TLEN, NEL, IMG_BYTES, KIMG_STRIDE)
```

```python
import sys
from asmlib import *
from k12 import gen_k12
from k3 import gen_k3
from gemm3 import gen_gemm
HEADER = open("sequential_preLN__ssm_conv_s4d__mixer_token_mlp__prompt.s.ref").read().split("\n")
HEADER = "\n".join(l for l in HEADER if l.startswith(";") and "@launch" not in l and "Override" not in l and "grid=ceil" not in l)
opt = dict(a.split('=') for a in sys.argv[1:])
I = lambda k, d: int(opt.get(k, d))
A = Asm()
gen_k12(A, nend=I('nend', 8), pend=opt.get('pend', ''), stamps=I('st1', 0), PF=I('PF', 5), WB=I('WB', 2), prio=I('prio', 1), slp=I('slp', 2), grp=I('grp', 0), cpf=I('cpf', 2), early=I('early', 1), REP=I('REP', 16), NLIN=I('NLIN', 8))
gen_k3(A, NW=10, y16=1)
kw = dict(stamps=I('st', 0), pfx=0, pfw=0, stag=0, map18=1, reps=I('reps', 2), mimic=I('mg', 0), ks2=0)
gen_gemm(A, 1, I('R', 5), pf2=I('pf2', 18), **kw)
gen_gemm(A, 2, I('R', 5), **kw)
A('code_pf_end:')
print(A.text(HEADER))
```

```python
from asmlib import *
import kimg_v2 as kimg
from pf import gen_prefetch

LOG2E = 1.4426950408889634
def f32r(x):
    return struct.unpack("<f", struct.pack("<f", x))[0]
NLN = 128
WS_U8 = WS_UT
US = 640 * 32 + 128
WS_SY = 0x1D00000

def gen_k12(A, name="k12_kernel", nend=0, pend="", code=True, stamps=False, PF=5, WB=2, prio=1, slp=2, grp=0, cpf=0, early=1, REP=16, NLIN=8):
    RS = 1312
    TGS = 544
    TG, TE, KFO = 0, 48 * TGS, 64 * TGS
    LDS = 40960
    KI = 0
    AB = 6656
    U0 = AB + 576
    W9 = U0 + 4096 + 512
    W7 = W9 + 2048 + 528
    W5 = W7 + 2048 + 256
    W3 = W5 + 4096 + 272
    U2 = W3 + 4096 + 128
    AE = U2 + 4096
    assert kimg.IMG_BYTES <= AB and AE <= KFO + 0 and AE % 16 == 0, AE
    EXS = [1024 * i for i in range(6)] + [AE + 1024 * i for i in range((LDS - AE) // 1024)]
    assert len(EXS) >= 15
    NWG = 8 + NLN + 640
    FPL = NLN // NLIN
    RSZ = NLIN * 128
    A.add_launch(name, NWG, 256, LDS)
    A.kernel_begin(name)
    L = name
    A(f"""
  s_cmp_ge_u32 s2, 8
  s_cbranch_scc1 {L}_main
  s_cmp_lg_u32 s2, 0
  s_cbranch_scc1 {L}_svc2
  s_load_dwordx4 s[4:7], s[0:1], {KA['dbg']}
  v_lshlrev_b32 v2, 4, v0
  v_pk_mov_b32 v[4:5], 0, 0
  v_pk_mov_b32 v[6:7], 0, 0
  s_mov_b32 s10, {REP * RSZ}
  s_mov_b32 s11, 0x00020000
  v_mov_b32 v3, 1
  s_waitcnt lgkmcnt(0)
  s_add_u32 s8, s6, {WS_SY}
  s_addc_u32 s9, s7, 0
""")
    for k in range(-(-REP * RSZ // 4096)):
        A(f"  s_mov_b32 s12, {4096*k}\n  buffer_store_dwordx4 v[4:7], v2, s[8:11], s12 offen sc1")
    A(f"""
  s_waitcnt vmcnt(0)
  s_barrier
  global_store_dword v4, v3, s[4:5] sc1
{L}_svc2:
  s_getpc_b64 s[20:21]
{L}_pc:
  s_sub_u32 s20, s20, {L}_pc-{L}
  s_subb_u32 s21, s21, 0
  s_mov_b32 s22, code_pf_end-{L}
  s_mov_b32 s23, 0x00020000
  v_lshlrev_b32 v2, 7, v0
  buffer_load_dword v12, v2, s[20:23], 0 offen
  s_endpgm
{L}_main:
  s_cmp_ge_u32 s2, {NWG}
  s_cbranch_scc1 {L}_done
  s_sub_u32 s2, s2, 8
  s_cmp_ge_u32 s2, {NLN}
  s_cbranch_scc1 {L}_kgen
  ; ---------------- LN1 ----------------
  {'s_memtime s[60:61]' if stamps else ''}
  s_load_dwordx2 s[4:5], s[0:1], {KA['x']}
  s_load_dwordx2 s[6:7], s[0:1], {KA['ws']}
  s_load_dwordx2 s[28:29], s[0:1], {KA['dbg']}
  {'s_setprio 3' if prio else ''}
  s_lshl_b32 s16, s2, 4                ; t0
  v_lshrrev_b32 v1, 4, v0              ; row
  v_and_b32 v2, 15, v0                 ; q
  v_add_u32 v3, s16, v1
  v_mul_u32_u24 v3, 1280, v3
  v_lshl_add_u32 v3, v2, 4, v3
  s_waitcnt lgkmcnt(0)
""")
    A(f"""
  s_add_u32 s30, s6, {WS_SY}
  s_addc_u32 s31, s7, 0
""")
    A.srd(8, 4, 2048 * 1280)
    for i in range(5):
        A(f"  buffer_load_dwordx4 {vr(8+4*i,4)}, v3, s[8:11], 0 offen offset:{256*i}")
    A.srd(12, 6, 128 * US, WS_U8)
    A.srd(20, 6, 2048 * 8, WS_ST1)
    A(f"""
  v_mul_u32_u24 v4, {RS}, v1
  v_lshl_add_u32 v4, v2, 4, v4
  v_bfe_u32 v5, v0, 4, 1               ; th
  v_bfe_u32 v6, v0, 2, 2               ; r
  v_lshl_add_u32 v5, v5, 3, v6
  v_mul_u32_u24 v5, {RS}, v5
  v_bfe_u32 v6, v0, 5, 1               ; cgl
  v_lshl_add_u32 v5, v6, 5, v5
  v_and_b32 v7, 3, v0
  v_lshl_add_u32 v5, v7, 3, v5
  v_lshrrev_b32 v7, 6, v0              ; wave
  v_mul_u32_u24 v72, 320, v7
  v_add_u32 v5, v5, v72
  v_mul_u32_u24 v72, 160, v7
  v_lshl_add_u32 v72, v6, 4, v72
  v_add_u32 v72, v72, v2
  v_lshlrev_b32 v72, 5, v72
  v_and_b32 v6, 16, v0                 ; th*16
  s_mul_i32 s17, s2, {US}
  v_add3_u32 v6, v6, v72, s17
  v_add_u32 v7, s16, v1
  v_lshlrev_b32 v7, 3, v7
""")
    X = 32
    for i in range(5):
        A(f"  s_waitcnt vmcnt({4-i})")
        for k in range(4):
            A(f"  v_lshlrev_b32 v{X+8*i+2*k}, 16, v{8+4*i+k}")
            A(f"  v_and_b32 v{X+8*i+2*k+1}, 0xffff0000, v{8+4*i+k}")
        if i == 0:
            A(f"  v_pk_add_f32 v[72:73], {vr(X,2)}, {vr(X+2,2)}")
            A(f"  v_pk_add_f32 v[74:75], {vr(X+4,2)}, {vr(X+6,2)}")
        else:
            for k in range(4):
                a = 72 + 2 * (k & 1)
                A(f"  v_pk_add_f32 {vr(a,2)}, {vr(a,2)}, {vr(X+8*i+2*k,2)}")
    if stamps: A("  s_memtime s[62:63]")
    def rowsum(v):
        for sh in (8, 4, 2, 1):
            A(f"  s_nop 1\n  v_add_f32 v{v}, v{v}, v{v} row_ror:{sh}")
    A("  v_pk_add_f32 v[72:73], v[72:73], v[74:75]\n  s_nop 0\n  v_add_f32 v72, v72, v73")
    rowsum(72)
    A(f"  v_mul_f32 v72, {fbits(-1.0/640)}, v72     ; -mean")
    D = 80
    for k in range(20):
        A(f"  v_pk_add_f32 {vr(D+2*k,2)}, {vr(X+2*k,2)}, v[72:73] op_sel_hi:[1,0]")
    A(f"  v_pk_mul_f32 v[74:75], {vr(D,2)}, {vr(D,2)}")
    A(f"  v_pk_mul_f32 v[76:77], {vr(D+2,2)}, {vr(D+2,2)}")
    for k in range(2, 20):
        a = 74 + 2 * (k & 1)
        A(f"  v_pk_fma_f32 {vr(a,2)}, {vr(D+2*k,2)}, {vr(D+2*k,2)}, {vr(a,2)}")
    A(f"""
  v_cvt_pk_bf16_f32 v78, -v72, -v72
  v_pk_add_f32 v[74:75], v[74:75], v[76:77]
  v_and_b32 v78, 0xffff0000, v78            ; m_bf
  v_add_f32 v74, v74, v75
""")
    def rnd(k):
        A(f"  v_cvt_pk_bf16_f32 v{X+2*k+1}, v{X+2*k}, v{X+2*k+1}")
        A(f"  v_lshlrev_b32 v{X+2*k}, 16, v{X+2*k+1}\n  v_and_b32 v{X+2*k+1}, 0xffff0000, v{X+2*k+1}")
    chain = []
    for sh in (8, 4, 2, 1): chain.append(f"  v_add_f32 v74, v74, v74 row_ror:{sh}")
    chain += [f"  v_mul_f32 v74, {fbits(1.0/640)}, v74", "  v_cvt_pk_bf16_f32 v74, v74, v74", "  v_lshlrev_b32 v74, 16, v74",
              f"  v_add_f32 v74, {fbits(1e-5)}, v74", "  v_cvt_pk_bf16_f32 v74, v74, v74", "  v_lshlrev_b32 v74, 16, v74",
              "  v_sqrt_f32 v74, v74", "  v_cvt_pk_bf16_f32 v74, v74, v74", "  v_lshlrev_b32 v74, 16, v74", "  v_rcp_f32 v79, v74"]
    for k in range(20):
        A(f"  v_pk_add_f32 {vr(X+2*k,2)}, {vr(X+2*k,2)}, v[78:79] op_sel_hi:[1,0] neg_lo:[0,1] neg_hi:[0,1]")
        rnd(k)
        if k < len(chain): A(chain[k])
    for k in range(20):
        A(f"  v_pk_mul_f32 {vr(X+2*k,2)}, {vr(X+2*k,2)}, v[78:79] op_sel:[0,1] op_sel_hi:[1,1]")
    for k in range(20):
        rnd(k)
        A(f"  v_cvt_pk_f16_f32 v{8+k}, v{X+2*k}, v{X+2*k+1}")
        if k % 4 == 3:
            A(f"  ds_write_b128 v4, {vr(8+k-3,4)} offset:{256*(k//4)}")
    A(f"""
  s_movk_i32 s26, 0x1000
  v_mov_b32 v120, 0
  v_mov_b32 v121, 0
  v_readfirstlane_b32 s19, v0
  s_cmp_lg_u32 s19, 0
  s_cbranch_scc1 {L}_noin
  global_load_dword v121, v120, s[28:29] sc1
{L}_noin:
  v_cmp_eq_u32 vcc, 0, v2
  s_and_saveexec_b64 s[24:25], vcc
  buffer_store_dwordx2 v[78:79], v7, s[20:23], 0 offen
  s_mov_b64 exec, s[24:25]
  {'s_memtime s[64:65]' if stamps else ''}
  s_waitcnt lgkmcnt(0)
  s_barrier
""")
    for k in range(5):
        for h in range(2):
            A(f"  ds_read_b64_tr_b16 {vr(32+4*k+2*h,2)}, v5 offset:{64*k + 4*h*RS}")
    for k in range(5):
        A(f"  s_waitcnt lgkmcnt({8-2*k})")
        A(f"  buffer_store_dwordx4 {vr(32+4*k,4)}, v6, s[12:15], {'0' if k < 4 else 's26'} offen offset:{1024*(k&3)} sc1")
    A(f"""
  {'s_memtime s[66:67]' if stamps else ''}
  s_waitcnt vmcnt(0)
  {'s_memtime s[68:69]' if stamps else ''}
  s_barrier
  {'s_memtime s[70:71]' if stamps else ''}
  v_cmp_gt_u32 vcc, {REP}, v0
  s_and_saveexec_b64 s[24:25], vcc
  s_cbranch_execz {L}_done
  s_mov_b32 s21, 200000
{L}_ipoll:
  v_cmp_eq_u32 vcc, 0, v121
  s_sub_u32 s21, s21, 1
  s_cmp_eq_u32 s21, 0
  s_cbranch_scc1 {L}_iok
  s_cbranch_vccz {L}_iok
  s_sleep 8
  global_load_dword v121, v120, s[28:29] sc1
  s_waitcnt vmcnt(0)
  s_branch {L}_ipoll
{L}_iok:
  s_and_b32 s17, s2, {NLIN - 1}
  s_lshl_b32 s17, s17, 7
  s_lshr_b32 s18, s2, {NLIN.bit_length() - 1}
  s_lshl_b32 s18, s18, 2
  s_add_u32 s17, s17, s18
  v_mul_u32_u24 v1, {RSZ}, v0
  v_add_u32 v1, s17, v1
  v_mov_b32 v2, 1
  global_store_dword v1, v2, s[30:31] sc1
""")
    if stamps:
        A("  s_waitcnt vmcnt(0)\n  s_memtime s[72:73]\n  s_waitcnt lgkmcnt(0)")
        A.srd(84, 6, 0x100000, 0x2060000)
        A(f"  s_lshl_b32 s83, s2, 5\n  v_mov_b32 v4, s83")
        for k in range(6):
            A(f"  s_sub_u32 s83, s{62+2*k}, s60\n  v_mov_b32 v5, s83\n  buffer_store_dword v5, v4, s[84:87], 0 offen offset:{4*k}")
    A("  s_endpgm")
    Lhi = f32r(LOG2E); Llo = LOG2E - Lhi
    nst = [0]
    def stamp():
        if stamps:
            A(f"  s_memtime s[{62+2*nst[0]}:{63+2*nst[0]}]\n  s_waitcnt lgkmcnt(0)")
            nst[0] += 1
    A(f"""
{L}_kgen:
  {'s_memtime s[60:61]' if stamps else ''}
  s_sub_u32 s16, s2, {NLN}
  s_and_b32 s17, s16, 7
  s_mul_i32 s17, s17, 80
  s_lshr_b32 s16, s16, 3
  s_add_u32 s16, s16, s17
  s_load_dwordx4 s[4:7], s[0:1], {KA['logA']}
  s_load_dwordx4 s[8:11], s[0:1], {KA['Cre']}
  s_load_dwordx2 s[12:13], s[0:1], {KA['logdt']}
  s_load_dwordx4 s[36:39], s[0:1], {KA['dbg']}
  s_load_dwordx2 s[40:41], s[0:1], {KA['w1']}
  s_getpc_b64 s[18:19]
  s_add_u32 s18, s18, kimg_idx@rel32@lo+4
  s_addc_u32 s19, s19, kimg_idx@rel32@hi+12
  v_lshrrev_b32 v1, 6, v0
  v_lshlrev_b32 v2, 4, v0
  v_readfirstlane_b32 s3, v1              ; wave
  global_load_dwordx4 v[60:63], v2, s[18:19]
  v_add_u32 v2, 0x1000, v2
  global_load_dwordx4 v[64:67], v2, s[18:19]
  v_and_b32 v1, 127, v0                   ; mode
  s_lshl_b32 s17, s16, 8
  v_lshl_add_u32 v2, v1, 1, s17
  v_xor_b32 v3, 128, v2
  s_lshl_b32 s20, s16, 1
  s_and_b32 s21, s20, 0xfffffffc
  s_waitcnt lgkmcnt(0)
  s_load_dword s22, s[12:13], s21
  global_load_ushort v4, v2, s[4:5]       ; logA
  global_load_ushort v5, v2, s[6:7]       ; Aim
  global_load_ushort v6, v2, s[8:9]       ; Cre
  global_load_ushort v7, v2, s[10:11]     ; Cim
  global_load_ushort v8, v3, s[8:9]
  global_load_ushort v9, v3, s[10:11]
  v_lshlrev_b32 v1, 2, v1
""")
    F = kimg.fam
    vB0 = vAa = 112; vTo, vTo2, vAb, vWr, vEx, vU, vY, vFA, vFB, vKF, vFl = 113, 114, 115, 116, 117, 118, 119, 120, 121, 122, 123
    vFd, vIn, vZ = 124, 126, 127
    TP, ACC, NDF, DF = 4, 48, 8, 80
    GI = 68
    def taddr(fam_, dst):
        if fam_ == "R0":
            A(f"  v_mul_u32_u24 v51, {2*F['R0'][1]}, v49\n  v_lshl_add_u32 v51, v50, 1, v51\n  v_lshl_add_u32 v{dst}, v15, 4, v51")
        elif fam_ == "T16":
            A(f"  v_mul_u32_u24 v51, {2*F['T16'][1]}, v49\n  v_lshl_add_u32 v51, v50, 1, v51\n  v_mul_u32_u24 v55, {2*kimg.TLEN[16]}, v53\n  v_add3_u32 v{dst}, v51, v55, v54")
        elif fam_ == "T8":
            A(f"  v_and_b32 v51, 1, v48\n  v_mul_u32_u24 v51, {2*F['T8'][1]}, v51\n  v_and_b32 v55, 14, v48\n  v_lshl_add_u32 v51, v55, 2, v51\n  v_mul_u32_u24 v55, {2*kimg.TLEN[8]}, v53\n  v_add3_u32 v{dst}, v51, v55, v54")
        else:
            A(f"  v_lshlrev_b32 v51, 3, v48\n  v_mul_u32_u24 v55, {2*kimg.TLEN[4]}, v53\n  v_add3_u32 v{dst}, v51, v55, v54")
    def aaddr(P, dst):
        ae, ao = {4: (W3, U2), 8: (W5, W3 - 8), 16: (W9, W7 - 16)}[P]
        A(f"  v_mul_u32_u24 v51, {ao - ae}, v53\n  v_mul_u32_u24 v55, {2*P}, v56\n  v_add3_u32 v51, v51, v55, v57\n  v_add_u32 v{dst}, {ae - 32*P}, v51")
    A(f"""
  v_and_b32 v13, 63, v0                ; lane
  v_and_b32 v14, 15, v0                ; n / b
  v_bfe_u32 v15, v0, 4, 2              ; g
  v_lshlrev_b32 v{vWr}, 4, v0
  v_lshlrev_b32 v{vEx}, 4, v13
  v_lshrrev_b32 v{vU}, 1, v0
  v_mul_u32_u24 v{vU}, {US}, v{vU}
  v_and_b32 v51, 1, v0
  v_lshl_add_u32 v{vU}, v51, 4, v{vU}
  s_lshl_b32 s29, s16, 5
  v_add_u32 v{vU}, s29, v{vU}
  v_mul_u32_u24 v{vFB}, {TGS}, v14
  v_lshl_add_u32 v{vFB}, v15, 4, v{vFB}
  s_mul_i32 s30, s3, {16*TGS}
  v_add_u32 v{vFA}, s30, v{vFB}
  v_mul_u32_u24 v{vKF}, 192, v14
  v_lshl_add_u32 v{vKF}, v15, 4, v{vKF}
  s_lshl_b32 s30, s3, 6
  v_add_u32 v{vKF}, s30, v{vKF}
  v_mov_b32 v{vZ}, 0
  v_mov_b32 v{vFl}, 0
  v_mov_b32 v{vY}, 0
  v_sub_u32 v48, 15, v14               ; q
  v_and_b32 v49, 3, v48
  v_and_b32 v50, 12, v48
  v_and_b32 v52, 1, v15                ; hb
  v_lshrrev_b32 v53, 1, v15            ; pi
  s_cmp_ge_u32 s3, 2
  s_cbranch_scc1 {L}_aBC
  v_lshlrev_b32 v51, 5, v14
  v_lshl_add_u32 v51, v15, 4, v51
  v_add_u32 v{vB0}, {U0 - 544}, v51
  v_lshl_add_u32 v51, v52, 4, v14
  v_mul_u32_u24 v{vY}, {US}, v51
  v_lshl_add_u32 v{vY}, v53, 4, v{vY}
  v_add_u32 v{vY}, s29, v{vY}
""")
    taddr("R0", vTo)
    A(f"""
  s_branch {L}_adone
{L}_aBC:
  v_lshlrev_b32 v54, 4, v52
  v_bfe_u32 v56, v0, 2, 2
  v_lshl_add_u32 v56, v52, 3, v56      ; 8hb + r
  v_and_b32 v57, 3, v0
  v_lshlrev_b32 v57, 3, v57            ; 8*c4
  s_cmp_eq_u32 s3, 3
  s_cbranch_scc1 {L}_aC
""")
    taddr("T4", vTo); aaddr(4, vAa)
    A(f"  s_branch {L}_adone\n{L}_aC:")
    taddr("T8", vTo); taddr("T16", vTo2); aaddr(8, vAa); aaddr(16, vAb)
    A(f"""
  v_lshrrev_b32 v{vFl}, {(FPL // 2).bit_length() - 1}, v13
  v_lshlrev_b32 v{vFl}, 7, v{vFl}
  v_and_b32 v51, {FPL // 2 - 1}, v13
  v_lshl_add_u32 v{vFl}, v51, 3, v{vFl}
  s_and_b32 s30, s2, {REP - 1}
  s_mul_i32 s30, s30, {RSZ}
  v_add_u32 v{vFl}, s30, v{vFl}
{L}_adone:
  s_add_u32 s8, s38, {WS_U8}
  s_addc_u32 s9, s39, 0
  s_mov_b32 s10, {128 * US}
  s_mov_b32 s11, 0x00020000
  s_add_u32 s30, s38, {WS_SY}
  s_addc_u32 s31, s39, 0
  s_add_u32 s32, s38, {WS_Y8}
  s_addc_u32 s33, s39, 0
  s_mov_b32 s34, {128 * US}
  s_mov_b32 s35, 0x00020000
  s_waitcnt vmcnt(6)
""")
    for k in range(8):
        A(f"  v_and_b32 v{GI+2*k}, 0xffff, v{60+k}")
        A(f"  v_lshrrev_b32 v{GI+1+2*k}, 16, v{60+k}")
    A(f"""
  s_waitcnt lgkmcnt(0)
  s_and_b32 s20, s20, 2
  s_lshl_b32 s20, s20, 3
  s_lshr_b32 s22, s22, s20
  s_lshl_b32 s22, s22, 16
  s_mov_b32 s23, {fbits(Lhi)}
  s_mov_b32 s24, {fbits(Llo)}
  v_mov_b32 v10, s22
""")
    def exp_bf16(dst, src, t1, t2):
        A(f"""
  v_mul_f32 v{t1}, s23, v{src}
  v_fma_f32 v{t2}, v{src}, s23, -v{t1}
  v_fma_f32 v{t2}, v{src}, s24, v{t2}
  v_exp_f32 v{t1}, v{t1}
  v_mul_f32 v{t2}, {fbits(0.6931471805599453)}, v{t2}
  v_fma_f32 v{dst}, v{t1}, v{t2}, v{t1}
  v_cvt_pk_bf16_f32 v{dst}, v{dst}, v{dst}
  v_lshlrev_b32 v{dst}, 16, v{dst}
""")
    exp_bf16(10, 10, 11, 12)
    A("  s_waitcnt vmcnt(5)\n  v_lshlrev_b32 v4, 16, v4")
    exp_bf16(4, 4, 11, 12)
    A(f"""
  v_mul_f32 v4, v4, v10
  v_mul_f32 v4, {fbits(-LOG2E)}, v4
  s_waitcnt vmcnt(0)
  v_lshlrev_b32 v5, 16, v5
  v_mul_f32 v5, v5, v10
  v_mul_f32 v5, {fbits(0.15915494309189535)}, v5
  v_lshlrev_b32 v6, 16, v6
  v_lshlrev_b32 v7, 16, v7
  v_lshlrev_b32 v8, 16, v8
  v_lshlrev_b32 v9, 16, v9
  v_max3_f32 v11, |v6|, |v7|, |v8|
  v_max_f32 v11, v11, |v9|
  v_mul_f32 v11, v11, v10
""")
    for sh in (8, 4, 2, 1):
        A(f"  s_nop 1\n  v_max_f32 v11, v11, v11 row_ror:{sh}")
    A(f"""
  s_nop 0
  v_readlane_b32 s25, v11, 0
  v_readlane_b32 s26, v11, 16
  v_readlane_b32 s27, v11, 32
  v_readlane_b32 s28, v11, 48
  v_mul_f32 v6, v6, v10
  v_mul_f32 v7, v7, v10
  s_max_u32 s25, s25, s26
  s_max_u32 s27, s27, s28
  s_max_u32 s25, s25, s27
  s_lshr_b32 s25, s25, 23
  s_max_u32 s25, s25, 1
  s_min_u32 s25, s25, 253
  s_sub_u32 s26, 254, s25
  s_lshl_b32 s26, s26, 23
  s_add_u32 s27, s25, 1
  s_lshl_b32 s27, s27, 23
  v_mul_f32 v6, s26, v6
  v_mul_f32 v7, s26, v7
""")
    def pw(dst, p, t):
        if p == 1:
            A(f"  v_exp_f32 v{t}, v4\n  v_fract_f32 v{t+1}, v5")
        else:
            A(f"  v_mul_f32 v{t}, {fbits(float(p))}, v4\n  v_mul_f32 v{t+1}, {fbits(float(p))}, v5\n  v_exp_f32 v{t}, v{t}\n  v_fract_f32 v{t+1}, v{t+1}")
        A(f"  v_cos_f32 v{dst}, v{t+1}\n  v_sin_f32 v{dst+1}, v{t+1}\n  s_nop 0\n  v_mul_f32 v{dst}, v{dst}, v{t}\n  v_mul_f32 v{dst+1}, v{dst+1}, v{t}")
    tmp = [0]
    def cmul(d, a, b):
        t = 52 + 2 * (tmp[0] & 3); tmp[0] += 1
        A(f"  v_pk_mul_f32 {vr(t,2)}, {vr(a,2)}, {vr(b,2)} op_sel:[1,1] op_sel_hi:[1,0]")
        A(f"  v_pk_fma_f32 {vr(d,2)}, {vr(a,2)}, {vr(b,2)}, {vr(t,2)} op_sel_hi:[0,1,1] neg_lo:[0,0,1]")
    ow = [0]
    def putG(row, a, neg=False):
        o = 48 + (ow[0] & 3); ow[0] += 1
        if neg: A(f"  v_cvt_pk_f16_f32 v{o}, -v{a}, v{a+1}")
        else:   A(f"  v_cvt_pk_f16_f32 v{o}, v{a}, -v{a+1}")
        A(f"  ds_write_b32 v1, v{o} offset:{TG + row*TGS}")
    def putE(col, a):
        o = 48 + (ow[0] & 3); ow[0] += 1
        A(f"  v_cvt_pk_f16_f32 v{o}, v{a}, v{a+1}")
        A(f"  ds_write_b32 v1, v{o} offset:{TE + col*TGS}")
    A(f"  s_cmp_ge_u32 s3, 2\n  s_cbranch_scc1 {L}_part1")
    Wp = lambda j: 12 + 2 * (j - 1)
    pw(Wp(1), 1, 44); pw(28, 128, 40)
    putG(0, 6)
    cmul(Wp(2), Wp(1), Wp(1)); cmul(30, 6, 28)
    cmul(Wp(3), Wp(2), Wp(1)); cmul(Wp(4), Wp(2), Wp(2)); cmul(32, 30, 28)
    putG(8, 30)
    cmul(Wp(5), Wp(4), Wp(1)); cmul(Wp(6), Wp(4), Wp(2)); cmul(Wp(7), Wp(4), Wp(3)); cmul(Wp(8), Wp(4), Wp(4)); cmul(34, 32, 28)
    putG(16, 32); putG(20, 34)
    o = [36, 38, 40, 42]; k = 0
    for j in range(1, 8):
        for hb, row0 in ((6, 0), (30, 8)):
            r = o[k & 3]; k += 1
            cmul(r, hb, Wp(j)); putG(row0 + j, r)
    for jj, j in enumerate((2, 4, 6)):
        for hb, row0 in ((32, 16), (34, 20)):
            r = o[k & 3]; k += 1
            cmul(r, hb, Wp(j)); putG(row0 + jj + 1, r)
    A(f"  v_pk_add_f32 {vr(Wp(7),2)}, {vr(Wp(7),2)}, {vr(Wp(8),2)} neg_lo:[0,1] neg_hi:[0,1]")
    A(f"  v_pk_add_f32 {vr(Wp(6),2)}, {vr(Wp(6),2)}, {vr(Wp(8),2)} neg_lo:[0,1] neg_hi:[0,1]")
    cmul(36, 30, Wp(7)); putG(41, 36)
    cmul(38, 34, Wp(6)); putG(42, 38)
    A(f"  s_branch {L}_tabdone\n{L}_part1:")
    pw(12, 8, 44); pw(28, 128, 40); pw(30, 512, 44); pw(32, 4, 40)
    A(f"  v_mov_b32 v48, 0x3c00\n  ds_write_b32 v1, v48 offset:{TE}")
    A(f"  v_mov_b32 v49, 0\n  ds_write_b32 v1, v49 offset:{TG + kimg.ROW_ZERO*TGS}")
    putE(1, 12)
    cmul(14, 12, 12); cmul(34, 6, 30)
    putE(2, 14)
    cmul(20, 14, 12); cmul(16, 14, 14)
    putE(3, 20); putE(4, 16)
    cmul(22, 16, 12); cmul(24, 16, 14); cmul(26, 16, 20); cmul(18, 16, 16)
    putE(5, 22); putE(6, 24); putE(7, 26); putE(8, 18)
    Ereg = {1: 12, 2: 14, 3: 20, 4: 16, 5: 22, 6: 24, 7: 26}
    hcur = 34
    for a in range(4, 17):
        hn = 70 - hcur
        if a < 16: cmul(hn, hcur, 28)
        if a < 8:
            putG(24 + 2 * (a - 4), hcur)
            cmul(40, hcur, 32); putG(25 + 2 * (a - 4), 40)
        elif a < 16:
            putG(32 + (a - 8), hcur)
            if a == 8: putG(kimg.ROW_N1024, hcur, neg=True)
        else:
            putG(40, hcur)
        b = a - 4 + 1
        if 1 <= b <= 7:
            cmul(42, 18, Ereg[b]); putE(8 + b, 42)
        hcur = hn
    A(f"""
{L}_tabdone:
  s_waitcnt lgkmcnt(0)
  s_barrier
  s_cmp_ge_u32 s3, 3
  s_cbranch_scc1 {L}_w3a
""")
    for ks in range(4):
        A(f"  ds_read_b128 {vr(12+8*ks,4)}, v{vFA} offset:{TG + 64*ks}")
        A(f"  ds_read_b128 {vr(16+8*ks,4)}, v{vFB} offset:{TE + 64*ks}")
    for ks in range(8):
        b = 12 + 8 * (ks & 3)
        A(f"  s_waitcnt lgkmcnt({6 if ks < 5 else 2*(7-ks)})")
        A(f"  v_mfma_f32_16x16x32_f16 v[44:47], {vr(b,4)}, {vr(b+4,4)}, {'0' if ks == 0 else 'v[44:47]'}")
        if ks < 4:
            A(f"  ds_read_b128 {vr(b,4)}, v{vFA} offset:{TG + 64*(ks+4)}")
            A(f"  ds_read_b128 {vr(b+4,4)}, v{vFB} offset:{TE + 64*(ks+4)}")
    A(f"  s_nop 7\n  ds_write_b128 v{vKF}, v[44:47] offset:{KFO}\n  s_branch {L}_nomfma\n{L}_w3a:\n  global_load_dword v{vIn}, v{vZ}, s[36:37] sc1\n{L}_nomfma:")
    A("  v_pk_mov_b32 v[56:57], 0, 0\n  v_pk_mov_b32 v[58:59], 0, 0")
    A("  s_waitcnt lgkmcnt(0)\n  s_barrier")
    stamp()
    n2 = kimg.NEL // 8 - 256
    for k in range(8): A(f"  ds_read_b32 v{28+k}, v{GI+k} offset:{KFO}")
    A(f"  s_cmp_ge_u32 s3, 3\n  s_cbranch_scc1 {L}_pads")
    for k in range(8): A(f"  ds_read_b32 v{36+k}, v{GI+8+k} offset:{KFO}")
    A(f"  v_cmp_gt_u32 vcc, {n2}, v0")
    for k in range(4):
        A(f"  s_waitcnt lgkmcnt({14-2*k})\n  v_cvt_pk_f16_f32 v{44+k}, v{28+2*k}, v{29+2*k}")
    A(f"  ds_write_b128 v{vWr}, v[44:47] offset:{KI}")
    for k in range(4):
        A(f"  s_waitcnt lgkmcnt({7-2*k})\n  v_cvt_pk_f16_f32 v{48+k}, v{36+2*k}, v{37+2*k}")
    A(f"""
  s_and_saveexec_b64 s[24:25], vcc
  ds_write_b128 v{vWr}, v[48:51] offset:{KI + 4096}
  s_mov_b64 exec, -1
  s_branch {L}_img1
{L}_pads:
  s_mov_b32 exec_hi, 0xf
  ds_write_b128 v{vEx}, v[56:59] offset:{U0 - 576}
  ds_write_b128 v{vEx}, v[56:59] offset:{W7 - 576}
  s_mov_b32 exec_hi, 0
  ds_write_b128 v{vEx}, v[56:59] offset:{W9 - 512}
  s_mov_b32 exec_lo, 0x1ffff
  ds_write_b128 v{vEx}, v[56:59] offset:{W5 - 272}
  ds_write_b128 v{vEx}, v[56:59] offset:{W3 - 272}
  ds_write_b128 v{vEx}, v[56:59] offset:{U2 - 272}
  s_mov_b64 exec, -1
  s_mov_b32 s21, 200000
  s_waitcnt vmcnt(0)
{L}_poll0:                             ; the flag lines are meaningful only once the init flag is up
  v_cmp_eq_u32 vcc, 0, v{vIn}
  s_sub_u32 s21, s21, 1
  s_cmp_eq_u32 s21, 0
  s_cbranch_scc1 {L}_poll1a
  s_cbranch_vccz {L}_poll1a
  s_sleep 16
  global_load_dword v{vIn}, v{vZ}, s[36:37] sc1
  s_waitcnt vmcnt(0)
  s_branch {L}_poll0
{L}_poll1a:
  s_waitcnt lgkmcnt(6)
""")
    for k in range(4): A(f"  v_cvt_pk_f16_f32 v{44+k}, v{28+2*k}, v{29+2*k}")
    A(f"""
  ds_write_b128 v{vWr}, v[44:47] offset:{KI}
  {f'global_load_dwordx2 {vr(vFd,2)}, v{vFl}, s[30:31] sc1' if early else ''}
{L}_img1:
  s_waitcnt lgkmcnt(0)
  s_barrier
""")
    def tread(reg, va, off):
        A(f"  ds_read_b64 {vr(reg,2)}, v{va} offset:{off}\n  ds_read_b64 {vr(reg+2,2)}, v{va} offset:{off+8}")
    treg = {}
    A(f"  s_cmp_ge_u32 s3, 2\n  s_cbranch_scc1 {L}_tBC")
    for k in range(0, 17, 2):
        treg[("R0", k)] = TP + 2 * k; tread(TP + 2 * k, vTo, KI + 32 * (16 - k))
    treg[("RC",)] = TP + 36; tread(TP + 36, vTo, KI + 2 * kimg.RC_OFF)
    A(f"  s_branch {L}_polled\n{L}_tBC:\n  s_cmp_eq_u32 s3, 3\n  s_cbranch_scc1 {L}_tC")
    for kap in range(8):
        treg[("T", 4, kap)] = TP + 4 * kap; tread(TP + 4 * kap, vTo, KI + 2 * F["T4"][0] + 32 * kap)
    A(f"  s_branch {L}_polled\n{L}_tC:")
    if not early: A(f"  global_load_dwordx2 {vr(vFd,2)}, v{vFl}, s[30:31] sc1")
    for kap in range(6):
        treg[("T", 8, kap)] = TP + 4 * kap; tread(TP + 4 * kap, vTo, KI + 2 * F["T8"][0] + 32 * kap)
    for kap in range(5):
        treg[("T", 16, kap)] = TP + 24 + 4 * kap; tread(TP + 24 + 4 * kap, vTo2, KI + 2 * F["T16"][0] + 32 * kap)
    A(f"""
{L}_poll:
  s_sub_u32 s21, s21, 1
  s_waitcnt vmcnt(0)
  v_and_b32 v{vFd}, v{vFd}, v{vFd+1}
  v_cmp_ne_u32 vcc, 1, v{vFd}
  s_cmp_eq_u32 s21, 0
  s_cbranch_scc1 {L}_polled
  s_cbranch_vccz {L}_polled
  s_sleep {slp}
  global_load_dwordx2 {vr(vFd,2)}, v{vFl}, s[30:31] sc1
  s_branch {L}_poll
{L}_polled:
""")
    stamp()
    A("  s_barrier")
    stamp()
    def conv_pf(lab):
        A(f"  s_cmp_ge_u32 s3, 2\n  s_cbranch_scc1 {L}_{lab}")
        A(f"  s_and_b32 s42, s2, 7\n  s_sub_u32 s43, s2, {NLN}\n  s_lshr_b32 s43, s43, 3\n  s_lshl_b32 s43, s43, 7\n  v_add_u32 v123, s43, v0")
        gen_prefetch(A, 1, 42, 123, 80 * 128, 40, 44, 124, 126, half=True)
        A(f"{L}_{lab}:")
    SRC, OO, WA, WT = 80, 88, 96, 48
    E = lambda j: SRC + 2 + j
    O = lambda j: OO + 2 + j
    W = lambda a, j: WA + 4 * a + j
    A(f"""
  buffer_load_dwordx4 {vr(E(0),4)}, v{vU}, s[8:11], 0 offen sc1
  s_waitcnt vmcnt(0)
  ds_write_b128 v{vWr}, {vr(E(0),4)} offset:{U0}
  s_waitcnt lgkmcnt(0)
  s_barrier
""")
    stamp()
    if cpf == 1: conv_pf("cpf")
    A(f"  ds_read_b64 {vr(E(-2),2)}, v{vWr} offset:{U0 - 8}\n  ds_read_b64 {vr(E(4),2)}, v{vWr} offset:{U0 + 16}")
    for j in range(0, 3): A(f"  v_alignbit_b32 v{O(j)}, v{E(j+1)}, v{E(j)}, 16")
    A(f"  v_pk_mov_b32 {vr(WT+10,2)}, {vr(E(0),2)}, {vr(E(2),2)} op_sel:[1,0]")
    A("  s_waitcnt lgkmcnt(0)")
    for j in (-1, 3, -2, 4): A(f"  v_alignbit_b32 v{O(j)}, v{E(j+1)}, v{E(j)}, 16")
    A(f"  v_pk_mov_b32 {vr(WT+8,2)}, {vr(E(-2),2)}, {vr(E(0),2)} op_sel:[1,0]")
    def chainw(dst, src, x, y, off):
        for j in range(4): A(f"  v_pk_add_f16 v{W(dst,j)}, v{src(j)}, v{x(j)}")
        for j in range(4): A(f"  v_pk_add_f16 v{W(dst,j)}, v{W(dst,j)}, v{y(j)}")
        A(f"  ds_write_b128 v{vWr}, {vr(W(dst,0),4)} offset:{off}")
    A(f"  ds_write_b128 v{vWr}, {vr(WT+8,4)} offset:{U2}")
    chainw(0, lambda j: O(j-1), E, O, W3)
    chainw(1, lambda j: W(0,j), lambda j: E(j-1), lambda j: E(j+1), W5)
    A(f"  s_cmp_ge_u32 s3, 2\n  s_cbranch_scc1 {L}_prepdone")
    chainw(2, lambda j: W(1,j), lambda j: O(j-2), lambda j: O(j+1), W7)
    chainw(3, lambda j: W(2,j), lambda j: E(j-2), lambda j: E(j+2), W9)
    A(f"""
  s_cmp_lg_u32 s3, 0
  s_cbranch_scc1 {L}_prepdone
  v_pack_b32_f16 v{WT}, v{E(0)}, v{W(0,0)}
  v_pack_b32_f16 v{WT+1}, v{W(1,0)}, v{W(2,0)}
  v_lshlrev_b32 v{WT+2}, 16, v{E(0)}
  v_pack_b32_f16 v{WT+3}, v{W(0,0)}, v{W(1,0)}
  s_mov_b64 exec, 1
  ds_write_b64 v{vWr}, {vr(WT,2)} offset:{W9 - 8}
  ds_write_b64 v{vWr}, {vr(WT+2,2)} offset:{W7 - 8}
  ds_write_b32 v{vWr}, v{WT} offset:{W5 - 4}
  ds_write_b32 v{vWr}, v{WT+2} offset:{W3 - 4}
  s_mov_b64 exec, -1
{L}_prepdone:
  s_waitcnt lgkmcnt(0)
  s_barrier
""")
    stamp()
    if cpf == 2: conv_pf("cpf")
    def role(kind, tiles):
        lq = []
        def ds(tag, txt): A(txt); lq.append(tag)
        def lwait(tags):
            idxs = [i for i, t in enumerate(lq) if t in tags]
            if not idxs: return
            n = min(len(lq) - 1 - max(idxs), 15)
            A(f"  s_waitcnt lgkmcnt({n})"); del lq[:len(lq) - n]
        items = []
        if kind == "A":
            for e in list(range(-14, 113, 2)) + [16 * t - 63 for t in range(3, 8)]:
                ms = []
                if e & 1: ms.append(((e + 63) // 16, ("RC",), True))
                else:
                    t = -(-e // 16); k = 16 * t - e
                    ms.append((t, ("R0", k), True))
                    if k == 0: ms.append((t + 1, ("R0", 16), True))
                ms = [m for m in ms if m[0] in tiles]
                if ms: items.append(("u", e, ms))
        else:
            for P in ((4,) if kind == "B" else (8, 16)):
                s = 16 // P
                for J in range(-1, s * 7 - 8 + s + 3 + 1):
                    ms = [(t, ("T", P, J - s * t + 8), False) for t in range(8) if 0 <= J - s * t + 8 < s + 4]
                    items.append(("w", (P, J), ms))
        accr = {t: ACC + 4 * i for i, t in enumerate(tiles)}
        def load(idx):
            kd, x, _ = items[idx]
            r = DF + 4 * (idx % NDF)
            if kd == "u":
                ds(("D", idx), f"  ds_read_b128 {vr(r,4)}, v{vB0} offset:{32*(x+16)}")
            else:
                P, J = x
                va = vAb if P == 16 else vAa
                for h in range(2):
                    ds(("D", idx), f"  ds_read_b64_tr_b16 {vr(r+2*h,2)}, v{va} offset:{2*P*(16*(J+1)+4*h)}")
        assert PF + WB <= NDF + 1
        for idx in range(PF): load(idx)
        inited = set()
        for idx, (kd, x, ms) in enumerate(items):
            if idx + PF < len(items): load(idx + PF)
            r = DF + 4 * (idx % NDF)
            for (t, ttag, toepA) in ms:
                if ("D", idx) in lq: lwait({("D", idx + k) for k in range(WB)})
                acc = vr(accr[t], 4); c = acc if t in inited else "0"; inited.add(t)
                tr_ = vr(treg[ttag], 4)
                if toepA: A(f"  v_mfma_f32_16x16x32_f16 {acc}, {tr_}, {vr(r,4)}, {c}")
                else:     A(f"  v_mfma_f32_16x16x32_f16 {acc}, {vr(r,4)}, {tr_}, {c}")
        return accr
    exB = {t: EXS[t] for t in range(8)}
    exC = {t: EXS[7 + t] for t in range(1, 8)}
    A(f"  s_cmp_ge_u32 s3, 2\n  s_cbranch_scc1 {L}_rBC\n  s_cmp_eq_u32 s3, 1\n  s_cbranch_scc1 {L}_rA2")
    def finA(tiles):
        accr = role("A", tiles)
        if stamps: A(f"  s_memtime s[{62+2*nst[0]}:{63+2*nst[0]}]")
        A(f"  v_mov_b32 v2, s27\n  s_waitcnt lgkmcnt(0)\n  s_barrier")
        n = 0
        for i, t in enumerate(tiles):
            A(f"  ds_read_b128 {vr(DF+8*i,4)}, v{vEx} offset:{exB[t]}"); n += 1
            if t in exC: A(f"  ds_read_b128 {vr(DF+8*i+4,4)}, v{vEx} offset:{exC[t]}"); n += 1
        for i, t in enumerate(tiles):
            a = accr[t]
            n -= 2 if t in exC else 1
            A(f"  s_waitcnt lgkmcnt({n})")
            for r in (0, 2): A(f"  v_pk_add_f32 {vr(a+r,2)}, {vr(a+r,2)}, {vr(DF+8*i+r,2)}")
            if t in exC:
                for r in (0, 2): A(f"  v_pk_add_f32 {vr(a+r,2)}, {vr(a+r,2)}, {vr(DF+8*i+4+r,2)}")
            for r in (0, 2): A(f"  v_pk_mul_f32 {vr(a+r,2)}, {vr(a+r,2)}, v[2:3] op_sel_hi:[1,0]")
            o = TP + 4 * (i >> 1) + 2 * (i & 1)
            A(f"  v_cvt_pk_bf16_f32 v{o}, v{a}, v{a+1}\n  v_cvt_pk_bf16_f32 v{o+1}, v{a+2}, v{a+3}")
            if i & 1:
                b = TP + 4 * (i >> 1)
                A(f"  s_mov_b32 s20, {16 * (t - 1) * US}\n  s_nop 0\n  v_permlane16_swap_b32 v{b}, v{b+2}\n  v_permlane16_swap_b32 v{b+1}, v{b+3}")
                A(f"  buffer_store_dwordx4 {vr(b,4)}, v{vY}, s[32:35], s20 offen")
        A(f"  s_branch {L}_fin")
    finA([0, 1, 2, 3])
    A(f"{L}_rA2:")
    finA([4, 5, 6, 7])
    A(f"{L}_rBC:\n  s_cmp_eq_u32 s3, 3\n  s_cbranch_scc1 {L}_rC")
    def finBC(kind, tiles, ex):
        accr = role(kind, tiles)
        if stamps: A(f"  s_memtime s[{62+2*nst[0]}:{63+2*nst[0]}]")
        A("  s_nop 1")
        for t in tiles:
            A(f"  ds_write_b128 v{vEx}, {vr(accr[t],4)} offset:{ex[t]}")
        A(f"  s_waitcnt lgkmcnt(0)\n  s_barrier\n  s_branch {L}_fin")
    finBC("B", list(range(8)), exB)
    A(f"{L}_rC:")
    finBC("C", list(range(1, 8)), exC)
    A(f"{L}_fin:")
    if stamps:
        nst[0] += 1
        A(f"  s_waitcnt vmcnt(0)\n  s_memtime s[{62+2*nst[0]}:{63+2*nst[0]}]\n  s_waitcnt lgkmcnt(0)"); nst[0] += 1
        A.srd(84, 38, 0x100000, 0x2040000)
        A(f"  s_lshl_b32 s83, s16, 2\n  s_add_u32 s83, s83, s3\n  s_lshl_b32 s83, s83, 5\n  v_mov_b32 v2, s83")
        for k in range(nst[0]):
            A(f"  s_sub_u32 s83, s{62+2*k}, s60\n  v_mov_b32 v3, s83\n  buffer_store_dword v3, v2, s[84:87], 0 offen offset:{4*k}")
    A("  s_endpgm")
    A(f"{L}_done:\n  s_endpgm")
    A(".p2align 8\ncode_pf_begin:")
    A.kernel_desc(name, 128, 96 if stamps else 56)
    idx = [i * 4 for i in kimg.img] + [kimg.ZERO * 4] * (4096 - kimg.NEL)
    tbl = ".p2align 4\n.type kimg_idx,@object\nkimg_idx:\n"
    for i in range(0, 4096, 16):
        tbl += "  .short " + ", ".join(str(v) for v in idx[i:i+16]) + "\n"
    tbl += ".size kimg_idx, 8192"
    A.desc.append(tbl)
```

```python
from asmlib import *

def gen_k3(A, name="k3_kernel", NW=5, mimic=0, y16=0):
    NQ = 20 // NW
    CW = 640 // NW
    YB = 0
    HROW = 2 * CW + 16
    HB = 10240
    SB = HB + NW * 8 * HROW
    SROW = 48 if NW == 5 else 96
    LDS = SB + 8 * SROW
    A.add_launch(name, 256, 64 * NW, LDS)
    A.kernel_begin(name)
    L = name
    NE = 4 * NQ
    RX, RD, RY = 16, 16 + 2 * NQ, 16 + 4 * NQ
    X = 16 + 6 * NQ
    X += X & 1
    U = X + NE
    Y = U + NE
    T = Y + NE
    A(f"""
  s_cmp_ge_u32 s2, 256
  s_cbranch_scc1 {L}_done
  s_load_dwordx2 s[4:5], s[0:1], {KA['x']}
  s_load_dwordx2 s[6:7], s[0:1], {KA['ws']}
  s_load_dwordx2 s[28:29], s[0:1], {KA['Dsk']}
  v_lshrrev_b32 v1, 6, v0
  v_and_b32 v2, 7, v0                  ; t
  v_readfirstlane_b32 s3, v1           ; wave
  v_and_b32 v1, 63, v0                 ; lane
  v_lshrrev_b32 v3, 3, v1              ; qq
  s_lshl_b32 s16, s2, 3                ; token0
  v_add_u32 v4, s16, v2                ; token
  v_lshlrev_b32 v5, 3, v4
  v_mul_u32_u24 v4, 1280, v4
  s_mul_i32 s17, s3, {2*CW}
  v_lshl_add_u32 v6, v3, 3, s17
  v_add_u32 v4, v4, v6                 ; x/h offset
  v_lshlrev_b32 v7, 4, v1              ; lane*16
  s_mul_i32 s19, s3, {16*CW}
""")
    US = 640 * 32 + 128
    if y16:
        assert NQ == 2
        A(f"""
  s_lshr_b32 s18, s2, 1
  s_mul_i32 s18, s18, {US}
  s_and_b32 s44, s2, 1
  s_lshl_b32 s44, s44, 4
  s_add_u32 s18, s18, s44
  v_lshlrev_b32 v{T+20}, 5, v0          ; tid*32
""")
    else:
        A(f"  s_mul_i32 s18, s2, {XS}\n  s_add_u32 s18, s18, s19\n  v_mov_b32 v{T+20}, v7")
    A(f"""
  s_add_u32 m0, s19, {YB}
  s_mov_b32 s10, {128 * US if y16 else 256 * XS}
  s_mov_b32 s11, 0x00020000
  s_mov_b32 s14, {2048 * 1280}
  s_mov_b32 s15, 0x00020000
  s_mov_b32 s22, {2048 * 8}
  s_mov_b32 s23, 0x00020000
  s_mov_b32 s26, 1280
  s_mov_b32 s27, 0x00020000
  s_waitcnt lgkmcnt(0)
  s_add_u32 s8, s6, {WS_Y8}
  s_addc_u32 s9, s7, 0
  s_mov_b32 s12, s4
  s_mov_b32 s13, s5
""")
    for i in range(NQ // 2):
        A(f"  buffer_load_dwordx4 v{T+20}, s[8:11], s18 offen offset:{1024*i} lds")
    for i in range(NQ):
        A(f"  buffer_load_dwordx2 {vr(RX+2*i,2)}, v4, s[12:15], 0 offen offset:{64*i}")
    A(f"  s_add_u32 s20, s6, {WS_ST1}\n  s_addc_u32 s21, s7, 0")
    A("  buffer_load_dwordx2 v[14:15], v5, s[20:23], 0 offen")
    A("  s_mov_b32 s24, s28\n  s_mov_b32 s25, s29")
    for i in range(NQ):
        A(f"  buffer_load_dwordx2 {vr(RD+2*i,2)}, v6, s[24:27], 0 offen offset:{64*i}")
    A.srd(32, 6, 2048 * 1280, WS_H)
    A.srd(36, 6, 8 * XT1, WS_HN8)
    A(f"""
  v_lshrrev_b32 v8, 4, v1
  v_lshlrev_b32 v8, 7, v8
  v_bfe_u32 v9, v1, 1, 1
  v_lshl_add_u32 v8, v9, 6, v8
  v_bfe_u32 v9, v1, 2, 2               ; r
  v_lshl_add_u32 v8, v9, 4, v8
  v_and_b32 v10, 1, v1
  v_lshl_add_u32 v8, v10, 3, v8
  v_add_u32 v8, s19, v8
  s_mul_i32 s40, s3, {8*HROW}
  s_add_u32 s40, s40, {HB}
  v_mul_u32_u24 v10, {HROW}, v2
  v_lshl_add_u32 v10, v3, 3, v10
  v_add_u32 v10, s40, v10
  v_mul_u32_u24 v11, {HROW}, v9
  v_lshrrev_b32 v12, 4, v1
  v_lshl_add_u32 v11, v12, 5, v11
  v_and_b32 v12, 3, v1
  v_lshl_add_u32 v11, v12, 3, v11
  v_add_u32 v11, s40, v11
  v_mul_u32_u24 v12, {SROW}, v2
  v_add_u32 v12, {SB}, v12
  v_lshrrev_b32 v13, 5, v1
  v_lshl_add_u32 v13, v13, 2, v12
  s_lshl_b32 s41, s3, 3
  v_add_u32 v13, s41, v13
  s_mul_i32 s47, s2, 1280
  s_mul_i32 s42, s3, {CW}
""")
    VO = T + 24
    for i in range(NQ // 2):
        A(f"""
  v_add_u32 v{T}, s42, v1
  {f'v_add_u32 v{T}, {64*i}, v{T}' if i else ''}
  v_mul_u32_u24 v{T+1}, 52429, v{T}
  v_lshrrev_b32 v{T+1}, 22, v{T+1}
  v_mul_u32_u24 v{T+1}, {XT1 - 1280}, v{T+1}
  v_lshl_add_u32 v{VO+i}, v{T}, 4, v{T+1}
""")
    A(f"  s_waitcnt vmcnt({2*NQ + 1})")
    for i in range(NQ):
        A(f"  ds_read_b64_tr_b16 {vr(RY+2*i,2)}, v8 offset:{YB + 512*i}")
    A(f"  s_waitcnt vmcnt({NQ})")
    def unpack(dst, src):
        for k in range(NE // 2):
            A(f"  v_lshlrev_b32 v{dst+2*k}, 16, v{src+k}\n  v_and_b32 v{dst+2*k+1}, 0xffff0000, v{src+k}")
    def rnd(a):
        for k in range(NE // 2): A(f"  v_cvt_pk_bf16_f32 v{T+k}, v{a+2*k}, v{a+2*k+1}")
        unpack(a, T)
    P = range(NE // 2)
    unpack(X, RX)
    for k in P: A(f"  v_pk_add_f32 {vr(U+2*k,2)}, {vr(X+2*k,2)}, v[14:15] op_sel_hi:[1,0] neg_lo:[0,1] neg_hi:[0,1]")
    rnd(U)
    for k in P: A(f"  v_pk_mul_f32 {vr(U+2*k,2)}, {vr(U+2*k,2)}, v[14:15] op_sel:[0,1] op_sel_hi:[1,1]")
    rnd(U)
    A("  s_waitcnt vmcnt(0)")
    unpack(Y, RD)
    for k in P: A(f"  v_pk_mul_f32 {vr(U+2*k,2)}, {vr(U+2*k,2)}, {vr(Y+2*k,2)}")
    rnd(U)
    A("  s_waitcnt lgkmcnt(0)")
    unpack(Y, RY)
    for k in P: A(f"  v_pk_add_f32 {vr(Y+2*k,2)}, {vr(Y+2*k,2)}, {vr(U+2*k,2)}")
    rnd(Y)
    for k in P: A(f"  v_pk_add_f32 {vr(X+2*k,2)}, {vr(X+2*k,2)}, {vr(Y+2*k,2)}")
    for k in P: A(f"  v_cvt_pk_bf16_f32 v{RX+k}, v{X+2*k}, v{X+2*k+1}")
    for i in range(NQ):
        A(f"  buffer_store_dwordx2 {vr(RX+2*i,2)}, v4, s[32:35], 0 offen offset:{64*i} sc1")
    unpack(X, RX)
    for k in P: A(f"  v_pk_add_f32 {vr(X+2*k,2)}, {vr(X+2*k,2)}, v[14:15] op_sel_hi:[1,0] neg_lo:[0,1] neg_hi:[0,1]")
    S1, S2 = T, T + 4
    A(f"  v_pk_add_f32 {vr(S1,2)}, {vr(X,2)}, {vr(X+2,2)}\n  v_pk_add_f32 {vr(S1+2,2)}, {vr(X+4,2)}, {vr(X+6,2)}")
    A(f"  v_pk_mul_f32 {vr(S2,2)}, {vr(X,2)}, {vr(X,2)}\n  v_pk_mul_f32 {vr(S2+2,2)}, {vr(X+2,2)}, {vr(X+2,2)}")
    for k in range(2, NE // 2):
        if k >= 4: A(f"  v_pk_add_f32 {vr(S1+2*(k&1),2)}, {vr(S1+2*(k&1),2)}, {vr(X+2*k,2)}")
        A(f"  v_pk_fma_f32 {vr(S2+2*(k&1),2)}, {vr(X+2*k,2)}, {vr(X+2*k,2)}, {vr(S2+2*(k&1),2)}")
    A(f"""
  v_pk_add_f32 {vr(S1,2)}, {vr(S1,2)}, {vr(S1+2,2)}
  v_pk_add_f32 {vr(S2,2)}, {vr(S2,2)}, {vr(S2+2,2)}
  s_mov_b32 s42, 0xff
  v_add_f32 v{S1}, v{S1}, v{S1+1}
  v_add_f32 v{S1+1}, v{S2}, v{S2+1}
  s_mov_b32 s43, 0xff
  s_nop 0
  v_permlane32_swap_b32 v{S1}, v{S1+1}
  s_nop 1
  v_add_f32 v{S1}, v{S1}, v{S1+1}
  v_mov_b32 v{S1+1}, v{S1}
  s_nop 1
  v_permlane16_swap_b32 v{S1}, v{S1+1}
  s_nop 1
  v_add_f32 v{S1}, v{S1}, v{S1+1}
  s_nop 1
  v_add_f32 v{S1}, v{S1}, v{S1} row_ror:8
  s_mov_b64 exec, s[42:43]
  ds_write_b32 v13, v{S1}
  s_mov_b64 exec, -1
  s_waitcnt lgkmcnt(0)
  s_barrier
""")
    nr = (NW * 8 + 15) // 16
    for k in range(nr):
        if k == nr - 1 and (NW * 8) % 16:
            A(f"  ds_read_b64 {vr(T+4*k,2)}, v12 offset:{16*k}")
        else:
            A(f"  ds_read_b128 {vr(T+4*k,4)}, v12 offset:{16*k}")
    A("  s_waitcnt lgkmcnt(0)")
    pairs = [T + 2 * k for k in range(NW)]
    while len(pairs) > 1:
        nx = []
        for k in range(0, len(pairs) - 1, 2):
            A(f"  v_pk_add_f32 {vr(pairs[k],2)}, {vr(pairs[k],2)}, {vr(pairs[k+1],2)}"); nx.append(pairs[k])
        if len(pairs) & 1: nx.append(pairs[-1])
        pairs = nx
    a = T
    A(f"""
  s_mov_b32 s42, {fbits(1.0/640)}
  v_mul_f32 v{a}, s42, v{a}
  v_mul_f32 v{a+1}, s42, v{a+1}
  v_fma_f32 v{a+1}, -v{a}, v{a}, v{a+1}       ; var2
  v_max_f32 v{a+1}, 0, v{a+1}
  v_add_f32 v{a+2}, v{a}, v14                 ; mean2
  v_cvt_pk_bf16_f32 v{a+3}, v{a+1}, v{a+2}
  v_lshlrev_b32 v{a+4}, 16, v{a+3}            ; v2_bf
  v_and_b32 v{a+3}, 0xffff0000, v{a+3}        ; m2_bf
  v_add_f32 v{a+4}, {fbits(1e-5)}, v{a+4}
  v_cvt_pk_bf16_f32 v{a+4}, v{a+4}, v{a+4}
  v_lshlrev_b32 v{a+4}, 16, v{a+4}
  v_sqrt_f32 v{a+4}, v{a+4}
  v_sub_f32 v{a+5}, v{a+3}, v14               ; m2_bf - m1
  v_cvt_pk_bf16_f32 v{a+4}, v{a+4}, v{a+4}
  v_lshlrev_b32 v{a+4}, 16, v{a+4}            ; sd2
  v_rcp_f32 v{a+4}, v{a+4}                    ; r2
  v_sub_f32 v{a+6}, v{a}, v{a+5}
  v_mul_f32 v{a+6}, v{a+6}, v{a+4}            ; mean3
  v_mul_f32 v{a+7}, v{a+1}, v{a+4}
  v_mul_f32 v{a+7}, v{a+7}, v{a+4}            ; var3
  v_cvt_pk_bf16_f32 v{a+7}, v{a+7}, v{a+6}
  v_and_b32 v{a+6}, 0xffff0000, v{a+7}        ; m3_bf
  v_lshlrev_b32 v{a+7}, 16, v{a+7}
  v_add_f32 v{a+7}, {fbits(1e-5)}, v{a+7}
  v_cvt_pk_bf16_f32 v{a+7}, v{a+7}, v{a+7}
  v_lshlrev_b32 v{a+7}, 16, v{a+7}
  v_sqrt_f32 v{a+7}, v{a+7}
  v_fma_f32 v{a+6}, v{a+5}, v{a+4}, v{a+6}
  v_cvt_pk_bf16_f32 v{a+7}, v{a+7}, v{a+7}
  v_lshlrev_b32 v{a+7}, 16, v{a+7}
  v_rcp_f32 v{a+7}, v{a+7}                    ; r3
  s_nop 0
  v_mul_f32 v{a+8}, v{a+4}, v{a+7}            ; A
  v_mul_f32 v{a+10}, v{a+6}, v{a+7}           ; -B
""")
    for k in P:
        A(f"  v_pk_fma_f32 {vr(X+2*k,2)}, {vr(X+2*k,2)}, {vr(a+8,2)}, {vr(a+10,2)} op_sel_hi:[1,0,0] neg_lo:[0,0,1] neg_hi:[0,0,1]")
    for k in P:
        A(f"  v_cvt_pk_bf16_f32 v{U+k}, v{X+2*k}, v{X+2*k+1}")
        if k & 1: A(f"  ds_write_b64 v10, {vr(U+k-1,2)} offset:{64*(k>>1)}")
    for i in range(NQ // 2):
        A(f"  ds_read_b64_tr_b16 {vr(Y+4*i,2)}, v11 offset:{128*i}")
        A(f"  ds_read_b64_tr_b16 {vr(Y+4*i+2,2)}, v11 offset:{128*i + 4*HROW}")
    for i in range(NQ // 2):
        A(f"  s_waitcnt lgkmcnt({2*(NQ//2 - 1 - i)})")
        A(f"  buffer_store_dwordx4 {vr(Y+4*i,4)}, v{VO+i}, s[36:39], s47 offen sc1")
    A(f"{L}_done:\n  s_endpgm")
    A.kernel_desc(name, VO + 4, 56)
```

```python
from asmlib import *
import kimg_v2 as kimg
from pf import gen_prefetch

LOG2E = 1.4426950408889634
def f32r(x):
    return struct.unpack("<f", struct.pack("<f", x))[0]
NLN = 128
WS_U8 = WS_UT
US = 640 * 32 + 128
WS_SY = 0x1D00000

def gen_k12(A, name="k12_kernel", nend=0, pend="", code=True, stamps=False, PF=5, WB=2, prio=1, slp=2, grp=0, cpf=0, early=1, REP=16, NLIN=8, ln2=0, R2=16, slp2=4, slp3=32, pfl='sc1', sfl='sc1', small=1, cpw2=0):
    RS = 1312
    TGS = 544
    TG, TE, KFO = 0, 48 * TGS, 64 * TGS
    LDS = 40960
    KI = 0
    AB = 6656
    U0 = AB + 576
    W9 = U0 + 4096 + 512
    W7 = W9 + 2048 + 528
    W5 = W7 + 2048 + 256
    W3 = W5 + 4096 + 272
    U2 = W3 + 4096 + 128
    AE = U2 + 4096
    assert kimg.IMG_BYTES <= AB and AE <= KFO + 0 and AE % 16 == 0, AE
    EXS = [1024 * i for i in range(6)] + [AE + 1024 * i for i in range((LDS - AE) // 1024)]
    assert len(EXS) >= 15
    NWG = 8 + NLN + 640 + (256 if ln2 else 0)
    YS = 640 * 128 + 128
    FPL = NLN // NLIN
    RSZ = NLIN * 128
    F2 = REP * RSZ
    SYN = F2 + (R2 * 2560 if ln2 else 0)
    A.add_launch(name, NWG, 256, LDS)
    A.kernel_begin(name)
    L = name
    A(f"""
  s_cmp_ge_u32 s2, 8
  s_cbranch_scc1 {L}_main
  s_cmp_lg_u32 s2, 0
  s_cbranch_scc1 {L}_svc2
  s_load_dwordx4 s[4:7], s[0:1], {KA['dbg']}
  v_lshlrev_b32 v2, 4, v0
  v_pk_mov_b32 v[4:5], 0, 0
  v_pk_mov_b32 v[6:7], 0, 0
  s_mov_b32 s10, {SYN}
  s_mov_b32 s11, 0x00020000
  v_mov_b32 v3, 1
  s_waitcnt lgkmcnt(0)
  s_add_u32 s8, s6, {WS_SY}
  s_addc_u32 s9, s7, 0
""")
    for k in range(-(-SYN // 4096)):
        A(f"  s_mov_b32 s12, {4096*k}\n  buffer_store_dwordx4 v[4:7], v2, s[8:11], s12 offen sc1")
    A(f"""
  s_waitcnt vmcnt(0)
  s_barrier
  global_store_dword v4, v3, s[4:5] sc1
{L}_svc2:
  s_getpc_b64 s[20:21]
{L}_pc:
  s_sub_u32 s20, s20, {L}_pc-{L}
  s_subb_u32 s21, s21, 0
  s_mov_b32 s22, code_pf_end-{L}
  s_mov_b32 s23, 0x00020000
  v_lshlrev_b32 v2, 7, v0
  buffer_load_dword v12, v2, s[20:23], 0 offen
""")
    if small:
        A(f"""
  s_load_dwordx2 s[24:25], s[0:1], {KA['Dsk']}
  s_load_dwordx2 s[28:29], s[0:1], {KA['b1']}
  s_load_dwordx2 s[32:33], s[0:1], {KA['b2']}
  s_mov_b32 s26, 1280
  s_mov_b32 s27, 0x00020000
  s_mov_b32 s30, 3456
  s_mov_b32 s31, 0x00020000
  s_mov_b32 s34, 4096
  s_mov_b32 s35, 0x00020000
  s_waitcnt lgkmcnt(0)
  buffer_load_dword v13, v2, s[24:27], 0 offen
  buffer_load_dword v14, v2, s[28:31], 0 offen
  buffer_load_dword v15, v2, s[32:35], 0 offen
""")
    A(f"""
  s_endpgm
{L}_main:
  s_cmp_ge_u32 s2, {NWG}
  s_cbranch_scc1 {L}_done
  s_sub_u32 s2, s2, 8
  s_cmp_ge_u32 s2, {NLN + 640}
  s_cbranch_scc1 {L}_ln2
  s_cmp_ge_u32 s2, {NLN}
  s_cbranch_scc1 {L}_kgen
  ; ---------------- LN1 ----------------
  {'s_memtime s[60:61]' if stamps else ''}
  s_load_dwordx2 s[4:5], s[0:1], {KA['x']}
  s_load_dwordx2 s[6:7], s[0:1], {KA['ws']}
  s_load_dwordx2 s[28:29], s[0:1], {KA['dbg']}
  {'s_setprio 3' if prio else ''}
  s_lshl_b32 s16, s2, 4                ; t0
  v_lshrrev_b32 v1, 4, v0              ; row
  v_and_b32 v2, 15, v0                 ; q
  v_add_u32 v3, s16, v1
  v_mul_u32_u24 v3, 1280, v3
  v_lshl_add_u32 v3, v2, 4, v3
  s_waitcnt lgkmcnt(0)
""")
    A(f"""
  s_add_u32 s30, s6, {WS_SY}
  s_addc_u32 s31, s7, 0
""")
    A.srd(8, 4, 2048 * 1280)
    for i in range(5):
        A(f"  buffer_load_dwordx4 {vr(8+4*i,4)}, v3, s[8:11], 0 offen offset:{256*i}")
    A.srd(12, 6, 128 * US, WS_U8)
    A.srd(20, 6, 2048 * 8, WS_ST1)
    A(f"""
  v_mul_u32_u24 v4, {RS}, v1
  v_lshl_add_u32 v4, v2, 4, v4
  v_bfe_u32 v5, v0, 4, 1               ; th
  v_bfe_u32 v6, v0, 2, 2               ; r
  v_lshl_add_u32 v5, v5, 3, v6
  v_mul_u32_u24 v5, {RS}, v5
  v_bfe_u32 v6, v0, 5, 1               ; cgl
  v_lshl_add_u32 v5, v6, 5, v5
  v_and_b32 v7, 3, v0
  v_lshl_add_u32 v5, v7, 3, v5
  v_lshrrev_b32 v7, 6, v0              ; wave
  v_mul_u32_u24 v72, 320, v7
  v_add_u32 v5, v5, v72
  v_mul_u32_u24 v72, 160, v7
  v_lshl_add_u32 v72, v6, 4, v72
  v_add_u32 v72, v72, v2
  v_lshlrev_b32 v72, 5, v72
  v_and_b32 v6, 16, v0                 ; th*16
  s_mul_i32 s17, s2, {US}
  v_add3_u32 v6, v6, v72, s17
  v_add_u32 v7, s16, v1
  v_lshlrev_b32 v7, 3, v7
""")
    X = 32
    for i in range(5):
        A(f"  s_waitcnt vmcnt({4-i})")
        for k in range(4):
            A(f"  v_lshlrev_b32 v{X+8*i+2*k}, 16, v{8+4*i+k}")
            A(f"  v_and_b32 v{X+8*i+2*k+1}, 0xffff0000, v{8+4*i+k}")
        if i == 0:
            A(f"  v_pk_add_f32 v[72:73], {vr(X,2)}, {vr(X+2,2)}")
            A(f"  v_pk_add_f32 v[74:75], {vr(X+4,2)}, {vr(X+6,2)}")
        else:
            for k in range(4):
                a = 72 + 2 * (k & 1)
                A(f"  v_pk_add_f32 {vr(a,2)}, {vr(a,2)}, {vr(X+8*i+2*k,2)}")
    if stamps: A("  s_memtime s[62:63]")
    def rowsum(v):
        for sh in (8, 4, 2, 1):
            A(f"  s_nop 1\n  v_add_f32 v{v}, v{v}, v{v} row_ror:{sh}")
    A("  v_pk_add_f32 v[72:73], v[72:73], v[74:75]\n  s_nop 0\n  v_add_f32 v72, v72, v73")
    rowsum(72)
    A(f"  v_mul_f32 v72, {fbits(-1.0/640)}, v72     ; -mean")
    D = 80
    for k in range(20):
        A(f"  v_pk_add_f32 {vr(D+2*k,2)}, {vr(X+2*k,2)}, v[72:73] op_sel_hi:[1,0]")
    A(f"  v_pk_mul_f32 v[74:75], {vr(D,2)}, {vr(D,2)}")
    A(f"  v_pk_mul_f32 v[76:77], {vr(D+2,2)}, {vr(D+2,2)}")
    for k in range(2, 20):
        a = 74 + 2 * (k & 1)
        A(f"  v_pk_fma_f32 {vr(a,2)}, {vr(D+2*k,2)}, {vr(D+2*k,2)}, {vr(a,2)}")
    A(f"""
  v_cvt_pk_bf16_f32 v78, -v72, -v72
  v_pk_add_f32 v[74:75], v[74:75], v[76:77]
  v_and_b32 v78, 0xffff0000, v78            ; m_bf
  v_add_f32 v74, v74, v75
""")
    def rnd(k):
        A(f"  v_cvt_pk_bf16_f32 v{X+2*k+1}, v{X+2*k}, v{X+2*k+1}")
        A(f"  v_lshlrev_b32 v{X+2*k}, 16, v{X+2*k+1}\n  v_and_b32 v{X+2*k+1}, 0xffff0000, v{X+2*k+1}")
    chain = []
    for sh in (8, 4, 2, 1): chain.append(f"  v_add_f32 v74, v74, v74 row_ror:{sh}")
    chain += [f"  v_mul_f32 v74, {fbits(1.0/640)}, v74", "  v_cvt_pk_bf16_f32 v74, v74, v74", "  v_lshlrev_b32 v74, 16, v74",
              f"  v_add_f32 v74, {fbits(1e-5)}, v74", "  v_cvt_pk_bf16_f32 v74, v74, v74", "  v_lshlrev_b32 v74, 16, v74",
              "  v_sqrt_f32 v74, v74", "  v_cvt_pk_bf16_f32 v74, v74, v74", "  v_lshlrev_b32 v74, 16, v74", "  v_rcp_f32 v79, v74"]
    for k in range(20):
        A(f"  v_pk_add_f32 {vr(X+2*k,2)}, {vr(X+2*k,2)}, v[78:79] op_sel_hi:[1,0] neg_lo:[0,1] neg_hi:[0,1]")
        rnd(k)
        if k < len(chain): A(chain[k])
    for k in range(20):
        A(f"  v_pk_mul_f32 {vr(X+2*k,2)}, {vr(X+2*k,2)}, v[78:79] op_sel:[0,1] op_sel_hi:[1,1]")
    for k in range(20):
        rnd(k)
        A(f"  v_cvt_pk_f16_f32 v{8+k}, v{X+2*k}, v{X+2*k+1}")
        if k % 4 == 3:
            A(f"  ds_write_b128 v4, {vr(8+k-3,4)} offset:{256*(k//4)}")
    A(f"""
  s_movk_i32 s26, 0x1000
  v_mov_b32 v120, 0
  v_mov_b32 v121, 0
  v_readfirstlane_b32 s19, v0
  s_cmp_lg_u32 s19, 0
  s_cbranch_scc1 {L}_noin
  global_load_dword v121, v120, s[28:29] sc1
{L}_noin:
  v_cmp_eq_u32 vcc, 0, v2
  s_and_saveexec_b64 s[24:25], vcc
  buffer_store_dwordx2 v[78:79], v7, s[20:23], 0 offen
  s_mov_b64 exec, s[24:25]
  {'s_memtime s[64:65]' if stamps else ''}
  s_waitcnt lgkmcnt(0)
  s_barrier
""")
    for k in range(5):
        for h in range(2):
            A(f"  ds_read_b64_tr_b16 {vr(32+4*k+2*h,2)}, v5 offset:{64*k + 4*h*RS}")
    for k in range(5):
        A(f"  s_waitcnt lgkmcnt({8-2*k})")
        A(f"  buffer_store_dwordx4 {vr(32+4*k,4)}, v6, s[12:15], {'0' if k < 4 else 's26'} offen offset:{1024*(k&3)} sc1")
    A(f"""
  {'s_memtime s[66:67]' if stamps else ''}
  s_waitcnt vmcnt(0)
  {'s_memtime s[68:69]' if stamps else ''}
  s_barrier
  {'s_memtime s[70:71]' if stamps else ''}
  v_cmp_gt_u32 vcc, {REP}, v0
  s_and_saveexec_b64 s[24:25], vcc
  s_cbranch_execz {L}_done
  s_mov_b32 s21, 200000
{L}_ipoll:
  v_cmp_eq_u32 vcc, 0, v121
  s_sub_u32 s21, s21, 1
  s_cmp_eq_u32 s21, 0
  s_cbranch_scc1 {L}_iok
  s_cbranch_vccz {L}_iok
  s_sleep 8
  global_load_dword v121, v120, s[28:29] sc1
  s_waitcnt vmcnt(0)
  s_branch {L}_ipoll
{L}_iok:
  s_and_b32 s17, s2, {NLIN - 1}
  s_lshl_b32 s17, s17, 7
  s_lshr_b32 s18, s2, {NLIN.bit_length() - 1}
  s_lshl_b32 s18, s18, 2
  s_add_u32 s17, s17, s18
  v_mul_u32_u24 v1, {RSZ}, v0
  v_add_u32 v1, s17, v1
  v_mov_b32 v2, 1
  global_store_dword v1, v2, s[30:31] {sfl}
""")
    if stamps:
        A("  s_waitcnt vmcnt(0)\n  s_memtime s[72:73]\n  s_waitcnt lgkmcnt(0)")
        A.srd(84, 6, 0x100000, 0x2060000)
        A(f"  s_lshl_b32 s83, s2, 5\n  v_mov_b32 v4, s83")
        for k in range(6):
            A(f"  s_sub_u32 s83, s{62+2*k}, s60\n  v_mov_b32 v5, s83\n  buffer_store_dword v5, v4, s[84:87], 0 offen offset:{4*k}")
    A("  s_endpgm")
    Lhi = f32r(LOG2E); Llo = LOG2E - Lhi
    nst = [0]
    def stamp():
        if stamps:
            A(f"  s_memtime s[{62+2*nst[0]}:{63+2*nst[0]}]\n  s_waitcnt lgkmcnt(0)")
            nst[0] += 1
    A(f"""
{L}_kgen:
  {'s_setprio 2' if ln2 else ''}
  {'s_memtime s[60:61]' if stamps else ''}
  s_sub_u32 s16, s2, {NLN}
  s_and_b32 s17, s16, 7
  s_mul_i32 s17, s17, 80
  s_lshr_b32 s16, s16, 3
  s_add_u32 s16, s16, s17
  s_load_dwordx4 s[4:7], s[0:1], {KA['logA']}
  s_load_dwordx4 s[8:11], s[0:1], {KA['Cre']}
  s_load_dwordx2 s[12:13], s[0:1], {KA['logdt']}
  s_load_dwordx4 s[36:39], s[0:1], {KA['dbg']}
  s_load_dwordx2 s[40:41], s[0:1], {KA['w1']}
  s_load_dwordx2 s[50:51], s[0:1], {KA['w2']}
  s_getpc_b64 s[18:19]
  s_add_u32 s18, s18, kimg_idx@rel32@lo+4
  s_addc_u32 s19, s19, kimg_idx@rel32@hi+12
  v_lshrrev_b32 v1, 6, v0
  v_lshlrev_b32 v2, 4, v0
  v_readfirstlane_b32 s3, v1              ; wave
  global_load_dwordx4 v[60:63], v2, s[18:19]
  v_add_u32 v2, 0x1000, v2
  global_load_dwordx4 v[64:67], v2, s[18:19]
  v_and_b32 v1, 127, v0                   ; mode
  s_lshl_b32 s17, s16, 8
  v_lshl_add_u32 v2, v1, 1, s17
  v_xor_b32 v3, 128, v2
  s_lshl_b32 s20, s16, 1
  s_and_b32 s21, s20, 0xfffffffc
  s_waitcnt lgkmcnt(0)
  s_load_dword s22, s[12:13], s21
  global_load_ushort v4, v2, s[4:5]       ; logA
  global_load_ushort v5, v2, s[6:7]       ; Aim
  global_load_ushort v6, v2, s[8:9]       ; Cre
  global_load_ushort v7, v2, s[10:11]     ; Cim
  global_load_ushort v8, v3, s[8:9]
  global_load_ushort v9, v3, s[10:11]
  v_lshlrev_b32 v1, 2, v1
""")
    F = kimg.fam
    vB0 = vAa = 112; vTo, vTo2, vAb, vWr, vEx, vU, vY, vFA, vFB, vKF, vFl = 113, 114, 115, 116, 117, 118, 119, 120, 121, 122, 123
    vFd, vIn, vZ = 124, 126, 127
    TP, ACC, NDF, DF = 4, 48, 8, 80
    GI = 68
    def taddr(fam_, dst):
        if fam_ == "R0":
            A(f"  v_mul_u32_u24 v51, {2*F['R0'][1]}, v49\n  v_lshl_add_u32 v51, v50, 1, v51\n  v_lshl_add_u32 v{dst}, v15, 4, v51")
        elif fam_ == "T16":
            A(f"  v_mul_u32_u24 v51, {2*F['T16'][1]}, v49\n  v_lshl_add_u32 v51, v50, 1, v51\n  v_mul_u32_u24 v55, {2*kimg.TLEN[16]}, v53\n  v_add3_u32 v{dst}, v51, v55, v54")
        elif fam_ == "T8":
            A(f"  v_and_b32 v51, 1, v48\n  v_mul_u32_u24 v51, {2*F['T8'][1]}, v51\n  v_and_b32 v55, 14, v48\n  v_lshl_add_u32 v51, v55, 2, v51\n  v_mul_u32_u24 v55, {2*kimg.TLEN[8]}, v53\n  v_add3_u32 v{dst}, v51, v55, v54")
        else:
            A(f"  v_lshlrev_b32 v51, 3, v48\n  v_mul_u32_u24 v55, {2*kimg.TLEN[4]}, v53\n  v_add3_u32 v{dst}, v51, v55, v54")
    def aaddr(P, dst):
        ae, ao = {4: (W3, U2), 8: (W5, W3 - 8), 16: (W9, W7 - 16)}[P]
        A(f"  v_mul_u32_u24 v51, {ao - ae}, v53\n  v_mul_u32_u24 v55, {2*P}, v56\n  v_add3_u32 v51, v51, v55, v57\n  v_add_u32 v{dst}, {ae - 32*P}, v51")
    A(f"""
  v_and_b32 v13, 63, v0                ; lane
  v_and_b32 v14, 15, v0                ; n / b
  v_bfe_u32 v15, v0, 4, 2              ; g
  v_lshlrev_b32 v{vWr}, 4, v0
  v_lshlrev_b32 v{vEx}, 4, v13
  v_lshrrev_b32 v{vU}, 1, v0
  v_mul_u32_u24 v{vU}, {US}, v{vU}
  v_and_b32 v51, 1, v0
  v_lshl_add_u32 v{vU}, v51, 4, v{vU}
  s_lshl_b32 s29, s16, 5
  v_add_u32 v{vU}, s29, v{vU}
  v_mul_u32_u24 v{vFB}, {TGS}, v14
  v_lshl_add_u32 v{vFB}, v15, 4, v{vFB}
  s_mul_i32 s30, s3, {16*TGS}
  v_add_u32 v{vFA}, s30, v{vFB}
  v_mul_u32_u24 v{vKF}, 192, v14
  v_lshl_add_u32 v{vKF}, v15, 4, v{vKF}
  s_lshl_b32 s30, s3, 6
  v_add_u32 v{vKF}, s30, v{vKF}
  v_mov_b32 v{vZ}, 0
  v_mov_b32 v{vFl}, 0
  v_mov_b32 v{vY}, 0
  v_sub_u32 v48, 15, v14               ; q
  v_and_b32 v49, 3, v48
  v_and_b32 v50, 12, v48
  v_and_b32 v52, 1, v15                ; hb
  v_lshrrev_b32 v53, 1, v15            ; pi
  s_cmp_ge_u32 s3, 2
  s_cbranch_scc1 {L}_aBC
  v_lshlrev_b32 v51, 5, v14
  v_lshl_add_u32 v51, v15, 4, v51
  v_add_u32 v{vB0}, {U0 - 544}, v51
""")
    if ln2:
        A(f"""
  v_lshrrev_b32 v51, 2, v14
  v_lshl_add_u32 v51, v52, 2, v51      ; 4*(g&1) + (n>>2)
  v_mul_u32_u24 v{vY}, {YS}, v51
  v_and_b32 v51, 3, v14
  v_lshl_add_u32 v{vY}, v51, 5, v{vY}
  v_lshl_add_u32 v{vY}, v53, 4, v{vY}
  s_lshl_b32 s30, s16, 7
  v_add_u32 v{vY}, s30, v{vY}
  v_mul_u32_u24 v{vFl}, 2560, v13
  s_lshl_b32 s30, s16, 2
  s_lshl_b32 s31, s3, 1
  s_add_u32 s30, s30, s31
  s_add_u32 s30, s30, {F2}
  v_add_u32 v{vFl}, s30, v{vFl}
""")
    else:
        A(f"""
  v_lshl_add_u32 v51, v52, 4, v14
  v_mul_u32_u24 v{vY}, {US}, v51
  v_lshl_add_u32 v{vY}, v53, 4, v{vY}
  v_add_u32 v{vY}, s29, v{vY}
""")
    taddr("R0", vTo)
    A(f"""
  s_branch {L}_adone
{L}_aBC:
  v_lshlrev_b32 v54, 4, v52
  v_bfe_u32 v56, v0, 2, 2
  v_lshl_add_u32 v56, v52, 3, v56      ; 8hb + r
  v_and_b32 v57, 3, v0
  v_lshlrev_b32 v57, 3, v57            ; 8*c4
  s_cmp_eq_u32 s3, 3
  s_cbranch_scc1 {L}_aC
""")
    taddr("T4", vTo); aaddr(4, vAa)
    A(f"  s_branch {L}_adone\n{L}_aC:")
    taddr("T8", vTo); taddr("T16", vTo2); aaddr(8, vAa); aaddr(16, vAb)
    A(f"""
  v_lshrrev_b32 v{vFl}, {(FPL // 2).bit_length() - 1}, v13
  v_lshlrev_b32 v{vFl}, 7, v{vFl}
  v_and_b32 v51, {FPL // 2 - 1}, v13
  v_lshl_add_u32 v{vFl}, v51, 3, v{vFl}
  s_and_b32 s30, s2, {REP - 1}
  s_mul_i32 s30, s30, {RSZ}
  v_add_u32 v{vFl}, s30, v{vFl}
{L}_adone:
  s_add_u32 s8, s38, {WS_U8}
  s_addc_u32 s9, s39, 0
  s_mov_b32 s10, {128 * US}
  s_mov_b32 s11, 0x00020000
  s_add_u32 s30, s38, {WS_SY}
  s_addc_u32 s31, s39, 0
  s_add_u32 s32, s38, {WS_Y8}
  s_addc_u32 s33, s39, 0
  s_mov_b32 s34, {32 * YS if ln2 else 128 * US}
  s_mov_b32 s35, 0x00020000
  s_waitcnt vmcnt(6)
""")
    for k in range(8):
        A(f"  v_and_b32 v{GI+2*k}, 0xffff, v{60+k}")
        A(f"  v_lshrrev_b32 v{GI+1+2*k}, 16, v{60+k}")
    A(f"""
  s_waitcnt lgkmcnt(0)
  s_and_b32 s20, s20, 2
  s_lshl_b32 s20, s20, 3
  s_lshr_b32 s22, s22, s20
  s_lshl_b32 s22, s22, 16
  s_mov_b32 s23, {fbits(Lhi)}
  s_mov_b32 s24, {fbits(Llo)}
  v_mov_b32 v10, s22
""")
    def exp_bf16(dst, src, t1, t2):
        A(f"""
  v_mul_f32 v{t1}, s23, v{src}
  v_fma_f32 v{t2}, v{src}, s23, -v{t1}
  v_fma_f32 v{t2}, v{src}, s24, v{t2}
  v_exp_f32 v{t1}, v{t1}
  v_mul_f32 v{t2}, {fbits(0.6931471805599453)}, v{t2}
  v_fma_f32 v{dst}, v{t1}, v{t2}, v{t1}
  v_cvt_pk_bf16_f32 v{dst}, v{dst}, v{dst}
  v_lshlrev_b32 v{dst}, 16, v{dst}
""")
    exp_bf16(10, 10, 11, 12)
    A("  s_waitcnt vmcnt(5)\n  v_lshlrev_b32 v4, 16, v4")
    exp_bf16(4, 4, 11, 12)
    A(f"""
  v_mul_f32 v4, v4, v10
  v_mul_f32 v4, {fbits(-LOG2E)}, v4
  s_waitcnt vmcnt(0)
  v_lshlrev_b32 v5, 16, v5
  v_mul_f32 v5, v5, v10
  v_mul_f32 v5, {fbits(0.15915494309189535)}, v5
  v_lshlrev_b32 v6, 16, v6
  v_lshlrev_b32 v7, 16, v7
  v_lshlrev_b32 v8, 16, v8
  v_lshlrev_b32 v9, 16, v9
  v_max3_f32 v11, |v6|, |v7|, |v8|
  v_max_f32 v11, v11, |v9|
  v_mul_f32 v11, v11, v10
""")
    for sh in (8, 4, 2, 1):
        A(f"  s_nop 1\n  v_max_f32 v11, v11, v11 row_ror:{sh}")
    A(f"""
  s_nop 0
  v_readlane_b32 s25, v11, 0
  v_readlane_b32 s26, v11, 16
  v_readlane_b32 s27, v11, 32
  v_readlane_b32 s28, v11, 48
  v_mul_f32 v6, v6, v10
  v_mul_f32 v7, v7, v10
  s_max_u32 s25, s25, s26
  s_max_u32 s27, s27, s28
  s_max_u32 s25, s25, s27
  s_lshr_b32 s25, s25, 23
  s_max_u32 s25, s25, 1
  s_min_u32 s25, s25, 253
  s_sub_u32 s26, 254, s25
  s_lshl_b32 s26, s26, 23
  s_add_u32 s27, s25, 1
  s_lshl_b32 s27, s27, 23
  v_mul_f32 v6, s26, v6
  v_mul_f32 v7, s26, v7
""")
    def pw(dst, p, t):
        if p == 1:
            A(f"  v_exp_f32 v{t}, v4\n  v_fract_f32 v{t+1}, v5")
        else:
            A(f"  v_mul_f32 v{t}, {fbits(float(p))}, v4\n  v_mul_f32 v{t+1}, {fbits(float(p))}, v5\n  v_exp_f32 v{t}, v{t}\n  v_fract_f32 v{t+1}, v{t+1}")
        A(f"  v_cos_f32 v{dst}, v{t+1}\n  v_sin_f32 v{dst+1}, v{t+1}\n  s_nop 0\n  v_mul_f32 v{dst}, v{dst}, v{t}\n  v_mul_f32 v{dst+1}, v{dst+1}, v{t}")
    tmp = [0]
    def cmul(d, a, b):
        t = 52 + 2 * (tmp[0] & 3); tmp[0] += 1
        A(f"  v_pk_mul_f32 {vr(t,2)}, {vr(a,2)}, {vr(b,2)} op_sel:[1,1] op_sel_hi:[1,0]")
        A(f"  v_pk_fma_f32 {vr(d,2)}, {vr(a,2)}, {vr(b,2)}, {vr(t,2)} op_sel_hi:[0,1,1] neg_lo:[0,0,1]")
    ow = [0]
    def putG(row, a, neg=False):
        o = 48 + (ow[0] & 3); ow[0] += 1
        if neg: A(f"  v_cvt_pk_f16_f32 v{o}, -v{a}, v{a+1}")
        else:   A(f"  v_cvt_pk_f16_f32 v{o}, v{a}, -v{a+1}")
        A(f"  ds_write_b32 v1, v{o} offset:{TG + row*TGS}")
    def putE(col, a):
        o = 48 + (ow[0] & 3); ow[0] += 1
        A(f"  v_cvt_pk_f16_f32 v{o}, v{a}, v{a+1}")
        A(f"  ds_write_b32 v1, v{o} offset:{TE + col*TGS}")
    A(f"  s_cmp_ge_u32 s3, 2\n  s_cbranch_scc1 {L}_part1")
    Wp = lambda j: 12 + 2 * (j - 1)
    pw(Wp(1), 1, 44); pw(28, 128, 40)
    putG(0, 6)
    cmul(Wp(2), Wp(1), Wp(1)); cmul(30, 6, 28)
    cmul(Wp(3), Wp(2), Wp(1)); cmul(Wp(4), Wp(2), Wp(2)); cmul(32, 30, 28)
    putG(8, 30)
    cmul(Wp(5), Wp(4), Wp(1)); cmul(Wp(6), Wp(4), Wp(2)); cmul(Wp(7), Wp(4), Wp(3)); cmul(Wp(8), Wp(4), Wp(4)); cmul(34, 32, 28)
    putG(16, 32); putG(20, 34)
    o = [36, 38, 40, 42]; k = 0
    for j in range(1, 8):
        for hb, row0 in ((6, 0), (30, 8)):
            r = o[k & 3]; k += 1
            cmul(r, hb, Wp(j)); putG(row0 + j, r)
    for jj, j in enumerate((2, 4, 6)):
        for hb, row0 in ((32, 16), (34, 20)):
            r = o[k & 3]; k += 1
            cmul(r, hb, Wp(j)); putG(row0 + jj + 1, r)
    A(f"  v_pk_add_f32 {vr(Wp(7),2)}, {vr(Wp(7),2)}, {vr(Wp(8),2)} neg_lo:[0,1] neg_hi:[0,1]")
    A(f"  v_pk_add_f32 {vr(Wp(6),2)}, {vr(Wp(6),2)}, {vr(Wp(8),2)} neg_lo:[0,1] neg_hi:[0,1]")
    cmul(36, 30, Wp(7)); putG(41, 36)
    cmul(38, 34, Wp(6)); putG(42, 38)
    A(f"  s_branch {L}_tabdone\n{L}_part1:")
    pw(12, 8, 44); pw(28, 128, 40); pw(30, 512, 44); pw(32, 4, 40)
    A(f"  v_mov_b32 v48, 0x3c00\n  ds_write_b32 v1, v48 offset:{TE}")
    A(f"  v_mov_b32 v49, 0\n  ds_write_b32 v1, v49 offset:{TG + kimg.ROW_ZERO*TGS}")
    putE(1, 12)
    cmul(14, 12, 12); cmul(34, 6, 30)
    putE(2, 14)
    cmul(20, 14, 12); cmul(16, 14, 14)
    putE(3, 20); putE(4, 16)
    cmul(22, 16, 12); cmul(24, 16, 14); cmul(26, 16, 20); cmul(18, 16, 16)
    putE(5, 22); putE(6, 24); putE(7, 26); putE(8, 18)
    Ereg = {1: 12, 2: 14, 3: 20, 4: 16, 5: 22, 6: 24, 7: 26}
    hcur = 34
    for a in range(4, 17):
        hn = 70 - hcur
        if a < 16: cmul(hn, hcur, 28)
        if a < 8:
            putG(24 + 2 * (a - 4), hcur)
            cmul(40, hcur, 32); putG(25 + 2 * (a - 4), 40)
        elif a < 16:
            putG(32 + (a - 8), hcur)
            if a == 8: putG(kimg.ROW_N1024, hcur, neg=True)
        else:
            putG(40, hcur)
        b = a - 4 + 1
        if 1 <= b <= 7:
            cmul(42, 18, Ereg[b]); putE(8 + b, 42)
        hcur = hn
    A(f"""
{L}_tabdone:
  s_waitcnt lgkmcnt(0)
  s_barrier
  s_cmp_ge_u32 s3, 3
  s_cbranch_scc1 {L}_w3a
""")
    for ks in range(4):
        A(f"  ds_read_b128 {vr(12+8*ks,4)}, v{vFA} offset:{TG + 64*ks}")
        A(f"  ds_read_b128 {vr(16+8*ks,4)}, v{vFB} offset:{TE + 64*ks}")
    for ks in range(8):
        b = 12 + 8 * (ks & 3)
        A(f"  s_waitcnt lgkmcnt({6 if ks < 5 else 2*(7-ks)})")
        A(f"  v_mfma_f32_16x16x32_f16 v[44:47], {vr(b,4)}, {vr(b+4,4)}, {'0' if ks == 0 else 'v[44:47]'}")
        if ks < 4:
            A(f"  ds_read_b128 {vr(b,4)}, v{vFA} offset:{TG + 64*(ks+4)}")
            A(f"  ds_read_b128 {vr(b+4,4)}, v{vFB} offset:{TE + 64*(ks+4)}")
    A(f"  s_nop 7\n  ds_write_b128 v{vKF}, v[44:47] offset:{KFO}\n  s_branch {L}_nomfma\n{L}_w3a:\n  global_load_dword v{vIn}, v{vZ}, s[36:37] sc1\n{L}_nomfma:")
    A("  v_pk_mov_b32 v[56:57], 0, 0\n  v_pk_mov_b32 v[58:59], 0, 0")
    A("  s_waitcnt lgkmcnt(0)\n  s_barrier")
    stamp()
    n2 = kimg.NEL // 8 - 256
    for k in range(8): A(f"  ds_read_b32 v{28+k}, v{GI+k} offset:{KFO}")
    A(f"  s_cmp_ge_u32 s3, 3\n  s_cbranch_scc1 {L}_pads")
    for k in range(8): A(f"  ds_read_b32 v{36+k}, v{GI+8+k} offset:{KFO}")
    A(f"  v_cmp_gt_u32 vcc, {n2}, v0")
    for k in range(4):
        A(f"  s_waitcnt lgkmcnt({14-2*k})\n  v_cvt_pk_f16_f32 v{44+k}, v{28+2*k}, v{29+2*k}")
    A(f"  ds_write_b128 v{vWr}, v[44:47] offset:{KI}")
    for k in range(4):
        A(f"  s_waitcnt lgkmcnt({7-2*k})\n  v_cvt_pk_f16_f32 v{48+k}, v{36+2*k}, v{37+2*k}")
    A(f"""
  s_and_saveexec_b64 s[24:25], vcc
  ds_write_b128 v{vWr}, v[48:51] offset:{KI + 4096}
  s_mov_b64 exec, -1
  s_branch {L}_img1
{L}_pads:
  s_mov_b32 exec_hi, 0xf
  ds_write_b128 v{vEx}, v[56:59] offset:{U0 - 576}
  ds_write_b128 v{vEx}, v[56:59] offset:{W7 - 576}
  s_mov_b32 exec_hi, 0
  ds_write_b128 v{vEx}, v[56:59] offset:{W9 - 512}
  s_mov_b32 exec_lo, 0x1ffff
  ds_write_b128 v{vEx}, v[56:59] offset:{W5 - 272}
  ds_write_b128 v{vEx}, v[56:59] offset:{W3 - 272}
  ds_write_b128 v{vEx}, v[56:59] offset:{U2 - 272}
  s_mov_b64 exec, -1
  s_mov_b32 s21, 200000
  s_waitcnt vmcnt(0)
{L}_poll0:                             ; the flag lines are meaningful only once the init flag is up
  v_cmp_eq_u32 vcc, 0, v{vIn}
  s_sub_u32 s21, s21, 1
  s_cmp_eq_u32 s21, 0
  s_cbranch_scc1 {L}_poll1a
  s_cbranch_vccz {L}_poll1a
  s_sleep 16
  global_load_dword v{vIn}, v{vZ}, s[36:37] sc1
  s_waitcnt vmcnt(0)
  s_branch {L}_poll0
{L}_poll1a:
  s_waitcnt lgkmcnt(6)
""")
    for k in range(4): A(f"  v_cvt_pk_f16_f32 v{44+k}, v{28+2*k}, v{29+2*k}")
    A(f"""
  ds_write_b128 v{vWr}, v[44:47] offset:{KI}
  {f'global_load_dwordx2 {vr(vFd,2)}, v{vFl}, s[30:31] {pfl}' if early else ''}
{L}_img1:
  s_waitcnt lgkmcnt(0)
  s_barrier
""")
    def tread(reg, va, off):
        A(f"  ds_read_b64 {vr(reg,2)}, v{va} offset:{off}\n  ds_read_b64 {vr(reg+2,2)}, v{va} offset:{off+8}")
    treg = {}
    A(f"  s_cmp_ge_u32 s3, 2\n  s_cbranch_scc1 {L}_tBC")
    for k in range(0, 17, 2):
        treg[("R0", k)] = TP + 2 * k; tread(TP + 2 * k, vTo, KI + 32 * (16 - k))
    treg[("RC",)] = TP + 36; tread(TP + 36, vTo, KI + 2 * kimg.RC_OFF)
    A(f"  s_branch {L}_polled\n{L}_tBC:\n  s_cmp_eq_u32 s3, 3\n  s_cbranch_scc1 {L}_tC")
    for kap in range(8):
        treg[("T", 4, kap)] = TP + 4 * kap; tread(TP + 4 * kap, vTo, KI + 2 * F["T4"][0] + 32 * kap)
    A(f"  s_branch {L}_polled\n{L}_tC:")
    if not early: A(f"  global_load_dwordx2 {vr(vFd,2)}, v{vFl}, s[30:31] {pfl}")
    for kap in range(6):
        treg[("T", 8, kap)] = TP + 4 * kap; tread(TP + 4 * kap, vTo, KI + 2 * F["T8"][0] + 32 * kap)
    for kap in range(5):
        treg[("T", 16, kap)] = TP + 24 + 4 * kap; tread(TP + 24 + 4 * kap, vTo2, KI + 2 * F["T16"][0] + 32 * kap)
    A(f"""
{L}_poll:
  s_sub_u32 s21, s21, 1
  s_waitcnt vmcnt(0)
  v_and_b32 v{vFd}, v{vFd}, v{vFd+1}
  v_cmp_ne_u32 vcc, 1, v{vFd}
  s_cmp_eq_u32 s21, 0
  s_cbranch_scc1 {L}_polled
  s_cbranch_vccz {L}_polled
  s_sleep {slp}
  global_load_dwordx2 {vr(vFd,2)}, v{vFl}, s[30:31] {pfl}
  s_branch {L}_poll
{L}_polled:
""")
    stamp()
    A("  s_barrier")
    stamp()
    def conv_pf(lab):
        A(f"  s_cmp_lt_u32 s3, 2\n  s_cbranch_scc1 {L}_{lab}")
        A(f"  s_and_b32 s42, s2, 7\n  s_sub_u32 s43, s2, {NLN}\n  s_lshr_b32 s43, s43, 3\n  s_lshl_b32 s43, s43, 7\n  s_sub_u32 s43, s43, 128\n  v_add_u32 v123, s43, v0")
        gen_prefetch(A, 1, 42, 123, 80 * 128, 40, 44, 124, 126, half=True)
        if cpw2 == 2:
            A.srd(44, 50, 1728 * 4096)
            A(f"  s_lshl_b32 s48, s42, 9\n  v_lshrrev_b32 v124, 2, v123\n  v_lshlrev_b32 v124, 12, v124\n  v_and_b32 v125, 3, v123\n  v_lshl_add_u32 v124, v125, 7, v124\n  buffer_load_dword v127, v124, s[44:47], s48 offen")
        A(f"{L}_{lab}:")
    SRC, OO, WA, WT = 80, 88, 96, 48
    E = lambda j: SRC + 2 + j
    O = lambda j: OO + 2 + j
    W = lambda a, j: WA + 4 * a + j
    A(f"""
  buffer_load_dwordx4 {vr(E(0),4)}, v{vU}, s[8:11], 0 offen sc1
  s_waitcnt vmcnt(0)
  ds_write_b128 v{vWr}, {vr(E(0),4)} offset:{U0}
  s_waitcnt lgkmcnt(0)
  s_barrier
""")
    stamp()
    if cpf == 1: conv_pf("cpf")
    A(f"  ds_read_b64 {vr(E(-2),2)}, v{vWr} offset:{U0 - 8}\n  ds_read_b64 {vr(E(4),2)}, v{vWr} offset:{U0 + 16}")
    for j in range(0, 3): A(f"  v_alignbit_b32 v{O(j)}, v{E(j+1)}, v{E(j)}, 16")
    A(f"  v_pk_mov_b32 {vr(WT+10,2)}, {vr(E(0),2)}, {vr(E(2),2)} op_sel:[1,0]")
    A("  s_waitcnt lgkmcnt(0)")
    for j in (-1, 3, -2, 4): A(f"  v_alignbit_b32 v{O(j)}, v{E(j+1)}, v{E(j)}, 16")
    A(f"  v_pk_mov_b32 {vr(WT+8,2)}, {vr(E(-2),2)}, {vr(E(0),2)} op_sel:[1,0]")
    def chainw(dst, src, x, y, off):
        for j in range(4): A(f"  v_pk_add_f16 v{W(dst,j)}, v{src(j)}, v{x(j)}")
        for j in range(4): A(f"  v_pk_add_f16 v{W(dst,j)}, v{W(dst,j)}, v{y(j)}")
        A(f"  ds_write_b128 v{vWr}, {vr(W(dst,0),4)} offset:{off}")
    A(f"  ds_write_b128 v{vWr}, {vr(WT+8,4)} offset:{U2}")
    chainw(0, lambda j: O(j-1), E, O, W3)
    chainw(1, lambda j: W(0,j), lambda j: E(j-1), lambda j: E(j+1), W5)
    A(f"  s_cmp_ge_u32 s3, 2\n  s_cbranch_scc1 {L}_prepdone")
    chainw(2, lambda j: W(1,j), lambda j: O(j-2), lambda j: O(j+1), W7)
    chainw(3, lambda j: W(2,j), lambda j: E(j-2), lambda j: E(j+2), W9)
    A(f"""
  s_cmp_lg_u32 s3, 0
  s_cbranch_scc1 {L}_prepdone
  v_pack_b32_f16 v{WT}, v{E(0)}, v{W(0,0)}
  v_pack_b32_f16 v{WT+1}, v{W(1,0)}, v{W(2,0)}
  v_lshlrev_b32 v{WT+2}, 16, v{E(0)}
  v_pack_b32_f16 v{WT+3}, v{W(0,0)}, v{W(1,0)}
  s_mov_b64 exec, 1
  ds_write_b64 v{vWr}, {vr(WT,2)} offset:{W9 - 8}
  ds_write_b64 v{vWr}, {vr(WT+2,2)} offset:{W7 - 8}
  ds_write_b32 v{vWr}, v{WT} offset:{W5 - 4}
  ds_write_b32 v{vWr}, v{WT+2} offset:{W3 - 4}
  s_mov_b64 exec, -1
{L}_prepdone:
  s_waitcnt lgkmcnt(0)
  s_barrier
""")
    stamp()
    if cpf == 2: conv_pf("cpf")
    def role(kind, tiles):
        lq = []
        def ds(tag, txt): A(txt); lq.append(tag)
        def lwait(tags):
            idxs = [i for i, t in enumerate(lq) if t in tags]
            if not idxs: return
            n = min(len(lq) - 1 - max(idxs), 15)
            A(f"  s_waitcnt lgkmcnt({n})"); del lq[:len(lq) - n]
        items = []
        if kind == "A":
            for e in list(range(-14, 113, 2)) + [16 * t - 63 for t in range(3, 8)]:
                ms = []
                if e & 1: ms.append(((e + 63) // 16, ("RC",), True))
                else:
                    t = -(-e // 16); k = 16 * t - e
                    ms.append((t, ("R0", k), True))
                    if k == 0: ms.append((t + 1, ("R0", 16), True))
                ms = [m for m in ms if m[0] in tiles]
                if ms: items.append(("u", e, ms))
        else:
            for P in ((4,) if kind == "B" else (8, 16)):
                s = 16 // P
                for J in range(-1, s * 7 - 8 + s + 3 + 1):
                    ms = [(t, ("T", P, J - s * t + 8), False) for t in range(8) if 0 <= J - s * t + 8 < s + 4]
                    items.append(("w", (P, J), ms))
        accr = {t: ACC + 4 * i for i, t in enumerate(tiles)}
        def load(idx):
            kd, x, _ = items[idx]
            r = DF + 4 * (idx % NDF)
            if kd == "u":
                ds(("D", idx), f"  ds_read_b128 {vr(r,4)}, v{vB0} offset:{32*(x+16)}")
            else:
                P, J = x
                va = vAb if P == 16 else vAa
                for h in range(2):
                    ds(("D", idx), f"  ds_read_b64_tr_b16 {vr(r+2*h,2)}, v{va} offset:{2*P*(16*(J+1)+4*h)}")
        assert PF + WB <= NDF + 1
        for idx in range(PF): load(idx)
        inited = set()
        for idx, (kd, x, ms) in enumerate(items):
            if idx + PF < len(items): load(idx + PF)
            r = DF + 4 * (idx % NDF)
            for (t, ttag, toepA) in ms:
                if ("D", idx) in lq: lwait({("D", idx + k) for k in range(WB)})
                acc = vr(accr[t], 4); c = acc if t in inited else "0"; inited.add(t)
                tr_ = vr(treg[ttag], 4)
                if toepA: A(f"  v_mfma_f32_16x16x32_f16 {acc}, {tr_}, {vr(r,4)}, {c}")
                else:     A(f"  v_mfma_f32_16x16x32_f16 {acc}, {vr(r,4)}, {tr_}, {c}")
        return accr
    exB = {t: EXS[t] for t in range(8)}
    exC = {t: EXS[7 + t] for t in range(1, 8)}
    A(f"  s_cmp_ge_u32 s3, 2\n  s_cbranch_scc1 {L}_rBC\n  s_cmp_eq_u32 s3, 1\n  s_cbranch_scc1 {L}_rA2")
    def finA(tiles):
        accr = role("A", tiles)
        if stamps: A(f"  s_memtime s[{62+2*nst[0]}:{63+2*nst[0]}]")
        A(f"  v_mov_b32 v2, s27\n  s_waitcnt lgkmcnt(0)\n  s_barrier")
        n = 0
        for i, t in enumerate(tiles):
            A(f"  ds_read_b128 {vr(DF+8*i,4)}, v{vEx} offset:{exB[t]}"); n += 1
            if t in exC: A(f"  ds_read_b128 {vr(DF+8*i+4,4)}, v{vEx} offset:{exC[t]}"); n += 1
        for i, t in enumerate(tiles):
            a = accr[t]
            n -= 2 if t in exC else 1
            A(f"  s_waitcnt lgkmcnt({n})")
            for r in (0, 2): A(f"  v_pk_add_f32 {vr(a+r,2)}, {vr(a+r,2)}, {vr(DF+8*i+r,2)}")
            if t in exC:
                for r in (0, 2): A(f"  v_pk_add_f32 {vr(a+r,2)}, {vr(a+r,2)}, {vr(DF+8*i+4+r,2)}")
            for r in (0, 2): A(f"  v_pk_mul_f32 {vr(a+r,2)}, {vr(a+r,2)}, v[2:3] op_sel_hi:[1,0]")
            o = TP + 4 * (i >> 1) + 2 * (i & 1)
            A(f"  v_cvt_pk_bf16_f32 v{o}, v{a}, v{a+1}\n  v_cvt_pk_bf16_f32 v{o+1}, v{a+2}, v{a+3}")
            if i & 1:
                b = TP + 4 * (i >> 1)
                A(f"  s_mov_b32 s20, {4 * (t - 1) * YS if ln2 else 16 * (t - 1) * US}\n  s_nop 0\n  v_permlane16_swap_b32 v{b}, v{b+2}\n  v_permlane16_swap_b32 v{b+1}, v{b+3}")
                A(f"  buffer_store_dwordx4 {vr(b,4)}, v{vY}, s[32:35], s20 offen {'sc1' if ln2 else ''}")
        if ln2:
            A(f"  v_mov_b32 v2, 1\n  s_mov_b64 exec, {(1 << R2) - 1}\n  s_waitcnt vmcnt(0)\n  global_store_short v{vFl}, v2, s[30:31] {sfl}\n  s_mov_b64 exec, -1")
        A(f"  s_branch {L}_fin")
    finA([0, 1, 2, 3])
    A(f"{L}_rA2:")
    finA([4, 5, 6, 7])
    A(f"{L}_rBC:\n  s_cmp_eq_u32 s3, 3\n  s_cbranch_scc1 {L}_rC")
    def finBC(kind, tiles, ex):
        accr = role(kind, tiles)
        if stamps: A(f"  s_memtime s[{62+2*nst[0]}:{63+2*nst[0]}]")
        A("  s_nop 1")
        for t in tiles:
            A(f"  ds_write_b128 v{vEx}, {vr(accr[t],4)} offset:{ex[t]}")
        A(f"  s_waitcnt lgkmcnt(0)\n  s_barrier\n  s_branch {L}_fin")
    finBC("B", list(range(8)), exB)
    A(f"{L}_rC:")
    finBC("C", list(range(1, 8)), exC)
    A(f"{L}_fin:")
    if stamps:
        nst[0] += 1
        A(f"  s_waitcnt vmcnt(0)\n  s_memtime s[{62+2*nst[0]}:{63+2*nst[0]}]\n  s_waitcnt lgkmcnt(0)"); nst[0] += 1
        A.srd(84, 38, 0x100000, 0x2040000)
        A(f"  s_lshl_b32 s83, s16, 2\n  s_add_u32 s83, s83, s3\n  s_lshl_b32 s83, s83, 5\n  v_mov_b32 v2, s83")
        for k in range(nst[0]):
            A(f"  s_sub_u32 s83, s{62+2*k}, s60\n  v_mov_b32 v3, s83\n  buffer_store_dword v3, v2, s[84:87], 0 offen offset:{4*k}")
    A("  s_endpgm")
    A(f"{L}_ln2:")
    if ln2:
        NQ, NE = 5, 20
        HROW = 336
        YB, HB = 0, 10240
        SB = HB + 4 * 8 * HROW + 256
        RX, RD, RY = 16, 26, 36
        X, U, Y, T = 46, 66, 86, 106
        P = range(NE // 2)
        A(f"""
  s_sub_u32 s16, s2, {NLN + 640}
  s_load_dwordx2 s[4:5], s[0:1], {KA['x']}
  s_load_dwordx2 s[28:29], s[0:1], {KA['Dsk']}
  s_load_dwordx4 s[36:39], s[0:1], {KA['dbg']}
  v_lshrrev_b32 v1, 6, v0
  v_and_b32 v2, 7, v0                  ; t
  v_readfirstlane_b32 s3, v1           ; wave
  v_and_b32 v1, 63, v0
  v_lshrrev_b32 v3, 3, v1              ; qq
  s_lshl_b32 s17, s16, 3
  v_add_u32 v4, s17, v2
  v_mul_u32_u24 v4, 1280, v4
  s_mul_i32 s17, s3, 320
  v_lshl_add_u32 v6, v3, 3, s17
  v_add_u32 v4, v4, v6                 ; x/h offset
  s_mov_b32 s14, {2048 * 1280}
  s_mov_b32 s15, 0x00020000
  s_mov_b32 s26, 1280
  s_mov_b32 s27, 0x00020000
  s_waitcnt lgkmcnt(0)
  s_mov_b32 s12, s4
  s_mov_b32 s13, s5
  s_mov_b32 s24, s28
  s_mov_b32 s25, s29
""")
        for i in range(NQ): A(f"  buffer_load_dwordx2 {vr(RX+2*i,2)}, v4, s[12:15], 0 offen offset:{64*i}")
        for i in range(NQ): A(f"  buffer_load_dwordx2 {vr(RD+2*i,2)}, v6, s[24:27], 0 offen offset:{64*i}")
        A.srd(8, 38, 32 * YS, WS_Y8)
        A.srd(32, 38, 2048 * 1280, WS_H)
        A.srd(40, 38, 8 * XT1, WS_HN8)
        A(f"""
  s_add_u32 s30, s38, {WS_SY + F2}
  s_addc_u32 s31, s39, 0
  s_mul_i32 s19, s3, 2560
  v_lshrrev_b32 v8, 4, v1
  v_lshlrev_b32 v8, 7, v8
  v_bfe_u32 v9, v1, 1, 1
  v_lshl_add_u32 v8, v9, 6, v8
  v_bfe_u32 v9, v1, 2, 2               ; r
  v_lshl_add_u32 v8, v9, 4, v8
  v_and_b32 v10, 1, v1
  v_lshl_add_u32 v8, v10, 3, v8
  v_add_u32 v8, s19, v8
  v_lshl_add_u32 v7, v1, 4, s19
  s_mul_i32 s44, s3, {8*HROW}
  s_add_u32 s44, s44, {HB}
  v_mul_u32_u24 v10, {HROW}, v2
  v_lshl_add_u32 v10, v3, 3, v10
  v_add_u32 v10, s44, v10
  v_mul_u32_u24 v11, {HROW}, v9
  v_lshrrev_b32 v12, 4, v1
  v_lshl_add_u32 v11, v12, 5, v11
  v_and_b32 v12, 3, v1
  v_lshl_add_u32 v11, v12, 3, v11
  v_add_u32 v11, s44, v11
  v_lshlrev_b32 v12, 5, v2
  v_add_u32 v12, {SB}, v12
  v_lshrrev_b32 v13, 5, v1
  v_lshl_add_u32 v13, v13, 2, v12
  s_lshl_b32 s45, s3, 3
  v_add_u32 v13, s45, v13
  s_mul_i32 s47, s16, 1280
  s_mul_i32 s46, s3, 160
  v_add_u32 v{T}, s46, v1
  s_lshr_b32 s18, s16, 3
  s_mul_i32 s18, s18, {YS}
  s_and_b32 s45, s16, 7
  s_lshl_b32 s45, s45, 4
  s_add_u32 s18, s18, s45
  v_lshlrev_b32 v5, 7, v{T}
  v_min_u32 v122, 39, v1
  v_lshlrev_b32 v122, 4, v122
  s_and_b32 s45, s16, {R2 - 1}
  s_mul_i32 s45, s45, 2560
  s_mul_i32 s48, s3, 640
  s_add_u32 s45, s45, s48
  v_add_u32 v122, s45, v122
  v_mov_b32 v123, 0
  s_mov_b32 s48, 0xff
  s_mov_b32 s49, 0xff
""")
        VO = 124
        for i in range(3):
            A(f"""
  v_mul_u32_u24 v{T+1}, 52429, v{T}
  v_lshrrev_b32 v{T+1}, 22, v{T+1}
  v_mul_u32_u24 v{T+1}, {XT1 - 1280}, v{T+1}
  v_lshl_add_u32 v{VO+i}, v{T}, 4, v{T+1}
  v_add_u32 v{T}, 64, v{T}
""")
        def unpack(dst, src):
            for k in P: A(f"  v_lshlrev_b32 v{dst+2*k}, 16, v{src+k}\n  v_and_b32 v{dst+2*k+1}, 0xffff0000, v{src+k}")
        def rnd(a):
            for k in P: A(f"  v_cvt_pk_bf16_f32 v{T+k}, v{a+2*k}, v{a+2*k+1}")
            unpack(a, T)
        def xreduce(s1, s2, off):
            A(f"""
  s_nop 1
  v_permlane32_swap_b32 v{s1}, v{s2}
  s_nop 1
  v_add_f32 v{s1}, v{s1}, v{s2}
  v_mov_b32 v{s2}, v{s1}
  s_nop 1
  v_permlane16_swap_b32 v{s1}, v{s2}
  s_nop 1
  v_add_f32 v{s1}, v{s1}, v{s2}
  s_nop 1
  v_add_f32 v{s1}, v{s1}, v{s1} row_ror:8
  s_mov_b64 exec, s[48:49]
  ds_write_b32 v13, v{s1} offset:{off}
  s_mov_b64 exec, -1
  s_waitcnt lgkmcnt(0)
  s_barrier
  ds_read_b128 {vr(T,4)}, v12 offset:{off}
  ds_read_b128 {vr(T+4,4)}, v12 offset:{off+16}
  s_waitcnt lgkmcnt(0)
  v_pk_add_f32 {vr(T,2)}, {vr(T,2)}, {vr(T+2,2)}
  v_pk_add_f32 {vr(T+4,2)}, {vr(T+4,2)}, {vr(T+6,2)}
  s_nop 0
  v_pk_add_f32 {vr(T,2)}, {vr(T,2)}, {vr(T+4,2)}
""")
        def sums(a, sq):
            S1, S2 = T + 8, T + 12
            A(f"  v_pk_add_f32 {vr(S1,2)}, {vr(a,2)}, {vr(a+2,2)}\n  v_pk_add_f32 {vr(S1+2,2)}, {vr(a+4,2)}, {vr(a+6,2)}")
            if sq: A(f"  v_pk_mul_f32 {vr(S2,2)}, {vr(a,2)}, {vr(a,2)}\n  v_pk_mul_f32 {vr(S2+2,2)}, {vr(a+2,2)}, {vr(a+2,2)}")
            for k in range(2, NE // 2):
                if k >= 4: A(f"  v_pk_add_f32 {vr(S1+2*(k&1),2)}, {vr(S1+2*(k&1),2)}, {vr(a+2*k,2)}")
                if sq: A(f"  v_pk_fma_f32 {vr(S2+2*(k&1),2)}, {vr(a+2*k,2)}, {vr(a+2*k,2)}, {vr(S2+2*(k&1),2)}")
            A(f"  v_pk_add_f32 {vr(S1,2)}, {vr(S1,2)}, {vr(S1+2,2)}")
            if sq: A(f"  v_pk_add_f32 {vr(S2,2)}, {vr(S2,2)}, {vr(S2+2,2)}")
            A(f"  s_nop 0\n  v_add_f32 v{S1}, v{S1}, v{S1+1}")
            if sq: A(f"  v_add_f32 v{S1+1}, v{S2}, v{S2+1}")
            else:  A(f"  v_mov_b32 v{S1+1}, 0")
            return S1, S1 + 1
        A(f"  s_waitcnt vmcnt({NQ})")
        unpack(X, RX)
        xreduce(*sums(X, False), 0)
        A(f"  v_mul_f32 v14, {fbits(1.0/640)}, v{T}          ; mean")
        for k in P: A(f"  v_pk_add_f32 {vr(U+2*k,2)}, {vr(X+2*k,2)}, v[14:15] op_sel_hi:[1,0] neg_lo:[0,1] neg_hi:[0,1]")
        xreduce(*sums(U, True), 256)
        A(f"""
  v_mul_f32 v15, {fbits(1.0/640)}, v{T+1}
  v_cvt_pk_bf16_f32 v15, v15, v14
  v_and_b32 v14, 0xffff0000, v15            ; m_bf
  v_lshlrev_b32 v15, 16, v15
  v_add_f32 v15, {fbits(1e-5)}, v15
  v_cvt_pk_bf16_f32 v15, v15, v15
  v_lshlrev_b32 v15, 16, v15
  v_sqrt_f32 v15, v15
  s_nop 0
  v_cvt_pk_bf16_f32 v15, v15, v15
  v_lshlrev_b32 v15, 16, v15
  v_rcp_f32 v15, v15                        ; rs
""")
        for k in P: A(f"  v_pk_add_f32 {vr(U+2*k,2)}, {vr(X+2*k,2)}, v[14:15] op_sel_hi:[1,0] neg_lo:[0,1] neg_hi:[0,1]")
        rnd(U)
        for k in P: A(f"  v_pk_mul_f32 {vr(U+2*k,2)}, {vr(U+2*k,2)}, v[14:15] op_sel:[0,1] op_sel_hi:[1,1]")
        rnd(U)
        A("  s_waitcnt vmcnt(0)")
        unpack(Y, RD)
        for k in P: A(f"  v_pk_mul_f32 {vr(U+2*k,2)}, {vr(U+2*k,2)}, {vr(Y+2*k,2)}")
        rnd(U)
        A(f"""
  s_mov_b32 s21, 100000
  s_mov_b32 s20, 0x10001
{L}_q0:
  global_load_dword v{T}, v123, s[36:37] sc1
  s_sub_u32 s21, s21, 1
  s_waitcnt vmcnt(0)
  v_cmp_eq_u32 vcc, 0, v{T}
  s_cmp_eq_u32 s21, 0
  s_cbranch_scc1 {L}_q2
  s_cbranch_vccz {L}_q1
  s_sleep 16
  s_branch {L}_q0
{L}_q1:
  global_load_dwordx4 {vr(T,4)}, v122, s[30:31] {pfl}
  s_sub_u32 s21, s21, 1
  s_waitcnt vmcnt(0)
  v_and_b32 v{T}, v{T}, v{T+1}
  v_and_b32 v{T+2}, v{T+2}, v{T+3}
  v_and_b32 v{T}, v{T}, v{T+2}
  v_cmp_ne_u32 vcc, s20, v{T}
  s_cmp_eq_u32 s21, 0
  s_cbranch_scc1 {L}_q2
  s_cbranch_vccz {L}_q2
  s_cmp_eq_u64 vcc, exec
  s_cbranch_scc1 {L}_q1b
  s_sleep {slp2}
  s_branch {L}_q1
{L}_q1b:
  s_sleep {slp3}
  s_branch {L}_q1
{L}_q2:
  s_add_u32 s45, s18, {64*128}
  s_add_u32 s46, s18, {128*128}
  buffer_load_dwordx4 {vr(Y,4)}, v5, s[8:11], s18 offen sc1
  buffer_load_dwordx4 {vr(Y+4,4)}, v5, s[8:11], s45 offen sc1
  s_mov_b32 exec_hi, 0
  buffer_load_dwordx4 {vr(Y+8,4)}, v5, s[8:11], s46 offen sc1
  s_mov_b32 exec_hi, -1
  s_waitcnt vmcnt(2)
  ds_write_b128 v7, {vr(Y,4)} offset:{YB}
  s_waitcnt vmcnt(1)
  ds_write_b128 v7, {vr(Y+4,4)} offset:{YB + 1024}
  s_waitcnt vmcnt(0)
  s_mov_b32 exec_hi, 0
  ds_write_b128 v7, {vr(Y+8,4)} offset:{YB + 2048}
  s_mov_b32 exec_hi, -1
""")
        for i in range(NQ): A(f"  ds_read_b64_tr_b16 {vr(RY+2*i,2)}, v8 offset:{YB + 512*i}")
        A("  s_waitcnt lgkmcnt(0)")
        unpack(Y, RY)
        for k in P: A(f"  v_pk_add_f32 {vr(Y+2*k,2)}, {vr(Y+2*k,2)}, {vr(U+2*k,2)}")
        rnd(Y)
        for k in P: A(f"  v_pk_add_f32 {vr(X+2*k,2)}, {vr(X+2*k,2)}, {vr(Y+2*k,2)}")
        for k in P: A(f"  v_cvt_pk_bf16_f32 v{RX+k}, v{X+2*k}, v{X+2*k+1}")
        for i in range(NQ): A(f"  buffer_store_dwordx2 {vr(RX+2*i,2)}, v4, s[32:35], 0 offen offset:{64*i} sc1")
        unpack(X, RX)
        for k in P: A(f"  v_pk_add_f32 {vr(X+2*k,2)}, {vr(X+2*k,2)}, v[14:15] op_sel_hi:[1,0] neg_lo:[0,1] neg_hi:[0,1]")
        xreduce(*sums(X, True), 512)
        a = T
        A(f"""
  v_mul_f32 v{a}, {fbits(1.0/640)}, v{a}
  v_mul_f32 v{a+1}, {fbits(1.0/640)}, v{a+1}
  v_fma_f32 v{a+1}, -v{a}, v{a}, v{a+1}       ; var2
  v_max_f32 v{a+1}, 0, v{a+1}
  v_add_f32 v{a+2}, v{a}, v14                 ; mean2
  v_cvt_pk_bf16_f32 v{a+3}, v{a+1}, v{a+2}
  v_lshlrev_b32 v{a+4}, 16, v{a+3}
  v_and_b32 v{a+3}, 0xffff0000, v{a+3}        ; m2_bf
  v_add_f32 v{a+4}, {fbits(1e-5)}, v{a+4}
  v_cvt_pk_bf16_f32 v{a+4}, v{a+4}, v{a+4}
  v_lshlrev_b32 v{a+4}, 16, v{a+4}
  v_sqrt_f32 v{a+4}, v{a+4}
  v_sub_f32 v{a+5}, v{a+3}, v14
  v_cvt_pk_bf16_f32 v{a+4}, v{a+4}, v{a+4}
  v_lshlrev_b32 v{a+4}, 16, v{a+4}
  v_rcp_f32 v{a+4}, v{a+4}                    ; r2
  v_sub_f32 v{a+6}, v{a}, v{a+5}
  v_mul_f32 v{a+6}, v{a+6}, v{a+4}            ; mean3
  v_mul_f32 v{a+7}, v{a+1}, v{a+4}
  v_mul_f32 v{a+7}, v{a+7}, v{a+4}            ; var3
  v_cvt_pk_bf16_f32 v{a+7}, v{a+7}, v{a+6}
  v_and_b32 v{a+6}, 0xffff0000, v{a+7}
  v_lshlrev_b32 v{a+7}, 16, v{a+7}
  v_add_f32 v{a+7}, {fbits(1e-5)}, v{a+7}
  v_cvt_pk_bf16_f32 v{a+7}, v{a+7}, v{a+7}
  v_lshlrev_b32 v{a+7}, 16, v{a+7}
  v_sqrt_f32 v{a+7}, v{a+7}
  v_fma_f32 v{a+6}, v{a+5}, v{a+4}, v{a+6}
  v_cvt_pk_bf16_f32 v{a+7}, v{a+7}, v{a+7}
  v_lshlrev_b32 v{a+7}, 16, v{a+7}
  v_rcp_f32 v{a+7}, v{a+7}                    ; r3
  s_nop 0
  v_mul_f32 v{a+8}, v{a+4}, v{a+7}
  v_mul_f32 v{a+10}, v{a+6}, v{a+7}
""")
        for k in P:
            A(f"  v_pk_fma_f32 {vr(X+2*k,2)}, {vr(X+2*k,2)}, {vr(a+8,2)}, {vr(a+10,2)} op_sel_hi:[1,0,0] neg_lo:[0,0,1] neg_hi:[0,0,1]")
        for k in P:
            A(f"  v_cvt_pk_bf16_f32 v{U+k}, v{X+2*k}, v{X+2*k+1}")
            if k & 1: A(f"  ds_write_b64 v10, {vr(U+k-1,2)} offset:{64*(k>>1)}")
        for i in range(3):
            A(f"  ds_read_b64_tr_b16 {vr(Y+4*i,2)}, v11 offset:{128*i}")
            A(f"  ds_read_b64_tr_b16 {vr(Y+4*i+2,2)}, v11 offset:{128*i + 4*HROW}")
        for i in range(3):
            A(f"  s_waitcnt lgkmcnt({4-2*i})")
            if i == 2: A("  s_mov_b32 exec_hi, 0")
            A(f"  buffer_store_dwordx4 {vr(Y+4*i,4)}, v{VO+i}, s[40:43], s47 offen sc1")
    A(f"{L}_done:\n  s_endpgm")
    A(".p2align 8\ncode_pf_begin:")
    A.kernel_desc(name, 128, 96 if stamps else 56)
    idx = [i * 4 for i in kimg.img] + [kimg.ZERO * 4] * (4096 - kimg.NEL)
    tbl = ".p2align 4\n.type kimg_idx,@object\nkimg_idx:\n"
    for i in range(0, 4096, 16):
        tbl += "  .short " + ", ".join(str(v) for v in idx[i:i+16]) + "\n"
    tbl += ".size kimg_idx, 8192"
    A.desc.append(tbl)
```

```python
from asmlib import *
from pf import gen_prefetch

def gen_k3(A, name="k3_kernel", NW=5, mimic=0, y16=0, wide=1, remap=1, ylast=1, pf=''):
    NQ = 20 // NW
    CW = 640 // NW
    YB = 0
    HROW = 2 * CW + 16
    HB = 10240
    SB = HB + NW * 8 * HROW
    SROW = 48 if NW == 5 else 96
    LDS = SB + 8 * SROW
    A.add_launch(name, 256, 64 * NW, LDS)
    A.kernel_begin(name)
    L = name
    NE = 4 * NQ
    RX, RD, RY = 16, 16 + 2 * NQ, 16 + 4 * NQ
    X = 16 + 6 * NQ
    X += X & 1
    U = X + NE
    Y = U + NE
    T = Y + NE
    A(f"""
  s_cmp_ge_u32 s2, 256
  s_cbranch_scc1 {L}_done
  s_load_dwordx2 s[4:5], s[0:1], {KA['x']}
  s_load_dwordx2 s[50:51], s[0:1], {KA['w1']}
  s_mov_b32 s49, s2
""")
    if remap:
        A("""
  s_and_b32 s16, s2, 7
  s_lshl_b32 s16, s16, 1
  s_bfe_u32 s17, s2, 0x10003
  s_add_u32 s16, s16, s17
  s_and_b32 s2, s2, 0xf0
  s_add_u32 s2, s2, s16
""")
    A(f"""
  s_load_dwordx2 s[6:7], s[0:1], {KA['ws']}
  s_load_dwordx2 s[28:29], s[0:1], {KA['Dsk']}
  v_lshrrev_b32 v1, 6, v0
  v_and_b32 v2, 7, v0                  ; t
  v_readfirstlane_b32 s3, v1           ; wave
  v_and_b32 v1, 63, v0                 ; lane
  v_lshrrev_b32 v3, 3, v1              ; qq
  s_lshl_b32 s16, s2, 3                ; token0
  v_add_u32 v4, s16, v2                ; token
  v_lshlrev_b32 v5, 3, v4
  v_mul_u32_u24 v4, 1280, v4
  s_mul_i32 s17, s3, {2*CW}
  v_lshl_add_u32 v6, v3, {4 if wide else 3}, s17
  v_add_u32 v4, v4, v6                 ; x/h offset
  v_lshlrev_b32 v7, 4, v1              ; lane*16
  s_mul_i32 s19, s3, {16*CW}
""")
    US = 640 * 32 + 128
    if y16:
        assert NQ == 2
        A(f"""
  s_lshr_b32 s18, s2, 1
  s_mul_i32 s18, s18, {US}
  s_and_b32 s44, s2, 1
  s_lshl_b32 s44, s44, 4
  s_add_u32 s18, s18, s44
  v_lshlrev_b32 v{T+20}, 5, v0          ; tid*32
""")
    else:
        A(f"  s_mul_i32 s18, s2, {XS}\n  s_add_u32 s18, s18, s19\n  v_mov_b32 v{T+20}, v7")
    A(f"""
  s_add_u32 m0, s19, {YB}
  s_mov_b32 s10, {128 * US if y16 else 256 * XS}
  s_mov_b32 s11, 0x00020000
  s_mov_b32 s14, {2048 * 1280}
  s_mov_b32 s15, 0x00020000
  s_mov_b32 s22, {2048 * 8}
  s_mov_b32 s23, 0x00020000
  s_mov_b32 s26, 1280
  s_mov_b32 s27, 0x00020000
  s_waitcnt lgkmcnt(0)
  s_add_u32 s8, s6, {WS_Y8}
  s_addc_u32 s9, s7, 0
  s_mov_b32 s12, s4
  s_mov_b32 s13, s5
""")
    if not ylast:
        for i in range(NQ // 2):
            A(f"  buffer_load_dwordx4 v{T+20}, s[8:11], s18 offen offset:{1024*i} lds")
    if wide:
        assert NQ == 2
        A(f"  buffer_load_dwordx4 {vr(RX,4)}, v4, s[12:15], 0 offen")
    else:
        for i in range(NQ):
            A(f"  buffer_load_dwordx2 {vr(RX+2*i,2)}, v4, s[12:15], 0 offen offset:{64*i}")
    A(f"  s_add_u32 s20, s6, {WS_ST1}\n  s_addc_u32 s21, s7, 0")
    A("  buffer_load_dwordx2 v[14:15], v5, s[20:23], 0 offen")
    A("  s_mov_b32 s24, s28\n  s_mov_b32 s25, s29")
    if wide:
        A(f"  buffer_load_dwordx4 {vr(RD,4)}, v6, s[24:27], 0 offen")
    else:
        for i in range(NQ):
            A(f"  buffer_load_dwordx2 {vr(RD+2*i,2)}, v6, s[24:27], 0 offen offset:{64*i}")
    if ylast:
        for i in range(NQ // 2):
            A(f"  buffer_load_dwordx4 v{T+20}, s[8:11], s18 offen offset:{1024*i} lds")
    A.srd(32, 6, 2048 * 1280, WS_H)
    A.srd(36, 6, 8 * XT1, WS_HN8)
    A(f"""
  v_lshrrev_b32 v8, 4, v1
  v_lshlrev_b32 v8, {8 if wide else 7}, v8
  v_bfe_u32 v9, v1, 1, 1
  v_lshl_add_u32 v8, v9, {7 if wide else 6}, v8
  v_bfe_u32 v9, v1, 2, 2               ; r
  v_lshl_add_u32 v8, v9, 4, v8
  v_and_b32 v10, 1, v1
  v_lshl_add_u32 v8, v10, 3, v8
  v_add_u32 v8, s19, v8
  s_mul_i32 s40, s3, {8*HROW}
  s_add_u32 s40, s40, {HB}
  v_mul_u32_u24 v10, {HROW}, v2
  v_lshl_add_u32 v10, v3, {4 if wide else 3}, v10
  v_add_u32 v10, s40, v10
  v_mul_u32_u24 v11, {HROW}, v9
  v_lshrrev_b32 v12, 4, v1
  v_lshl_add_u32 v11, v12, 5, v11
  v_and_b32 v12, 3, v1
  v_lshl_add_u32 v11, v12, 3, v11
  v_add_u32 v11, s40, v11
  v_mul_u32_u24 v12, {SROW}, v2
  v_add_u32 v12, {SB}, v12
  v_lshrrev_b32 v13, 5, v1
  v_lshl_add_u32 v13, v13, 2, v12
  s_lshl_b32 s41, s3, 3
  v_add_u32 v13, s41, v13
  s_mul_i32 s47, s2, 1280
  s_mul_i32 s42, s3, {CW}
""")
    VO = T + 24
    for i in range(NQ // 2):
        A(f"""
  v_add_u32 v{T}, s42, v1
  {f'v_add_u32 v{T}, {64*i}, v{T}' if i else ''}
  v_mul_u32_u24 v{T+1}, 52429, v{T}
  v_lshrrev_b32 v{T+1}, 22, v{T+1}
  v_mul_u32_u24 v{T+1}, {XT1 - 1280}, v{T+1}
  v_lshl_add_u32 v{VO+i}, v{T}, 4, v{T+1}
""")
    def yreads():
        for i in range(NQ):
            A(f"  ds_read_b64_tr_b16 {vr(RY+2*i,2)}, v8 offset:{YB + (64 if wide else 512)*i}")
    if ylast:
        assert wide
        A("  s_waitcnt vmcnt(2)")
    else:
        A(f"  s_waitcnt vmcnt({3 if wide else 2*NQ + 1})")
        yreads()
        A(f"  s_waitcnt vmcnt({1 if wide else NQ})")
    def unpack(dst, src):
        for k in range(NE // 2):
            A(f"  v_lshlrev_b32 v{dst+2*k}, 16, v{src+k}\n  v_and_b32 v{dst+2*k+1}, 0xffff0000, v{src+k}")
    def rnd(a):
        for k in range(NE // 2): A(f"  v_cvt_pk_bf16_f32 v{T+k}, v{a+2*k}, v{a+2*k+1}")
        unpack(a, T)
    P = range(NE // 2)
    unpack(X, RX)
    for k in P: A(f"  v_pk_add_f32 {vr(U+2*k,2)}, {vr(X+2*k,2)}, v[14:15] op_sel_hi:[1,0] neg_lo:[0,1] neg_hi:[0,1]")
    rnd(U)
    for k in P: A(f"  v_pk_mul_f32 {vr(U+2*k,2)}, {vr(U+2*k,2)}, v[14:15] op_sel:[0,1] op_sel_hi:[1,1]")
    rnd(U)
    A(f"  s_waitcnt vmcnt({1 if ylast else 0})")
    unpack(Y, RD)
    for k in P: A(f"  v_pk_mul_f32 {vr(U+2*k,2)}, {vr(U+2*k,2)}, {vr(Y+2*k,2)}")
    rnd(U)
    if ylast:
        A("  s_waitcnt vmcnt(0)")
        yreads()
    if pf:
        A(f"  s_and_b32 s48, s49, 7\n  s_xor_b32 s48, s48, {1 if pf == 'o' else 0}\n  s_lshr_b32 s49, s49, 3\n  s_mul_i32 s49, s49, 640\n  v_add_u32 v{VO+1}, s49, v0")
        gen_prefetch(A, 1, 48, VO + 1, 20480, 50, 52, VO + 2, VO + 3, half=(pf == 'o'))
    A("  s_waitcnt lgkmcnt(0)")
    unpack(Y, RY)
    for k in P: A(f"  v_pk_add_f32 {vr(Y+2*k,2)}, {vr(Y+2*k,2)}, {vr(U+2*k,2)}")
    rnd(Y)
    for k in P: A(f"  v_pk_add_f32 {vr(X+2*k,2)}, {vr(X+2*k,2)}, {vr(Y+2*k,2)}")
    for k in P: A(f"  v_cvt_pk_bf16_f32 v{RX+k}, v{X+2*k}, v{X+2*k+1}")
    if wide:
        A(f"  buffer_store_dwordx4 {vr(RX,4)}, v4, s[32:35], 0 offen sc1")
    else:
        for i in range(NQ):
            A(f"  buffer_store_dwordx2 {vr(RX+2*i,2)}, v4, s[32:35], 0 offen offset:{64*i} sc1")
    unpack(X, RX)
    for k in P: A(f"  v_pk_add_f32 {vr(X+2*k,2)}, {vr(X+2*k,2)}, v[14:15] op_sel_hi:[1,0] neg_lo:[0,1] neg_hi:[0,1]")
    S1, S2 = T, T + 4
    A(f"  v_pk_add_f32 {vr(S1,2)}, {vr(X,2)}, {vr(X+2,2)}\n  v_pk_add_f32 {vr(S1+2,2)}, {vr(X+4,2)}, {vr(X+6,2)}")
    A(f"  v_pk_mul_f32 {vr(S2,2)}, {vr(X,2)}, {vr(X,2)}\n  v_pk_mul_f32 {vr(S2+2,2)}, {vr(X+2,2)}, {vr(X+2,2)}")
    for k in range(2, NE // 2):
        if k >= 4: A(f"  v_pk_add_f32 {vr(S1+2*(k&1),2)}, {vr(S1+2*(k&1),2)}, {vr(X+2*k,2)}")
        A(f"  v_pk_fma_f32 {vr(S2+2*(k&1),2)}, {vr(X+2*k,2)}, {vr(X+2*k,2)}, {vr(S2+2*(k&1),2)}")
    A(f"""
  v_pk_add_f32 {vr(S1,2)}, {vr(S1,2)}, {vr(S1+2,2)}
  v_pk_add_f32 {vr(S2,2)}, {vr(S2,2)}, {vr(S2+2,2)}
  s_mov_b32 s42, 0xff
  v_add_f32 v{S1}, v{S1}, v{S1+1}
  v_add_f32 v{S1+1}, v{S2}, v{S2+1}
  s_mov_b32 s43, 0xff
  s_nop 0
  v_permlane32_swap_b32 v{S1}, v{S1+1}
  s_nop 1
  v_add_f32 v{S1}, v{S1}, v{S1+1}
  v_mov_b32 v{S1+1}, v{S1}
  s_nop 1
  v_permlane16_swap_b32 v{S1}, v{S1+1}
  s_nop 1
  v_add_f32 v{S1}, v{S1}, v{S1+1}
  s_nop 1
  v_add_f32 v{S1}, v{S1}, v{S1} row_ror:8
  s_mov_b64 exec, s[42:43]
  ds_write_b32 v13, v{S1}
  s_mov_b64 exec, -1
  s_waitcnt lgkmcnt(0)
  s_barrier
""")
    nr = (NW * 8 + 15) // 16
    for k in range(nr):
        if k == nr - 1 and (NW * 8) % 16:
            A(f"  ds_read_b64 {vr(T+4*k,2)}, v12 offset:{16*k}")
        else:
            A(f"  ds_read_b128 {vr(T+4*k,4)}, v12 offset:{16*k}")
    A("  s_waitcnt lgkmcnt(0)")
    pairs = [T + 2 * k for k in range(NW)]
    while len(pairs) > 1:
        nx = []
        for k in range(0, len(pairs) - 1, 2):
            A(f"  v_pk_add_f32 {vr(pairs[k],2)}, {vr(pairs[k],2)}, {vr(pairs[k+1],2)}"); nx.append(pairs[k])
        if len(pairs) & 1: nx.append(pairs[-1])
        pairs = nx
    a = T
    A(f"""
  s_mov_b32 s42, {fbits(1.0/640)}
  v_mul_f32 v{a}, s42, v{a}
  v_mul_f32 v{a+1}, s42, v{a+1}
  v_fma_f32 v{a+1}, -v{a}, v{a}, v{a+1}       ; var2
  v_max_f32 v{a+1}, 0, v{a+1}
  v_add_f32 v{a+2}, v{a}, v14                 ; mean2
  v_cvt_pk_bf16_f32 v{a+3}, v{a+1}, v{a+2}
  v_lshlrev_b32 v{a+4}, 16, v{a+3}            ; v2_bf
  v_and_b32 v{a+3}, 0xffff0000, v{a+3}        ; m2_bf
  v_add_f32 v{a+4}, {fbits(1e-5)}, v{a+4}
  v_cvt_pk_bf16_f32 v{a+4}, v{a+4}, v{a+4}
  v_lshlrev_b32 v{a+4}, 16, v{a+4}
  v_sqrt_f32 v{a+4}, v{a+4}
  v_sub_f32 v{a+5}, v{a+3}, v14               ; m2_bf - m1
  v_cvt_pk_bf16_f32 v{a+4}, v{a+4}, v{a+4}
  v_lshlrev_b32 v{a+4}, 16, v{a+4}            ; sd2
  v_rcp_f32 v{a+4}, v{a+4}                    ; r2
  v_sub_f32 v{a+6}, v{a}, v{a+5}
  v_mul_f32 v{a+6}, v{a+6}, v{a+4}            ; mean3
  v_mul_f32 v{a+7}, v{a+1}, v{a+4}
  v_mul_f32 v{a+7}, v{a+7}, v{a+4}            ; var3
  v_cvt_pk_bf16_f32 v{a+7}, v{a+7}, v{a+6}
  v_and_b32 v{a+6}, 0xffff0000, v{a+7}        ; m3_bf
  v_lshlrev_b32 v{a+7}, 16, v{a+7}
  v_add_f32 v{a+7}, {fbits(1e-5)}, v{a+7}
  v_cvt_pk_bf16_f32 v{a+7}, v{a+7}, v{a+7}
  v_lshlrev_b32 v{a+7}, 16, v{a+7}
  v_sqrt_f32 v{a+7}, v{a+7}
  v_fma_f32 v{a+6}, v{a+5}, v{a+4}, v{a+6}
  v_cvt_pk_bf16_f32 v{a+7}, v{a+7}, v{a+7}
  v_lshlrev_b32 v{a+7}, 16, v{a+7}
  v_rcp_f32 v{a+7}, v{a+7}                    ; r3
  s_nop 0
  v_mul_f32 v{a+8}, v{a+4}, v{a+7}            ; A
  v_mul_f32 v{a+10}, v{a+6}, v{a+7}           ; -B
""")
    for k in P:
        A(f"  v_pk_fma_f32 {vr(X+2*k,2)}, {vr(X+2*k,2)}, {vr(a+8,2)}, {vr(a+10,2)} op_sel_hi:[1,0,0] neg_lo:[0,0,1] neg_hi:[0,0,1]")
    for k in P:
        A(f"  v_cvt_pk_bf16_f32 v{U+k}, v{X+2*k}, v{X+2*k+1}")
        if wide:
            if k == 3: A(f"  ds_write_b128 v10, {vr(U,4)}")
        elif k & 1: A(f"  ds_write_b64 v10, {vr(U+k-1,2)} offset:{64*(k>>1)}")
    for i in range(NQ // 2):
        A(f"  ds_read_b64_tr_b16 {vr(Y+4*i,2)}, v11 offset:{128*i}")
        A(f"  ds_read_b64_tr_b16 {vr(Y+4*i+2,2)}, v11 offset:{128*i + 4*HROW}")
    for i in range(NQ // 2):
        A(f"  s_waitcnt lgkmcnt({2*(NQ//2 - 1 - i)})")
        A(f"  buffer_store_dwordx4 {vr(Y+4*i,4)}, v{VO+i}, s[36:39], s47 offen sc1")
    A(f"{L}_done:\n  s_endpgm")
    A.kernel_desc(name, VO + 6, 64)
```

```python
import sys
from asmlib import *
from k12 import gen_k12
from k3 import gen_k3
from gemm3 import gen_gemm
HEADER = open("sequential_preLN__ssm_conv_s4d__mixer_token_mlp__prompt.s.ref").read().split("\n")
HEADER = "\n".join(l for l in HEADER if l.startswith(";") and "@launch" not in l and "Override" not in l and "grid=ceil" not in l)
opt = dict(a.split('=') for a in sys.argv[1:])
I = lambda k, d: int(opt.get(k, d))
A = Asm()
gen_k12(A, nend=I('nend', 8), pend=opt.get('pend', ''), stamps=I('st1', 0), PF=I('PF', 5), WB=I('WB', 2), prio=I('prio', 1), slp=I('slp', 16), grp=I('grp', 0), cpf=I('cpf', 2), early=I('early', 1), REP=I('REP', 16), NLIN=I('NLIN', 8), ln2=I('ln2', 0), R2=I('R2', 16), slp2=I('slp2', 4), slp3=I('slp3', 32), pfl=opt.get('pfl', 'sc1').replace('_', ' '), sfl=opt.get('sfl', 'sc1').replace('_', ' '), small=I('small', 1), cpw2=I('cpw2', 0))
if not I('ln2', 0): gen_k3(A, NW=10, y16=1, wide=I('wide', 1), remap=I('remap', 1), ylast=I('ylast', 1), pf=opt.get('k3pf', ''))
kw = dict(stamps=I('st', 0), pfx=0, pfw=0, stag=0, map18=1, reps=I('reps', 2), mimic=I('mg', 0), ks2=0)
gen_gemm(A, 1, I('R', 5), pf2=I('pf2', 18), xpf=I('xpf', 0), **kw)
gen_gemm(A, 2, I('R', 5), **kw)
A('code_pf_end:')
print(A.text(HEADER))
```

```python
from asmlib import *

def gen_gemm(A, which, R=5, name=None, stamps=False, pfx=True, pfw=True, pf2=0, stag=1, lead=0, rot=0, nt='', map18=0, reps=1, mimic=1, xpf=0, ks2=1, elate=0, lprio=0):
    name = name or f"gemm{which}_kernel"
    if which == 1:
        WSTR, WROWS, T, XOFF, XT = 3456, 2048, 32, WS_HN8, XT1
    else:
        WSTR, WROWS, T, XOFF, XT = 4096, 1728, 27, WS_G8, XT2
    WBYTES = WROWS * WSTR
    SLOT, WOFF = 18432, 10240
    LDS = R * SLOT
    NL, PER = 3, 6
    A.add_launch(name, 256, 512 if lead else 448, LDS)
    A.kernel_begin(name)
    L = name
    nst = [0]
    def stamp():
        if stamps:
            A(f"  s_memtime s[{50+2*nst[0]}:{51+2*nst[0]}]")
            nst[0] += 1
    A(f"""
  s_cmp_ge_u32 s2, 256
  s_cbranch_scc1 {L}_done
  {'s_memtime s[48:49]' if stamps else ''}
  {'s_memrealtime s[70:71]' if stamps else ''}
  s_load_dwordx2 s[4:5], s[0:1], {KA['w1'] if which == 1 else KA['w2']}
  s_load_dwordx2 s[6:7], s[0:1], {KA['ws']}
  v_lshrrev_b32 v1, 6, v0
  s_and_b32 s32, s2, 7                 ; xcd
  s_lshr_b32 s33, s2, 3                ; j
  v_readfirstlane_b32 s3, v1
  v_and_b32 v1, 63, v0                 ; lane
  s_add_u32 s34, s33, {rot if which == 2 else 0}
  s_and_b32 s34, s34, 7                ; j&7
  s_lshr_b32 s39, s33, 3               ; j>>3 (0..3)
  s_and_b32 s35, s32, 1
  s_lshl_b32 s35, s35, 2
  s_add_u32 s33, s39, s35              ; dtile (0..7)
  s_lshr_b32 s32, s32, 1               ; quarter
  s_mul_i32 s32, s32, {7 if which == 1 else 8}
  s_add_u32 s32, s32, s34              ; wtile
  {'s_and_b32 s32, s2, 7' if (map18 and which == 2) else ''}
  {'s_lshl_b32 s32, s32, 2' if (map18 and which == 2) else ''}
  {'s_bfe_u32 s36, s2, 0x20003' if (map18 and which == 2) else ''}
  {'s_add_u32 s32, s32, s36' if (map18 and which == 2) else ''}
  {'s_lshr_b32 s33, s2, 5' if (map18 and which == 2) else ''}
  s_mul_i32 s40, s33, {XT}
  s_add_u32 s40, s40, {XOFF}
""")
    if which == 1:
        A(f"""
  s_cmp_ge_u32 s34, 7
  s_cbranch_scc1 {L}_idle
  s_cmp_ge_u32 s32, 27
  s_cbranch_scc1 {L}_idle
""")
    A(f"""
  s_cmp_lt_u32 s3, 4
  s_cbranch_scc1 {L}_consumer
  s_cmp_eq_u32 s3, 7
  s_cbranch_scc1 {L}_toucher
""")
    A(f"""
  s_lshl_b32 s29, s39, 1
  s_add_u32 s29, s29, s34
  s_and_b32 s29, s29, 7
  s_lshl_b32 s29, s29, 1
  s_and_b32 s36, s2, {1 if stag == 1 else 0}
  s_add_u32 s29, s29, s36
  s_mul_i32 s29, s29, {T if stag else 0}
  s_lshr_b32 s29, s29, 4
  {f's_setprio {lprio}' if lprio else ''}
  v_lshlrev_b32 v2, 4, v1              ; X voffset
  v_lshrrev_b32 v10, 3, v1
  v_mul_u32_u24 v10, {WSTR}, v10
  v_and_b32 v11, 7, v1
  v_bfe_u32 v12, v1, 4, 1
  v_lshlrev_b32 v12, 1, v12
  v_xor_b32 v11, v11, v12
  s_lshl_b32 s36, s32, 7
  v_add_u32 v10, s36, v10
  v_lshl_add_u32 v3, v11, 4, v10
  v_xor_b32 v11, 4, v11
  v_lshl_add_u32 v4, v11, 4, v10
  v_add_u32 v4, {8*WSTR - 1024}, v4
  v_add_u32 v5, {16*WSTR - 2048}, v3
  v_add_u32 v6, {16*WSTR - 2048}, v4
  s_waitcnt lgkmcnt(0)
  s_mov_b32 s8, s4
  s_mov_b32 s9, s5
  s_mov_b32 s10, {WBYTES}
  s_mov_b32 s11, 0x00020000
  s_add_u32 s12, s6, s40
  s_addc_u32 s13, s7, 0
  s_mov_b32 s14, {T * 10240}
  s_mov_b32 s15, 0x00020000
""")
    for ld in range(NL):
        if ld < NL - 1:
            A(f"  s_cmp_lg_u32 s3, {4 + ld}\n  s_cbranch_scc1 {L}_ld{ld+1}")
        if ld == 0:
            groups = [("X", 0, 4, 0), ("X", 4096, 2, 4096)]
        elif ld == 1:
            groups = [("X", 6144, 4, 6144), ("W", WOFF, 2, 0)]
        else:
            groups = [("W", WOFF + 2048, 4, 16 * WSTR), ("W", WOFF + 6144, 2, 48 * WSTR)]
        steps = [10240 if g[0] == 'X' else 64 * WSTR for g in groups]
        A(f"  s_mul_i32 s24, s29, {steps[0]}\n  s_mul_i32 s25, s29, {steps[1]}\n  s_add_u32 s24, s24, {groups[0][3]}\n  s_add_u32 s25, s25, {groups[1][3]}\n  s_mov_b32 s26, 0")
        def issue_tile():
            for gi, (kind, lrel, n, _) in enumerate(groups):
                A(f"  s_add_u32 m0, s26, {lrel}")
                if gi == 0:
                    A(f"  s_add_u32 s27, s26, {SLOT}")
                else:
                    A(f"  s_cmp_ge_u32 s27, {R * SLOT}")
                for k in range(n):
                    if kind == "X":
                        A(f"  buffer_load_dwordx4 v2, s[12:15], s{24+gi} offen offset:{1024*k} {'nt' if 'x' in nt else ''} lds")
                    else:
                        A(f"  buffer_load_dwordx4 v{3+k}, s[8:11], s{24+gi} offen offset:{1024*k} {'nt' if 'w' in nt else ''} lds")
            A(f"  s_cselect_b32 s26, 0, s27")
            for gi, (kind, lrel, n, _) in enumerate(groups):
                A(f"  s_add_u32 s{24+gi}, s{24+gi}, {steps[gi]}")
            A(f"  s_add_u32 s29, s29, 1\n  s_cmp_eq_u32 s29, {T}")
            A(f"  s_cselect_b32 s29, 0, s29\n  s_cselect_b32 s24, {groups[0][3]}, s24\n  s_cselect_b32 s25, {groups[1][3]}, s25")
        A(f"  s_mov_b32 s28, {R - 1}\n{L}_ld{ld}_pro:")
        issue_tile()
        A(f"  s_sub_u32 s28, s28, 1\n  s_cmp_lg_u32 s28, 0\n  s_cbranch_scc1 {L}_ld{ld}_pro")
        A(f"  s_mov_b32 s28, {T - (R - 1)}\n{L}_ld{ld}_loop:")
        A(f"  s_waitcnt vmcnt({PER * (R - 2)})\n  s_barrier")
        issue_tile()
        A(f"  s_sub_u32 s28, s28, 1\n  s_cmp_lg_u32 s28, 0\n  s_cbranch_scc1 {L}_ld{ld}_loop")
        for k in range(R - 1):
            A(f"  s_waitcnt vmcnt({PER * (R - 2 - k)})\n  s_barrier")
        A("  s_endpgm")
        if ld < NL - 1:
            A(f"{L}_ld{ld+1}:")
    A(f"{L}_toucher:")
    if lead:
        nsh = 7 if which == 1 else 8
        xs = -(-320 // nsh)
        NG = -(-T // 4)
        g0 = (R - 1) // 4
        A(f"""
  s_mul_i32 s36, s34, {xs}
  v_add_u32 v5, s36, v1
  v_cmp_gt_u32 vcc, {xs}, v1
  s_mov_b64 s[20:21], vcc
  v_cmp_gt_u32 vcc, 0x140, v5
  s_and_b64 vcc, vcc, s[20:21]
  v_lshlrev_b32 v5, 7, v5
  v_mov_b32 v7, 0x40000000
  v_cndmask_b32 v5, v7, v5, vcc
  s_lshl_b32 s36, s39, 6
  v_add_u32 v6, s36, v1
  v_mul_u32_u24 v6, {WSTR}, v6
  s_lshl_b32 s36, s32, 7
  v_add_u32 v6, s36, v6
  s_waitcnt lgkmcnt(0)
  s_mov_b32 s8, s4
  s_mov_b32 s9, s5
  s_mov_b32 s10, {WBYTES if pfw else 0}
  s_mov_b32 s11, 0x00020000
  s_add_u32 s12, s6, s40
  s_addc_u32 s13, s7, 0
  s_mov_b32 s14, {T * 10240 if pfx else 0}
  s_mov_b32 s15, 0x00020000
  s_mov_b32 s24, {g0 * 40960}
  s_mov_b32 s25, {g0 * 256 * WSTR}
""")
        def touch():
            A(f"""
  buffer_load_dword v8, v5, s[12:15], s24 offen
  buffer_load_dword v9, v6, s[8:11], s25 offen
  s_add_u32 s24, s24, 40960
  s_add_u32 s25, s25, {256 * WSTR}
""")
        pre = min(lead, NG - g0)
        for _ in range(pre): touch()
        rem = NG - g0 - pre
        nb = 0
        if rem > 0:
            A(f"  s_mov_b32 s28, {rem}\n{L}_tloop:")
            A("  s_barrier\n  s_barrier\n  s_barrier\n  s_barrier")
            touch()
            A(f"  s_sub_u32 s28, s28, 1\n  s_cmp_lg_u32 s28, 0\n  s_cbranch_scc1 {L}_tloop")
            nb = 4 * rem
        assert nb <= T
        if T - nb:
            A(f"  s_mov_b32 s28, {T - nb}\n{L}_tloop2:\n  s_barrier\n  s_sub_u32 s28, s28, 1\n  s_cmp_lg_u32 s28, 0\n  s_cbranch_scc1 {L}_tloop2")
    A("  s_endpgm")
    def touches(with_w):
        A(f"""
  s_lshl_b32 s36, s34, 8
  v_add_u32 v5, s36, v0
  v_lshlrev_b32 v5, 7, v5
  s_add_u32 s12, s6, s40
  s_addc_u32 s13, s7, 0
  s_mov_b32 s14, {T * 10240}
  s_mov_b32 s15, 0x00020000
""")
        if with_w:
            A(f"""
  s_lshl_b32 s36, s39, 8
  v_add_u32 v6, s36, v0
  v_mul_u32_u24 v6, {WSTR}, v6
  s_lshl_b32 s36, s32, 7
  v_add_u32 v6, s36, v6
  s_mov_b32 s8, s4
  s_mov_b32 s9, s5
  s_mov_b32 s10, {WBYTES}
  s_mov_b32 s11, 0x00020000
""")
        for i in range(2):
            if pfx and not lead: A(f"  s_mov_b32 s36, {i * 2048 * 128}\n  buffer_load_dword v30, v5, s[12:15], s36 offen")
            if pfw and with_w and not lead: A(f"  s_mov_b32 s36, {i * 1024 * WSTR}\n  buffer_load_dword v31, v6, s[8:11], s36 offen")
    if which == 1:
        A(f"{L}_idle:")
        A(f"  s_cmp_ge_u32 s3, 4\n  s_cbranch_scc1 {L}_idle2\n  s_waitcnt lgkmcnt(0)")
        touches(False)
        A(f"{L}_idle2:")
        two = False
        if xpf:
            A(f"""
  s_cmp_lg_u32 s34, 7
  s_cbranch_scc1 {L}_done
  s_waitcnt lgkmcnt(0)
  s_add_u32 s12, s6, s40
  s_addc_u32 s13, s7, 0
  s_mov_b32 s14, {T * 10240}
  s_mov_b32 s15, 0x00020000
  v_lshlrev_b32 v5, 7, v0
""")
            for k in range(-(-(T - xpf) * 80 // 448)):
                A(f"  s_mov_b32 s36, {xpf * 10240 + k * 448 * 128}\n  buffer_load_dword v{8 + (k & 3)}, v5, s[12:15], s36 offen")
        if pf2 == 18:
            A(f"""
  s_cmp_lg_u32 s34, 7
  s_cbranch_scc1 {L}_done
  s_load_dwordx2 s[20:21], s[0:1], {KA['w2']}
  s_and_b32 s16, s2, 7
  s_lshl_b32 s16, s16, 9
  s_mul_i32 s17, s39, 448
  v_add_u32 v1, s17, v0
  v_lshrrev_b32 v2, 2, v1
  v_lshlrev_b32 v2, 12, v2
  v_and_b32 v3, 3, v1
  v_lshl_add_u32 v2, v3, 7, v2
  v_add_u32 v2, s16, v2
  s_waitcnt lgkmcnt(0)
  s_mov_b32 s8, s20
  s_mov_b32 s9, s21
  s_mov_b32 s10, {1728 * 4096}
  s_mov_b32 s11, 0x00020000
""")
            for rep in range(reps):
                for k in range(4):
                    A(f"  s_mov_b32 s36, {k * 448 * 4096}\n  buffer_load_dword v{4 + (k & 3)}, v2, s[8:11], s36 offen")
                A("  s_waitcnt vmcnt(0)")
        elif pf2:
            A(f"""
  s_cmp_lg_u32 s34, 7
  s_cbranch_scc1 {L}_done
  s_load_dwordx2 s[20:21], s[0:1], {KA['w2']}
  s_and_b32 s16, s2, 7
  s_lshr_b32 s16, s16, 1
  s_lshl_b32 s16, s16, 10
  s_mul_i32 s17, s39, {512 if lead else 448}
  v_add_u32 v1, s17, v0
  v_lshrrev_b32 v2, 3, v1
  v_lshlrev_b32 v2, 12, v2
  v_and_b32 v3, 7, v1
  v_lshl_add_u32 v2, v3, 7, v2
  v_add_u32 v2, s16, v2
  s_waitcnt lgkmcnt(0)
  s_mov_b32 s8, s20
  s_mov_b32 s9, s21
  s_mov_b32 s10, {abs(pf2) * 4096}
  s_mov_b32 s11, 0x00020000
""")
            if pf2 < 0:
                A(f"  s_and_b32 s17, s2, 1\n  s_mul_i32 s17, s17, {864 * 4096}\n  s_add_u32 s8, s8, s17\n  s_addc_u32 s9, s9, 0")
                two = (pf2 == -1728)
                pf2 = 864
                A(f"  s_mov_b32 s10, {864 * 4096}")
            rr = 256 if lead else 224
            for k in range(-(-pf2 // rr)):
                A(f"  s_mov_b32 s36, {k * rr * 4096}\n  buffer_load_dword v{4 + (k & 3)}, v2, s[8:11], s36 offen")
            if two:
                A(f"  s_waitcnt vmcnt(0)\n  s_xor_b32 s17, s17, {864 * 4096}\n  s_add_u32 s8, s20, s17\n  s_addc_u32 s9, s21, 0")
                for k in range(-(-pf2 // rr)):
                    A(f"  s_mov_b32 s36, {k * rr * 4096}\n  buffer_load_dword v{4 + (k & 3)}, v2, s[8:11], s36 offen")
        A("  s_waitcnt vmcnt(0)\n  s_endpgm")
    XF, WF, ACC, RED = (32, 72, 88, 128) if ks2 else (32, 112, 128, 168)
    A(f"{L}_consumer:")
    EL2 = "  buffer_load_dwordx4 v[16:19], v7, s[20:23], 0 offen\n  buffer_load_dwordx4 v[20:23], v7, s[20:23], 0 offen offset:64\n  buffer_load_dwordx2 v[24:25], v8, s[20:23], 0 offen offset:128"
    def eloads():
        if which == 1: A("  buffer_load_dwordx2 v[16:17], v27, s[20:23], 0 offen")
        else:
            A("  buffer_load_ushort v26, v27, s[44:47], 0 offen"); A(EL2)
    A(f"""
  s_load_dwordx2 s[28:29], s[0:1], {KA['b1'] if which == 1 else KA['b2']}
  s_load_dwordx2 s[30:31], s[0:1], {KA['out']}
  {'s_and_b32 s38, s3, 1' if ks2 else 's_mov_b32 s38, 0'}                 ; ks
  v_lshrrev_b32 v12, 4, v1             ; g
  s_lshl_b32 s36, s38, 2
  v_add_u32 v13, s36, v12              ; 4ks+g
  v_mul_u32_u24 v13, 1280, v13
  v_and_b32 v14, 15, v1
  v_lshl_add_u32 v2, v14, 4, v13
  v_bfe_u32 v13, v1, 2, 2              ; r
  v_lshl_add_u32 v14, v12, 3, v13      ; 8g+r
  v_lshlrev_b32 v14, 7, v14
  v_and_b32 v15, 3, v1
  v_lshl_add_u32 v14, v15, 3, v14
  s_lshl_b32 s36, s38, 12
  s_add_u32 s36, s36, {WOFF}
  v_add_u32 v14, s36, v14
  v_lshrrev_b32 v13, 1, v13
  v_and_b32 v12, 1, v12
  v_lshl_or_b32 v13, v12, 1, v13       ; p
  v_xor_b32 v15, s3, v13
  v_lshl_add_u32 v3, v15, 5, v14
  {'v_xor_b32 v15, 1, v15' if ks2 else 'v_add_u32 v14, 0x1000, v14'}
  v_lshl_add_u32 v4, v15, 5, v14
  s_waitcnt lgkmcnt(0)
""")
    touches(True)
    if which == 1:
        A(f"""
  s_mul_i32 s36, s33, {XT2}
  s_add_u32 s36, s36, {WS_G8}
  s_add_u32 s16, s6, s36
  s_addc_u32 s17, s7, 0
  s_mov_b32 s18, {216 * 1280}
  s_mov_b32 s19, 0x00020000
""")
        A.srd(20, 28, 1728 * 2)
        A(f"""
  v_lshrrev_b32 v12, 4, v1             ; g
  s_lshl_b32 s36, s32, 6
  s_lshl_b32 s37, s3, 4
  s_add_u32 s36, s36, s37              ; f0 = wtile*64 + 16w
  v_lshlrev_b32 v13, 2, v12
  v_add_u32 v13, s36, v13
  v_lshlrev_b32 v13, 1, v13            ; (f0+4g)*2
  {'v_mov_b32 v27, v13' if elate else 'buffer_load_dwordx2 v[16:17], v13, s[20:23], 0 offen'}
  s_lshr_b32 s36, s36, 3
  v_lshrrev_b32 v13, 1, v12
  v_add_u32 v13, s36, v13
  v_mul_u32_u24 v13, 1280, v13
  v_and_b32 v14, 15, v1
  v_lshl_add_u32 v13, v14, 4, v13
  v_and_b32 v12, 1, v12
  v_lshl_add_u32 v7, v12, 8, v13
  v_lshl_add_u32 v8, v12, 3, v13
""")
    else:
        A.srd(16, 30, 2048 * 1280)
        A.srd(20, 6, 2048 * 1280, WS_H)
        A.srd(44, 28, 2048 * 2)
        A(f"""
  v_and_b32 v12, 15, v1
  s_lshl_b32 s36, s32, 6
  s_lshl_b32 s37, s3, 4
  s_add_u32 s36, s36, s37
  v_add_u32 v12, s36, v12              ; s
  v_lshlrev_b32 v13, 1, v12
  {'v_mov_b32 v27, v13' if elate else 'buffer_load_ushort v26, v13, s[44:47], 0 offen'}
  v_mul_u32_u24 v12, 1280, v12
  s_mul_i32 s36, s33, 160
  v_add_u32 v12, s36, v12
  v_lshrrev_b32 v13, 4, v1             ; g
  v_lshl_add_u32 v8, v13, 3, v12
  v_and_b32 v14, 1, v13
  v_lshl_add_u32 v12, v14, 5, v12      ; +(g&1)*32
  v_lshrrev_b32 v13, 1, v13
  v_lshl_add_u32 v7, v13, 4, v12       ; +(g>>1)*16
""")
        if not elate: A(EL2)
    for k in range(0, 40, 2):
        A(f"  v_pk_mov_b32 {vr(ACC+k,2)}, 0, 0")
    EX = ((T + 1) % R) * SLOT
    if EX + 20480 > LDS or ((T - 1) % R) in ((T + 1) % R, (T + 2) % R): EX = None
    if EX is None:
        for c in range(R - 1):
            if (T - 1) % R not in (c, c + 1): EX = c * SLOT; break
    A(f"""
  s_mov_b32 s26, {SLOT}
  s_mul_i32 s36, s3, 5120
  s_add_u32 s36, s36, {EX}
  v_lshlrev_b32 v12, 4, v1
  v_add_u32 v28, s36, v12
  s_xor_b32 s36, s3, 1
  s_mul_i32 s36, s36, 5120
  s_add_u32 s36, s36, {EX}
  v_add_u32 v29, s36, v12
""")
    stamp()
    NXF = 5 if ks2 else 10
    def reads(st, first=False):
        a = (2, 3, 4) if first else (9, 10, 11)
        r = []
        if ks2:
            for j in range(2):
                for h in range(2):
                    r.append(f"  ds_read_b64_tr_b16 {vr(WF + st*8 + j*4 + h*2, 2)}, v{a[1+j]} offset:{h*512}")
            for m in range(5):
                r.append(f"  ds_read_b128 {vr(XF + st*20 + 4*m, 4)}, v{a[0]} offset:{256*m}")
        else:
            for j in range(2):
                for h in range(2):
                    r.append(f"  ds_read_b64_tr_b16 {vr(WF + st*8 + j*4 + h*2, 2)}, v{a[1+j]} offset:{h*512}")
                for m in range(5):
                    r.append(f"  ds_read_b128 {vr(XF + st*40 + j*20 + 4*m, 4)}, v{a[0]} offset:{5120*j + 256*m}")
        return r
    def mfmas(st):
        r = []
        if ks2:
            for m in range(5):
                for j in range(2):
                    acc = ACC + (m * 2 + j) * 4
                    xa = vr(XF + st * 20 + 4 * m, 4)
                    wf = vr(WF + st * 8 + j * 4, 4)
                    a, b = (wf, xa) if which == 1 else (xa, wf)
                    r.append(f"  v_mfma_f32_16x16x32_bf16 {vr(acc,4)}, {a}, {b}, {vr(acc,4)}")
        else:
            for j in range(2):
                for m in range(5):
                    acc = ACC + m * 8
                    xa = vr(XF + st * 40 + j * 20 + 4 * m, 4)
                    wf = vr(WF + st * 8 + j * 4, 4)
                    a, b = (wf, xa) if which == 1 else (xa, wf)
                    r.append(f"  v_mfma_f32_16x16x32_bf16 {vr(acc,4)}, {a}, {b}, {vr(acc,4)}")
        return r
    def addr_update():
        return [f"  v_add_u32 v9, s26, v2", f"  v_add_u32 v10, s26, v3", f"  v_add_u32 v11, s26, v4",
                f"  s_add_u32 s26, s26, {SLOT}", f"  s_cmp_ge_u32 s26, {R * SLOT}", f"  s_cselect_b32 s26, 0, s26"]
    def body(st_read, st_mfma):
        A("  s_barrier")
        rd = reads(st_read); mf = mfmas(st_mfma)
        ri = 0
        for k in range(10):
            n = -(-(len(rd) - ri) // (10 - k)) if k < 9 else len(rd) - ri
            n = min(len(rd) - ri, max(n, 1 if ks2 else 2 if k < 4 else 1))
            for _ in range(n): A(rd[ri]); ri += 1
            A(mf[k])
        for x in addr_update(): A(x)
        A("  s_waitcnt lgkmcnt(0)")
    A("  s_barrier")
    stamp()
    if stamps: A("  s_waitcnt lgkmcnt(0)")
    for x in reads(0, True): A(x)
    for x in addr_update(): A(x)
    A("  s_waitcnt lgkmcnt(0)")
    npair = (T - 1) // 2
    if elate == 1: eloads()
    A(f"  s_mov_b32 s27, {npair}\n{L}_cloop:")
    body(1, 0)
    body(0, 1)
    if elate > 1:
        A(f"  s_cmp_lg_u32 s27, {elate}\n  s_cbranch_scc1 {L}_noel")
        eloads()
        A(f"{L}_noel:")
    A(f"  s_sub_u32 s27, s27, 1\n  s_cmp_lg_u32 s27, 0\n  s_cbranch_scc1 {L}_cloop")
    last = 0
    if (T - 1) % 2:
        body(1, 0); last = 1
    mf = mfmas(last)
    if ks2:
        for m in range(5): A(mf[2 * m + 1])
        for m in range(5): A(mf[2 * m])
    else:
        for x in mf: A(x)
    stamp()
    if ks2:
        A("  s_nop 2")
        for m in range(5):
            A(f"  ds_write_b128 v28, {vr(ACC + (m*2+1)*4, 4)} offset:{m*1024}")
    A("  s_waitcnt vmcnt(0)")
    if which == 1:
        A(f"""
  v_lshlrev_b32 v18, 16, v16
  v_and_b32 v19, 0xffff0000, v16
  v_lshlrev_b32 v20, 16, v17
  v_and_b32 v21, 0xffff0000, v17
  v_mov_b32 v22, {fbits(-2*0.7978845608028654*1.4426950408889634)}
  v_mov_b32 v24, {fbits(-2*0.7978845608028654*1.4426950408889634*0.044715)}
  v_mov_b32 v26, 1.0
""")
    else:
        A("  v_lshlrev_b32 v26, 16, v26")
        t = XF
        for k in range(10):
            A(f"  v_lshlrev_b32 v{t+2*k}, 16, v{16+k}")
            A(f"  v_and_b32 v{t+2*k+1}, 0xffff0000, v{16+k}")
    if ks2: A("  s_waitcnt lgkmcnt(0)")
    else: A("  s_nop 3")
    stamp()
    if ks2: A("  s_barrier")
    stamp()
    if ks2:
        for m in range(5):
            A(f"  ds_read_b128 {vr(RED + m*4, 4)}, v29 offset:{m*1024}")
    def rnd(a):
        A(f"  v_cvt_pk_bf16_f32 v{a+1}, v{a}, v{a+1}\n  v_cvt_pk_bf16_f32 v{a+3}, v{a+2}, v{a+3}")
        A(f"  v_lshlrev_b32 v{a}, 16, v{a+1}\n  v_and_b32 v{a+1}, 0xffff0000, v{a+1}")
        A(f"  v_lshlrev_b32 v{a+2}, 16, v{a+3}\n  v_and_b32 v{a+3}, 0xffff0000, v{a+3}")
    if which == 1:
        for m in range(5):
            acc = ACC + m * 8
            t = acc + 4
            if ks2:
                A(f"  s_waitcnt lgkmcnt({4-m})")
                for r in (0, 2): A(f"  v_pk_add_f32 {vr(acc+r,2)}, {vr(acc+r,2)}, {vr(RED+m*4+r,2)}")
            if mimic: rnd(acc)
            for r in (0, 2): A(f"  v_pk_add_f32 {vr(acc+r,2)}, {vr(acc+r,2)}, {vr(18+r,2)}")
            if mimic: rnd(acc)
            for r in (0, 2): A(f"  v_pk_mul_f32 {vr(t+r,2)}, {vr(acc+r,2)}, {vr(acc+r,2)}")
            for r in (0, 2): A(f"  v_pk_fma_f32 {vr(t+r,2)}, {vr(t+r,2)}, v[24:25], v[22:23] op_sel_hi:[1,0,0]")
            for r in (0, 2): A(f"  v_pk_mul_f32 {vr(t+r,2)}, {vr(t+r,2)}, {vr(acc+r,2)}")
            for r in range(4): A(f"  v_exp_f32 v{t+r}, v{t+r}")
            A("  s_nop 0")
            for r in (0, 2): A(f"  v_pk_add_f32 {vr(t+r,2)}, {vr(t+r,2)}, v[26:27] op_sel_hi:[1,0]")
            for r in range(4): A(f"  v_rcp_f32 v{t+r}, v{t+r}")
            A("  s_nop 0")
            for r in (0, 2): A(f"  v_pk_mul_f32 {vr(acc+r,2)}, {vr(acc+r,2)}, {vr(t+r,2)}")
            o = XF + (m >> 1) * 4 + (m & 1) * 2
            A(f"  v_cvt_pk_bf16_f32 v{o}, v{acc}, v{acc+1}")
            A(f"  v_cvt_pk_bf16_f32 v{o+1}, v{acc+2}, v{acc+3}")
            if m & 1:
                b = XF + (m >> 1) * 4
                A(f"  s_nop 1\n  v_permlane16_swap_b32 v{b}, v{b+2}\n  v_permlane16_swap_b32 v{b+1}, v{b+3}")
                A(f"  buffer_store_dwordx4 {vr(b,4)}, v7, s[16:19], 0 offen offset:{512*(m>>1)} sc1")
            elif m == 4:
                A(f"  buffer_store_dwordx2 {vr(o,2)}, v8, s[16:19], 0 offen offset:1024 sc1")
    else:
        for m in range(5):
            acc = ACC + m * 8
            if ks2:
                A(f"  s_waitcnt lgkmcnt({4-m})")
                for r in (0, 2): A(f"  v_pk_add_f32 {vr(acc+r,2)}, {vr(acc+r,2)}, {vr(RED+m*4+r,2)}")
            rnd(acc)
            for r in (0, 2): A(f"  v_pk_add_f32 {vr(acc+r,2)}, {vr(acc+r,2)}, v[26:27] op_sel_hi:[1,0]")
            rnd(acc)
            if m & 1:
                a0 = ACC + (m - 1) * 8
                A("  s_nop 1")
                for r in range(4):
                    A(f"  v_permlane16_swap_b32 v{a0+r}, v{acc+r}")
                t = XF + (m >> 1) * 8
                A("  s_nop 0")
                for k, src in enumerate((a0, a0 + 2, acc, acc + 2)):
                    A(f"  v_pk_add_f32 {vr(t+2*k,2)}, {vr(t+2*k,2)}, {vr(src,2)}")
                o = WF + (m >> 1) * 4
                for k in range(4):
                    A(f"  v_cvt_pk_bf16_f32 v{o+k}, v{t+2*k}, v{t+2*k+1}")
                A(f"  buffer_store_dwordx4 {vr(o,4)}, v7, s[16:19], 0 offen offset:{64*(m>>1)}")
            elif m == 4:
                t = XF + 16
                for k in range(2):
                    A(f"  v_pk_add_f32 {vr(t+2*k,2)}, {vr(t+2*k,2)}, {vr(acc+2*k,2)}")
                o = WF + 8
                for k in range(2):
                    A(f"  v_cvt_pk_bf16_f32 v{o+k}, v{t+2*k}, v{t+2*k+1}")
                A(f"  buffer_store_dwordx2 {vr(o,2)}, v8, s[16:19], 0 offen offset:128")
    if stamps:
        stamp()
        A("  s_waitcnt vmcnt(0)")
        stamp()
        A("  s_memrealtime s[72:73]")
        A("  s_waitcnt lgkmcnt(0)")
        A.srd(8, 6, 0x100000, 0x2000000 + (which - 1) * 0x10000)
        A(f"  s_lshl_b32 s36, s2, 2\n  s_add_u32 s36, s36, s3\n  s_lshl_b32 s36, s36, 6\n  v_mov_b32 v2, s36")
        for k in range(nst[0]):
            A(f"  s_sub_u32 s36, s{50+2*k}, s48\n  v_mov_b32 v3, s36\n  buffer_store_dword v3, v2, s[8:11], 0 offen offset:{4*k}")
        A(f"  s_sub_u32 s36, s72, s70\n  v_mov_b32 v3, s36\n  buffer_store_dword v3, v2, s[8:11], 0 offen offset:52")
        A(f"  v_mov_b32 v3, s70\n  buffer_store_dword v3, v2, s[8:11], 0 offen offset:60")
    A(f"{L}_done:\n  s_endpgm")
    A.kernel_desc(name, 152 if ks2 else 168, 80)
```

```python
from asmlib import *
import kimg_v2 as kimg
from pf import gen_prefetch

LOG2E = 1.4426950408889634
def f32r(x):
    return struct.unpack("<f", struct.pack("<f", x))[0]
NLN = 128
WS_U8 = WS_UT
US = 640 * 32 + 128
WS_SY = 0x1D00000

def gen_k12(A, name="k12_kernel", nend=0, pend="", code=True, stamps=False, PF=5, WB=2, prio=1, slp=2, grp=0, cpf=0, early=1, REP=16, NLIN=8, ln2=0, R2=16, slp2=4, slp3=32, pfl='sc1', sfl='sc1', small=1, cpw2=0, dpp=0, rot=0, bird=0, slpb=2):
    RS = 1312
    TGS = 544
    TG, TE, KFO = 0, 48 * TGS, 64 * TGS
    LDS = 40960
    KI = 0
    AB = 6656
    U0 = AB + 576
    W9 = U0 + 4096 + 512
    W7 = W9 + 2048 + 528
    W5 = W7 + 2048 + 256
    W3 = W5 + 4096 + 272
    U2 = W3 + 4096 + 128
    AE = U2 + 4096
    assert kimg.IMG_BYTES <= AB and AE <= KFO + 0 and AE % 16 == 0, AE
    EXS = [1024 * i for i in range(6)] + [AE + 1024 * i for i in range((LDS - AE) // 1024)]
    assert len(EXS) >= 15
    NWG = 8 + NLN + 640 + (256 if ln2 else 0)
    YS = 640 * 128 + 128
    FPL = NLN // NLIN
    RSZ = NLIN * 128
    F2 = REP * RSZ
    SYN = F2 + (R2 * 2560 if ln2 else 0)
    BO = SYN
    SYN += bird * 128
    A.add_launch(name, NWG, 256, LDS)
    A.kernel_begin(name)
    L = name
    A(f"""
  s_cmp_ge_u32 s2, 8
  s_cbranch_scc1 {L}_main
  s_cmp_lg_u32 s2, 0
  s_cbranch_scc1 {L}_svc2
  s_load_dwordx4 s[4:7], s[0:1], {KA['dbg']}
  v_lshlrev_b32 v2, 4, v0
  v_pk_mov_b32 v[4:5], 0, 0
  v_pk_mov_b32 v[6:7], 0, 0
  s_mov_b32 s10, {SYN}
  s_mov_b32 s11, 0x00020000
  v_mov_b32 v3, 1
  s_waitcnt lgkmcnt(0)
  s_add_u32 s8, s6, {WS_SY}
  s_addc_u32 s9, s7, 0
""")
    for k in range(-(-SYN // 4096)):
        A(f"  s_mov_b32 s12, {4096*k}\n  buffer_store_dwordx4 v[4:7], v2, s[8:11], s12 offen sc1")
    A(f"""
  s_waitcnt vmcnt(0)
  s_barrier
  global_store_dword v4, v3, s[4:5] sc1
{L}_svc2:
  s_getpc_b64 s[20:21]
{L}_pc:
  s_sub_u32 s20, s20, {L}_pc-{L}
  s_subb_u32 s21, s21, 0
  s_mov_b32 s22, code_pf_end-{L}
  s_mov_b32 s23, 0x00020000
  v_lshlrev_b32 v2, 7, v0
  buffer_load_dword v12, v2, s[20:23], 0 offen
""")
    if small:
        A(f"""
  s_load_dwordx2 s[24:25], s[0:1], {KA['Dsk']}
  s_load_dwordx2 s[28:29], s[0:1], {KA['b1']}
  s_load_dwordx2 s[32:33], s[0:1], {KA['b2']}
  s_mov_b32 s26, 1280
  s_mov_b32 s27, 0x00020000
  s_mov_b32 s30, 3456
  s_mov_b32 s31, 0x00020000
  s_mov_b32 s34, 4096
  s_mov_b32 s35, 0x00020000
  s_waitcnt lgkmcnt(0)
  buffer_load_dword v13, v2, s[24:27], 0 offen
  buffer_load_dword v14, v2, s[28:31], 0 offen
  buffer_load_dword v15, v2, s[32:35], 0 offen
""")
    A(f"""
  s_endpgm
{L}_main:
  s_cmp_ge_u32 s2, {NWG}
  s_cbranch_scc1 {L}_done
  s_sub_u32 s2, s2, 8
  s_cmp_ge_u32 s2, {NLN + 640}
  s_cbranch_scc1 {L}_ln2
  s_cmp_ge_u32 s2, {NLN}
  s_cbranch_scc1 {L}_kgen
  ; ---------------- LN1 ----------------
  {'s_memtime s[60:61]' if stamps else ''}
  s_load_dwordx2 s[4:5], s[0:1], {KA['x']}
  s_load_dwordx2 s[6:7], s[0:1], {KA['ws']}
  s_load_dwordx2 s[28:29], s[0:1], {KA['dbg']}
  {'s_setprio 3' if prio else ''}
  s_lshl_b32 s16, s2, 4                ; t0
  v_lshrrev_b32 v1, 4, v0              ; row
  v_and_b32 v2, 15, v0                 ; q
  v_add_u32 v3, s16, v1
  v_mul_u32_u24 v3, 1280, v3
  v_lshl_add_u32 v3, v2, 4, v3
  s_waitcnt lgkmcnt(0)
""")
    A(f"""
  s_add_u32 s30, s6, {WS_SY}
  s_addc_u32 s31, s7, 0
""")
    A.srd(8, 4, 2048 * 1280)
    for i in range(5):
        A(f"  buffer_load_dwordx4 {vr(8+4*i,4)}, v3, s[8:11], 0 offen offset:{256*i}")
    A.srd(12, 6, 128 * US, WS_U8)
    A.srd(20, 6, 2048 * 8, WS_ST1)
    A(f"""
  v_mul_u32_u24 v4, {RS}, v1
  v_lshl_add_u32 v4, v2, 4, v4
  v_bfe_u32 v5, v0, 4, 1               ; th
  v_bfe_u32 v6, v0, 2, 2               ; r
  v_lshl_add_u32 v5, v5, 3, v6
  v_mul_u32_u24 v5, {RS}, v5
  v_bfe_u32 v6, v0, 5, 1               ; cgl
  v_lshl_add_u32 v5, v6, 5, v5
  v_and_b32 v7, 3, v0
  v_lshl_add_u32 v5, v7, 3, v5
  v_lshrrev_b32 v7, 6, v0              ; wave
  v_mul_u32_u24 v72, 320, v7
  v_add_u32 v5, v5, v72
  v_mul_u32_u24 v72, 160, v7
  v_lshl_add_u32 v72, v6, 4, v72
  v_add_u32 v72, v72, v2
  v_lshlrev_b32 v72, 5, v72
  v_and_b32 v6, 16, v0                 ; th*16
  s_mul_i32 s17, s2, {US}
  v_add3_u32 v6, v6, v72, s17
  v_add_u32 v7, s16, v1
  v_lshlrev_b32 v7, 3, v7
""")
    X = 32
    for i in range(5):
        A(f"  s_waitcnt vmcnt({4-i})")
        for k in range(4):
            A(f"  v_lshlrev_b32 v{X+8*i+2*k}, 16, v{8+4*i+k}")
            A(f"  v_and_b32 v{X+8*i+2*k+1}, 0xffff0000, v{8+4*i+k}")
        if i == 0:
            A(f"  v_pk_add_f32 v[72:73], {vr(X,2)}, {vr(X+2,2)}")
            A(f"  v_pk_add_f32 v[74:75], {vr(X+4,2)}, {vr(X+6,2)}")
        else:
            for k in range(4):
                a = 72 + 2 * (k & 1)
                A(f"  v_pk_add_f32 {vr(a,2)}, {vr(a,2)}, {vr(X+8*i+2*k,2)}")
    if stamps: A("  s_memtime s[62:63]")
    def rowsum(v):
        for sh in (8, 4, 2, 1):
            A(f"  s_nop 1\n  v_add_f32 v{v}, v{v}, v{v} row_ror:{sh}")
    A("  v_pk_add_f32 v[72:73], v[72:73], v[74:75]\n  s_nop 0\n  v_add_f32 v72, v72, v73")
    rowsum(72)
    A(f"  v_mul_f32 v72, {fbits(-1.0/640)}, v72     ; -mean")
    D = 80
    for k in range(20):
        A(f"  v_pk_add_f32 {vr(D+2*k,2)}, {vr(X+2*k,2)}, v[72:73] op_sel_hi:[1,0]")
    A(f"  v_pk_mul_f32 v[74:75], {vr(D,2)}, {vr(D,2)}")
    A(f"  v_pk_mul_f32 v[76:77], {vr(D+2,2)}, {vr(D+2,2)}")
    for k in range(2, 20):
        a = 74 + 2 * (k & 1)
        A(f"  v_pk_fma_f32 {vr(a,2)}, {vr(D+2*k,2)}, {vr(D+2*k,2)}, {vr(a,2)}")
    A(f"""
  v_cvt_pk_bf16_f32 v78, -v72, -v72
  v_pk_add_f32 v[74:75], v[74:75], v[76:77]
  v_and_b32 v78, 0xffff0000, v78            ; m_bf
  v_add_f32 v74, v74, v75
""")
    def rnd(k):
        A(f"  v_cvt_pk_bf16_f32 v{X+2*k+1}, v{X+2*k}, v{X+2*k+1}")
        A(f"  v_lshlrev_b32 v{X+2*k}, 16, v{X+2*k+1}\n  v_and_b32 v{X+2*k+1}, 0xffff0000, v{X+2*k+1}")
    chain = []
    for sh in (8, 4, 2, 1): chain.append(f"  v_add_f32 v74, v74, v74 row_ror:{sh}")
    chain += [f"  v_mul_f32 v74, {fbits(1.0/640)}, v74", "  v_cvt_pk_bf16_f32 v74, v74, v74", "  v_lshlrev_b32 v74, 16, v74",
              f"  v_add_f32 v74, {fbits(1e-5)}, v74", "  v_cvt_pk_bf16_f32 v74, v74, v74", "  v_lshlrev_b32 v74, 16, v74",
              "  v_sqrt_f32 v74, v74", "  v_cvt_pk_bf16_f32 v74, v74, v74", "  v_lshlrev_b32 v74, 16, v74", "  v_rcp_f32 v79, v74"]
    for k in range(20):
        A(f"  v_pk_add_f32 {vr(X+2*k,2)}, {vr(X+2*k,2)}, v[78:79] op_sel_hi:[1,0] neg_lo:[0,1] neg_hi:[0,1]")
        rnd(k)
        if k < len(chain): A(chain[k])
    for k in range(20):
        A(f"  v_pk_mul_f32 {vr(X+2*k,2)}, {vr(X+2*k,2)}, v[78:79] op_sel:[0,1] op_sel_hi:[1,1]")
    for k in range(20):
        rnd(k)
        A(f"  v_cvt_pk_f16_f32 v{8+k}, v{X+2*k}, v{X+2*k+1}")
        if k % 4 == 3:
            A(f"  ds_write_b128 v4, {vr(8+k-3,4)} offset:{256*(k//4)}")
    A(f"""
  s_movk_i32 s26, 0x1000
  v_mov_b32 v120, 0
  v_mov_b32 v121, 0
  v_readfirstlane_b32 s19, v0
  s_cmp_lg_u32 s19, 0
  s_cbranch_scc1 {L}_noin
  global_load_dword v121, v120, s[28:29] sc1
{L}_noin:
  v_cmp_eq_u32 vcc, 0, v2
  s_and_saveexec_b64 s[24:25], vcc
  buffer_store_dwordx2 v[78:79], v7, s[20:23], 0 offen
  s_mov_b64 exec, s[24:25]
  {'s_memtime s[64:65]' if stamps else ''}
  s_waitcnt lgkmcnt(0)
  s_barrier
""")
    for k in range(5):
        for h in range(2):
            A(f"  ds_read_b64_tr_b16 {vr(32+4*k+2*h,2)}, v5 offset:{64*k + 4*h*RS}")
    for k in range(5):
        A(f"  s_waitcnt lgkmcnt({8-2*k})")
        A(f"  buffer_store_dwordx4 {vr(32+4*k,4)}, v6, s[12:15], {'0' if k < 4 else 's26'} offen offset:{1024*(k&3)} sc1")
    A(f"""
  {'s_memtime s[66:67]' if stamps else ''}
  s_waitcnt vmcnt(0)
  {'s_memtime s[68:69]' if stamps else ''}
  s_barrier
  {'s_memtime s[70:71]' if stamps else ''}
  v_cmp_gt_u32 vcc, {REP}, v0
  s_and_saveexec_b64 s[24:25], vcc
  s_cbranch_execz {L}_done
  s_mov_b32 s21, 200000
{L}_ipoll:
  v_cmp_eq_u32 vcc, 0, v121
  s_sub_u32 s21, s21, 1
  s_cmp_eq_u32 s21, 0
  s_cbranch_scc1 {L}_iok
  s_cbranch_vccz {L}_iok
  s_sleep 8
  global_load_dword v121, v120, s[28:29] sc1
  s_waitcnt vmcnt(0)
  s_branch {L}_ipoll
{L}_iok:
  s_and_b32 s17, s2, {NLIN - 1}
  s_lshl_b32 s17, s17, 7
  s_lshr_b32 s18, s2, {NLIN.bit_length() - 1}
  s_lshl_b32 s18, s18, 2
  s_add_u32 s17, s17, s18
  v_mul_u32_u24 v1, {RSZ}, v0
  v_add_u32 v1, s17, v1
  v_mov_b32 v2, 1
  global_store_dword v1, v2, s[30:31] {sfl}
""")
    if bird:
        A(f"""
  s_cmp_ge_u32 s2, {bird}
  s_cbranch_scc1 {L}_nobird
  s_lshl_b32 s17, s2, 7
  s_add_u32 s17, s17, {BO}
  v_mov_b32 v1, s17
  global_store_dword v1, v2, s[30:31] sc1
{L}_nobird:
""")
    if stamps:
        A("  s_waitcnt vmcnt(0)\n  s_memtime s[72:73]\n  s_waitcnt lgkmcnt(0)")
        A.srd(84, 6, 0x100000, 0x2060000)
        A(f"  s_lshl_b32 s83, s2, 5\n  v_mov_b32 v4, s83")
        for k in range(6):
            A(f"  s_sub_u32 s83, s{62+2*k}, s60\n  v_mov_b32 v5, s83\n  buffer_store_dword v5, v4, s[84:87], 0 offen offset:{4*k}")
    A("  s_endpgm")
    Lhi = f32r(LOG2E); Llo = LOG2E - Lhi
    nst = [0]
    def stamp():
        if stamps:
            A(f"  s_memtime s[{62+2*nst[0]}:{63+2*nst[0]}]\n  s_waitcnt lgkmcnt(0)")
            nst[0] += 1
    A(f"""
{L}_kgen:
  {'s_setprio 2' if ln2 else ''}
  {'s_memtime s[60:61]' if stamps else ''}
""")
    if rot:
        A(f"  s_add_u32 s17, s2, 8\n  s_lshr_b32 s17, s17, 8\n  s_mul_i32 s17, s17, {64*rot}\n  v_add_u32 v0, s17, v0\n  v_and_b32 v0, 0xff, v0")
    A(f"""
  s_sub_u32 s16, s2, {NLN}
  s_and_b32 s17, s16, 7
  s_mul_i32 s17, s17, 80
  s_lshr_b32 s16, s16, 3
  s_add_u32 s16, s16, s17
  s_load_dwordx4 s[4:7], s[0:1], {KA['logA']}
  s_load_dwordx4 s[8:11], s[0:1], {KA['Cre']}
  s_load_dwordx2 s[12:13], s[0:1], {KA['logdt']}
  s_load_dwordx4 s[36:39], s[0:1], {KA['dbg']}
  s_load_dwordx2 s[40:41], s[0:1], {KA['w1']}
  s_load_dwordx2 s[50:51], s[0:1], {KA['w2']}
  s_getpc_b64 s[18:19]
  s_add_u32 s18, s18, kimg_idx@rel32@lo+4
  s_addc_u32 s19, s19, kimg_idx@rel32@hi+12
  v_lshrrev_b32 v1, 6, v0
  v_lshlrev_b32 v2, 4, v0
  v_readfirstlane_b32 s3, v1              ; wave
  global_load_dwordx4 v[60:63], v2, s[18:19]
  v_add_u32 v2, 0x1000, v2
  global_load_dwordx4 v[64:67], v2, s[18:19]
  v_and_b32 v1, 127, v0                   ; mode
  s_lshl_b32 s17, s16, 8
  v_lshl_add_u32 v2, v1, 1, s17
  v_xor_b32 v3, 128, v2
  s_lshl_b32 s20, s16, 1
  s_and_b32 s21, s20, 0xfffffffc
  s_waitcnt lgkmcnt(0)
  s_load_dword s22, s[12:13], s21
  global_load_ushort v4, v2, s[4:5]       ; logA
  global_load_ushort v5, v2, s[6:7]       ; Aim
  global_load_ushort v6, v2, s[8:9]       ; Cre
  global_load_ushort v7, v2, s[10:11]     ; Cim
  global_load_ushort v8, v3, s[8:9]
  global_load_ushort v9, v3, s[10:11]
  v_lshlrev_b32 v1, 2, v1
""")
    XV = 0
    if cpf == 3:
        A(f"  s_and_b32 s42, s2, 7\n  s_sub_u32 s43, s2, {NLN + 384}\n  s_lshr_b32 s43, s43, 3\n  s_lshl_b32 s43, s43, 8\n  s_and_b32 s43, s43, 0x1fff\n  v_add_u32 v100, s43, v0")
        A.lines.append("@PF")
        gen_prefetch(A, 1, 42, 100, 8192, 40, 44, 101, 103, half=True)
        ld = A.lines.pop(); mv = A.lines.pop()
        A(f"  s_cmp_lt_u32 s2, {NLN + 384}\n  s_cselect_b32 s46, 0, s46")
        A.lines.append(mv); A.lines.append(ld)
        A.lines.remove("@PF")
        XV = 1
    F = kimg.fam
    vB0 = vAa = 112; vTo, vTo2, vAb, vWr, vEx, vU, vY, vFA, vFB, vKF, vFl = 113, 114, 115, 116, 117, 118, 119, 120, 121, 122, 123
    vFd, vIn, vZ = 124, 126, 127
    TP, ACC, NDF, DF = 4, 48, 8, 80
    GI = 68
    def taddr(fam_, dst):
        if fam_ == "R0":
            A(f"  v_mul_u32_u24 v51, {2*F['R0'][1]}, v49\n  v_lshl_add_u32 v51, v50, 1, v51\n  v_lshl_add_u32 v{dst}, v15, 4, v51")
        elif fam_ == "T16":
            A(f"  v_mul_u32_u24 v51, {2*F['T16'][1]}, v49\n  v_lshl_add_u32 v51, v50, 1, v51\n  v_mul_u32_u24 v55, {2*kimg.TLEN[16]}, v53\n  v_add3_u32 v{dst}, v51, v55, v54")
        elif fam_ == "T8":
            A(f"  v_and_b32 v51, 1, v48\n  v_mul_u32_u24 v51, {2*F['T8'][1]}, v51\n  v_and_b32 v55, 14, v48\n  v_lshl_add_u32 v51, v55, 2, v51\n  v_mul_u32_u24 v55, {2*kimg.TLEN[8]}, v53\n  v_add3_u32 v{dst}, v51, v55, v54")
        else:
            A(f"  v_lshlrev_b32 v51, 3, v48\n  v_mul_u32_u24 v55, {2*kimg.TLEN[4]}, v53\n  v_add3_u32 v{dst}, v51, v55, v54")
    def aaddr(P, dst):
        ae, ao = {4: (W3, U2), 8: (W5, W3 - 8), 16: (W9, W7 - 16)}[P]
        A(f"  v_mul_u32_u24 v51, {ao - ae}, v53\n  v_mul_u32_u24 v55, {2*P}, v56\n  v_add3_u32 v51, v51, v55, v57\n  v_add_u32 v{dst}, {ae - 32*P}, v51")
    A(f"""
  v_and_b32 v13, 63, v0                ; lane
  v_and_b32 v14, 15, v0                ; n / b
  v_bfe_u32 v15, v0, 4, 2              ; g
  v_lshlrev_b32 v{vWr}, 4, v0
  v_lshlrev_b32 v{vEx}, 4, v13
  v_lshrrev_b32 v{vU}, 1, v0
  v_mul_u32_u24 v{vU}, {US}, v{vU}
  v_and_b32 v51, 1, v0
  v_lshl_add_u32 v{vU}, v51, 4, v{vU}
  s_lshl_b32 s29, s16, 5
  v_add_u32 v{vU}, s29, v{vU}
  v_mov_b32 v110, v{vU}
  v_subrev_u32 v51, {US - 24}, v{vU}
  v_cmp_eq_u32 vcc, 0, v13
  v_add_u32 v55, {US - 16}, v{vU}
  v_mov_b32 v56, 0x40000000
  v_cndmask_b32 v110, v110, v51, vcc
  v_cmp_eq_u32 vcc, 63, v13
  s_nop 1
  v_cndmask_b32 v110, v110, v55, vcc
  v_cmp_eq_u32 vcc, 0, v0
  s_nop 1
  v_cndmask_b32 v110, v110, v56, vcc
  v_mul_u32_u24 v{vFB}, {TGS}, v14
  v_lshl_add_u32 v{vFB}, v15, 4, v{vFB}
  s_mul_i32 s30, s3, {16*TGS}
  v_add_u32 v{vFA}, s30, v{vFB}
  v_mul_u32_u24 v{vKF}, 192, v14
  v_lshl_add_u32 v{vKF}, v15, 4, v{vKF}
  s_lshl_b32 s30, s3, 6
  v_add_u32 v{vKF}, s30, v{vKF}
  v_mov_b32 v{vZ}, 0
  s_and_b32 s30, s2, {max(bird, 1) - 1}
  s_lshl_b32 s30, s30, 7
  s_add_u32 s30, s30, {BO}
  v_mov_b32 v111, s30
  v_mov_b32 v{vFl}, 0
  v_mov_b32 v{vY}, 0
  v_sub_u32 v48, 15, v14               ; q
  v_and_b32 v49, 3, v48
  v_and_b32 v50, 12, v48
  v_and_b32 v52, 1, v15                ; hb
  v_lshrrev_b32 v53, 1, v15            ; pi
  s_cmp_ge_u32 s3, 2
  s_cbranch_scc1 {L}_aBC
  v_lshlrev_b32 v51, 5, v14
  v_lshl_add_u32 v51, v15, 4, v51
  v_add_u32 v{vB0}, {U0 - 544}, v51
""")
    if ln2:
        A(f"""
  v_lshrrev_b32 v51, 2, v14
  v_lshl_add_u32 v51, v52, 2, v51      ; 4*(g&1) + (n>>2)
  v_mul_u32_u24 v{vY}, {YS}, v51
  v_and_b32 v51, 3, v14
  v_lshl_add_u32 v{vY}, v51, 5, v{vY}
  v_lshl_add_u32 v{vY}, v53, 4, v{vY}
  s_lshl_b32 s30, s16, 7
  v_add_u32 v{vY}, s30, v{vY}
  v_mul_u32_u24 v{vFl}, 2560, v13
  s_lshl_b32 s30, s16, 2
  s_lshl_b32 s31, s3, 1
  s_add_u32 s30, s30, s31
  s_add_u32 s30, s30, {F2}
  v_add_u32 v{vFl}, s30, v{vFl}
""")
    else:
        A(f"""
  v_lshl_add_u32 v51, v52, 4, v14
  v_mul_u32_u24 v{vY}, {US}, v51
  v_lshl_add_u32 v{vY}, v53, 4, v{vY}
  v_add_u32 v{vY}, s29, v{vY}
""")
    taddr("R0", vTo)
    A(f"""
  s_branch {L}_adone
{L}_aBC:
  v_lshlrev_b32 v54, 4, v52
  v_bfe_u32 v56, v0, 2, 2
  v_lshl_add_u32 v56, v52, 3, v56      ; 8hb + r
  v_and_b32 v57, 3, v0
  v_lshlrev_b32 v57, 3, v57            ; 8*c4
  s_cmp_eq_u32 s3, 3
  s_cbranch_scc1 {L}_aC
""")
    taddr("T4", vTo); aaddr(4, vAa)
    A(f"  s_branch {L}_adone\n{L}_aC:")
    taddr("T8", vTo); taddr("T16", vTo2); aaddr(8, vAa); aaddr(16, vAb)
    A(f"""
  v_lshrrev_b32 v{vFl}, {(FPL // 2).bit_length() - 1}, v13
  v_lshlrev_b32 v{vFl}, 7, v{vFl}
  v_and_b32 v51, {FPL // 2 - 1}, v13
  v_lshl_add_u32 v{vFl}, v51, 3, v{vFl}
  s_and_b32 s30, s2, {REP - 1}
  s_mul_i32 s30, s30, {RSZ}
  v_add_u32 v{vFl}, s30, v{vFl}
{L}_adone:
  s_add_u32 s8, s38, {WS_U8}
  s_addc_u32 s9, s39, 0
  s_mov_b32 s10, {128 * US}
  s_mov_b32 s11, 0x00020000
  s_add_u32 s30, s38, {WS_SY}
  s_addc_u32 s31, s39, 0
  s_add_u32 s32, s38, {WS_Y8}
  s_addc_u32 s33, s39, 0
  s_mov_b32 s34, {32 * YS if ln2 else 128 * US}
  s_mov_b32 s35, 0x00020000
  s_waitcnt vmcnt({6 + XV})
""")
    for k in range(8):
        A(f"  v_and_b32 v{GI+2*k}, 0xffff, v{60+k}")
        A(f"  v_lshrrev_b32 v{GI+1+2*k}, 16, v{60+k}")
    A(f"""
  s_waitcnt lgkmcnt(0)
  s_and_b32 s20, s20, 2
  s_lshl_b32 s20, s20, 3
  s_lshr_b32 s22, s22, s20
  s_lshl_b32 s22, s22, 16
  s_mov_b32 s23, {fbits(Lhi)}
  s_mov_b32 s24, {fbits(Llo)}
  v_mov_b32 v10, s22
""")
    def exp_bf16(dst, src, t1, t2):
        A(f"""
  v_mul_f32 v{t1}, s23, v{src}
  v_fma_f32 v{t2}, v{src}, s23, -v{t1}
  v_fma_f32 v{t2}, v{src}, s24, v{t2}
  v_exp_f32 v{t1}, v{t1}
  v_mul_f32 v{t2}, {fbits(0.6931471805599453)}, v{t2}
  v_fma_f32 v{dst}, v{t1}, v{t2}, v{t1}
  v_cvt_pk_bf16_f32 v{dst}, v{dst}, v{dst}
  v_lshlrev_b32 v{dst}, 16, v{dst}
""")
    exp_bf16(10, 10, 11, 12)
    A(f"  s_waitcnt vmcnt({5 + XV})\n  v_lshlrev_b32 v4, 16, v4")
    exp_bf16(4, 4, 11, 12)
    A(f"""
  v_mul_f32 v4, v4, v10
  v_mul_f32 v4, {fbits(-LOG2E)}, v4
  s_waitcnt vmcnt({XV})
  v_lshlrev_b32 v5, 16, v5
  v_mul_f32 v5, v5, v10
  v_mul_f32 v5, {fbits(0.15915494309189535)}, v5
  v_lshlrev_b32 v6, 16, v6
  v_lshlrev_b32 v7, 16, v7
  v_lshlrev_b32 v8, 16, v8
  v_lshlrev_b32 v9, 16, v9
  v_max3_f32 v11, |v6|, |v7|, |v8|
  v_max_f32 v11, v11, |v9|
  v_mul_f32 v11, v11, v10
""")
    for sh in (8, 4, 2, 1):
        A(f"  s_nop 1\n  v_max_f32 v11, v11, v11 row_ror:{sh}")
    A(f"""
  s_nop 0
  v_readlane_b32 s25, v11, 0
  v_readlane_b32 s26, v11, 16
  v_readlane_b32 s27, v11, 32
  v_readlane_b32 s28, v11, 48
  v_mul_f32 v6, v6, v10
  v_mul_f32 v7, v7, v10
  s_max_u32 s25, s25, s26
  s_max_u32 s27, s27, s28
  s_max_u32 s25, s25, s27
  s_lshr_b32 s25, s25, 23
  s_max_u32 s25, s25, 1
  s_min_u32 s25, s25, 253
  s_sub_u32 s26, 254, s25
  s_lshl_b32 s26, s26, 23
  s_add_u32 s27, s25, 1
  s_lshl_b32 s27, s27, 23
  v_mul_f32 v6, s26, v6
  v_mul_f32 v7, s26, v7
""")
    def pw(dst, p, t):
        if p == 1:
            A(f"  v_exp_f32 v{t}, v4\n  v_fract_f32 v{t+1}, v5")
        else:
            A(f"  v_mul_f32 v{t}, {fbits(float(p))}, v4\n  v_mul_f32 v{t+1}, {fbits(float(p))}, v5\n  v_exp_f32 v{t}, v{t}\n  v_fract_f32 v{t+1}, v{t+1}")
        A(f"  v_cos_f32 v{dst}, v{t+1}\n  v_sin_f32 v{dst+1}, v{t+1}\n  s_nop 0\n  v_mul_f32 v{dst}, v{dst}, v{t}\n  v_mul_f32 v{dst+1}, v{dst+1}, v{t}")
    tmp = [0]
    def cmul(d, a, b):
        t = 52 + 2 * (tmp[0] & 3); tmp[0] += 1
        A(f"  v_pk_mul_f32 {vr(t,2)}, {vr(a,2)}, {vr(b,2)} op_sel:[1,1] op_sel_hi:[1,0]")
        A(f"  v_pk_fma_f32 {vr(d,2)}, {vr(a,2)}, {vr(b,2)}, {vr(t,2)} op_sel_hi:[0,1,1] neg_lo:[0,0,1]")
    ow = [0]
    def putG(row, a, neg=False):
        o = 48 + (ow[0] & 3); ow[0] += 1
        if neg: A(f"  v_cvt_pk_f16_f32 v{o}, -v{a}, v{a+1}")
        else:   A(f"  v_cvt_pk_f16_f32 v{o}, v{a}, -v{a+1}")
        A(f"  ds_write_b32 v1, v{o} offset:{TG + row*TGS}")
    def putE(col, a):
        o = 48 + (ow[0] & 3); ow[0] += 1
        A(f"  v_cvt_pk_f16_f32 v{o}, v{a}, v{a+1}")
        A(f"  ds_write_b32 v1, v{o} offset:{TE + col*TGS}")
    A(f"  s_cmp_ge_u32 s3, 2\n  s_cbranch_scc1 {L}_part1")
    Wp = lambda j: 12 + 2 * (j - 1)
    pw(Wp(1), 1, 44); pw(28, 128, 40)
    putG(0, 6)
    cmul(Wp(2), Wp(1), Wp(1)); cmul(30, 6, 28)
    cmul(Wp(3), Wp(2), Wp(1)); cmul(Wp(4), Wp(2), Wp(2)); cmul(32, 30, 28)
    putG(8, 30)
    cmul(Wp(5), Wp(4), Wp(1)); cmul(Wp(6), Wp(4), Wp(2)); cmul(Wp(7), Wp(4), Wp(3)); cmul(Wp(8), Wp(4), Wp(4)); cmul(34, 32, 28)
    putG(16, 32); putG(20, 34)
    o = [36, 38, 40, 42]; k = 0
    for j in range(1, 8):
        for hb, row0 in ((6, 0), (30, 8)):
            r = o[k & 3]; k += 1
            cmul(r, hb, Wp(j)); putG(row0 + j, r)
    for jj, j in enumerate((2, 4, 6)):
        for hb, row0 in ((32, 16), (34, 20)):
            r = o[k & 3]; k += 1
            cmul(r, hb, Wp(j)); putG(row0 + jj + 1, r)
    A(f"  v_pk_add_f32 {vr(Wp(7),2)}, {vr(Wp(7),2)}, {vr(Wp(8),2)} neg_lo:[0,1] neg_hi:[0,1]")
    A(f"  v_pk_add_f32 {vr(Wp(6),2)}, {vr(Wp(6),2)}, {vr(Wp(8),2)} neg_lo:[0,1] neg_hi:[0,1]")
    cmul(36, 30, Wp(7)); putG(41, 36)
    cmul(38, 34, Wp(6)); putG(42, 38)
    A(f"  s_branch {L}_tabdone\n{L}_part1:")
    pw(12, 8, 44); pw(28, 128, 40); pw(30, 512, 44); pw(32, 4, 40)
    A(f"  v_mov_b32 v48, 0x3c00\n  ds_write_b32 v1, v48 offset:{TE}")
    A(f"  v_mov_b32 v49, 0\n  ds_write_b32 v1, v49 offset:{TG + kimg.ROW_ZERO*TGS}")
    putE(1, 12)
    cmul(14, 12, 12); cmul(34, 6, 30)
    putE(2, 14)
    cmul(20, 14, 12); cmul(16, 14, 14)
    putE(3, 20); putE(4, 16)
    cmul(22, 16, 12); cmul(24, 16, 14); cmul(26, 16, 20); cmul(18, 16, 16)
    putE(5, 22); putE(6, 24); putE(7, 26); putE(8, 18)
    Ereg = {1: 12, 2: 14, 3: 20, 4: 16, 5: 22, 6: 24, 7: 26}
    hcur = 34
    for a in range(4, 17):
        hn = 70 - hcur
        if a < 16: cmul(hn, hcur, 28)
        if a < 8:
            putG(24 + 2 * (a - 4), hcur)
            cmul(40, hcur, 32); putG(25 + 2 * (a - 4), 40)
        elif a < 16:
            putG(32 + (a - 8), hcur)
            if a == 8: putG(kimg.ROW_N1024, hcur, neg=True)
        else:
            putG(40, hcur)
        b = a - 4 + 1
        if 1 <= b <= 7:
            cmul(42, 18, Ereg[b]); putE(8 + b, 42)
        hcur = hn
    A(f"""
{L}_tabdone:
  s_waitcnt lgkmcnt(0)
  s_barrier
  s_cmp_ge_u32 s3, 3
  s_cbranch_scc1 {L}_w3a
""")
    for ks in range(4):
        A(f"  ds_read_b128 {vr(12+8*ks,4)}, v{vFA} offset:{TG + 64*ks}")
        A(f"  ds_read_b128 {vr(16+8*ks,4)}, v{vFB} offset:{TE + 64*ks}")
    for ks in range(8):
        b = 12 + 8 * (ks & 3)
        A(f"  s_waitcnt lgkmcnt({6 if ks < 5 else 2*(7-ks)})")
        A(f"  v_mfma_f32_16x16x32_f16 v[44:47], {vr(b,4)}, {vr(b+4,4)}, {'0' if ks == 0 else 'v[44:47]'}")
        if ks < 4:
            A(f"  ds_read_b128 {vr(b,4)}, v{vFA} offset:{TG + 64*(ks+4)}")
            A(f"  ds_read_b128 {vr(b+4,4)}, v{vFB} offset:{TE + 64*(ks+4)}")
    A(f"  s_nop 7\n  ds_write_b128 v{vKF}, v[44:47] offset:{KFO}\n  s_branch {L}_nomfma\n{L}_w3a:\n  global_load_dword v{vIn}, v{vZ}, s[36:37] sc1\n{L}_nomfma:")
    A("  v_pk_mov_b32 v[56:57], 0, 0\n  v_pk_mov_b32 v[58:59], 0, 0")
    A("  s_waitcnt lgkmcnt(0)\n  s_barrier")
    stamp()
    n2 = kimg.NEL // 8 - 256
    for k in range(8): A(f"  ds_read_b32 v{28+k}, v{GI+k} offset:{KFO}")
    A(f"  s_cmp_ge_u32 s3, 3\n  s_cbranch_scc1 {L}_pads")
    for k in range(8): A(f"  ds_read_b32 v{36+k}, v{GI+8+k} offset:{KFO}")
    A(f"  v_cmp_gt_u32 vcc, {n2}, v0")
    for k in range(4):
        A(f"  s_waitcnt lgkmcnt({14-2*k})\n  v_cvt_pk_f16_f32 v{44+k}, v{28+2*k}, v{29+2*k}")
    A(f"  ds_write_b128 v{vWr}, v[44:47] offset:{KI}")
    for k in range(4):
        A(f"  s_waitcnt lgkmcnt({7-2*k})\n  v_cvt_pk_f16_f32 v{48+k}, v{36+2*k}, v{37+2*k}")
    A(f"""
  s_and_saveexec_b64 s[24:25], vcc
  ds_write_b128 v{vWr}, v[48:51] offset:{KI + 4096}
  s_mov_b64 exec, -1
  s_branch {L}_img1
{L}_pads:
  s_mov_b32 exec_hi, 0xf
  ds_write_b128 v{vEx}, v[56:59] offset:{U0 - 576}
  ds_write_b128 v{vEx}, v[56:59] offset:{W7 - 576}
  s_mov_b32 exec_hi, 0
  ds_write_b128 v{vEx}, v[56:59] offset:{W9 - 512}
  s_mov_b32 exec_lo, 0x1ffff
  ds_write_b128 v{vEx}, v[56:59] offset:{W5 - 272}
  ds_write_b128 v{vEx}, v[56:59] offset:{W3 - 272}
  ds_write_b128 v{vEx}, v[56:59] offset:{U2 - 272}
  s_mov_b64 exec, -1
  s_mov_b32 s21, 200000
  s_waitcnt vmcnt(0)
{L}_poll0:                             ; the flag lines are meaningful only once the init flag is up
  v_cmp_eq_u32 vcc, 0, v{vIn}
  s_sub_u32 s21, s21, 1
  s_cmp_eq_u32 s21, 0
  s_cbranch_scc1 {L}_poll1a
  s_cbranch_vccz {L}_poll1a
  s_sleep 16
  global_load_dword v{vIn}, v{vZ}, s[36:37] sc1
  s_waitcnt vmcnt(0)
  s_branch {L}_poll0
{L}_poll1a:
  s_waitcnt lgkmcnt(6)
""")
    for k in range(4): A(f"  v_cvt_pk_f16_f32 v{44+k}, v{28+2*k}, v{29+2*k}")
    A(f"""
  ds_write_b128 v{vWr}, v[44:47] offset:{KI}
  {f'global_load_dwordx2 {vr(vFd,2)}, v{vFl}, s[30:31] {pfl}' if (early and not bird) else ''}
  {f'global_load_dword v{vIn}, v111, s[30:31] sc1' if bird else ''}
{L}_img1:
  s_waitcnt lgkmcnt(0)
  s_barrier
""")
    def tread(reg, va, off):
        A(f"  ds_read_b64 {vr(reg,2)}, v{va} offset:{off}\n  ds_read_b64 {vr(reg+2,2)}, v{va} offset:{off+8}")
    treg = {}
    A(f"  s_cmp_ge_u32 s3, 2\n  s_cbranch_scc1 {L}_tBC")
    for k in range(0, 17, 2):
        treg[("R0", k)] = TP + 2 * k; tread(TP + 2 * k, vTo, KI + 32 * (16 - k))
    treg[("RC",)] = TP + 36; tread(TP + 36, vTo, KI + 2 * kimg.RC_OFF)
    A(f"  s_branch {L}_polled\n{L}_tBC:\n  s_cmp_eq_u32 s3, 3\n  s_cbranch_scc1 {L}_tC")
    for kap in range(8):
        treg[("T", 4, kap)] = TP + 4 * kap; tread(TP + 4 * kap, vTo, KI + 2 * F["T4"][0] + 32 * kap)
    A(f"  s_branch {L}_polled\n{L}_tC:")
    if not early: A(f"  global_load_dwordx2 {vr(vFd,2)}, v{vFl}, s[30:31] {pfl}")
    for kap in range(6):
        treg[("T", 8, kap)] = TP + 4 * kap; tread(TP + 4 * kap, vTo, KI + 2 * F["T8"][0] + 32 * kap)
    for kap in range(5):
        treg[("T", 16, kap)] = TP + 24 + 4 * kap; tread(TP + 24 + 4 * kap, vTo2, KI + 2 * F["T16"][0] + 32 * kap)
    if bird:
        A(f"""
{L}_bpoll:
  s_sub_u32 s21, s21, 1
  s_waitcnt vmcnt(0)
  v_cmp_ne_u32 vcc, 1, v{vIn}
  s_cmp_eq_u32 s21, 0
  s_cbranch_scc1 {L}_polled
  s_cbranch_vccz {L}_bok
  s_sleep {slpb}
  global_load_dword v{vIn}, v111, s[30:31] sc1
  s_branch {L}_bpoll
{L}_bok:
  global_load_dwordx2 {vr(vFd,2)}, v{vFl}, s[30:31] {pfl}
""")
    A(f"""
{L}_poll:
  s_sub_u32 s21, s21, 1
  s_waitcnt vmcnt(0)
  v_and_b32 v{vFd}, v{vFd}, v{vFd+1}
  v_cmp_ne_u32 vcc, 1, v{vFd}
  s_cmp_eq_u32 s21, 0
  s_cbranch_scc1 {L}_polled
  s_cbranch_vccz {L}_polled
  s_sleep {slp}
  global_load_dwordx2 {vr(vFd,2)}, v{vFl}, s[30:31] {pfl}
  s_branch {L}_poll
{L}_polled:
""")
    stamp()
    A("  s_barrier")
    stamp()
    def conv_pf(lab):
        A(f"  s_cmp_lt_u32 s3, 2\n  s_cbranch_scc1 {L}_{lab}")
        A(f"  s_and_b32 s42, s2, 7\n  s_sub_u32 s43, s2, {NLN}\n  s_lshr_b32 s43, s43, 3\n  s_lshl_b32 s43, s43, 7\n  s_sub_u32 s43, s43, 128\n  v_add_u32 v123, s43, v0")
        gen_prefetch(A, 1, 42, 123, 80 * 128, 40, 44, 124, 126, half=True)
        if cpw2 == 2:
            A.srd(44, 50, 1728 * 4096)
            A(f"  s_lshl_b32 s48, s42, 9\n  v_lshrrev_b32 v124, 2, v123\n  v_lshlrev_b32 v124, 12, v124\n  v_and_b32 v125, 3, v123\n  v_lshl_add_u32 v124, v125, 7, v124\n  buffer_load_dword v127, v124, s[44:47], s48 offen")
        A(f"{L}_{lab}:")
    SRC, OO, WA, WT = 80, 88, 96, 48
    E = lambda j: SRC + 2 + j
    O = lambda j: OO + 2 + j
    W = lambda a, j: WA + 4 * a + j
    if dpp:
        A(f"""
  buffer_load_dwordx4 {vr(E(0),4)}, v{vU}, s[8:11], 0 offen sc1
  buffer_load_dwordx2 {vr(E(-2),2)}, v110, s[8:11], 0 offen sc1
  s_waitcnt vmcnt(1)
  ds_write_b128 v{vWr}, {vr(E(0),4)} offset:{U0}
""")
        for j in range(0, 3): A(f"  v_alignbit_b32 v{O(j)}, v{E(j+1)}, v{E(j)}, 16")
        A(f"  v_pk_mov_b32 {vr(WT+10,2)}, {vr(E(0),2)}, {vr(E(2),2)} op_sel:[1,0]")
        A(f"  s_waitcnt vmcnt(0)\n  v_mov_b32 v{E(4)}, v{E(-2)}\n  v_mov_b32 v{E(5)}, v{E(-1)}")
        stamp()
        if cpf == 1: conv_pf("cpf")
        A(f"""
  v_mov_b32 v{E(-2)}, v{E(2)} wave_shr:1
  v_mov_b32 v{E(-1)}, v{E(3)} wave_shr:1
  v_mov_b32 v{E(4)}, v{E(0)} wave_shl:1
  v_mov_b32 v{E(5)}, v{E(1)} wave_shl:1
""")
    else:
        A(f"""
  buffer_load_dwordx4 {vr(E(0),4)}, v{vU}, s[8:11], 0 offen sc1
  s_waitcnt vmcnt(0)
  ds_write_b128 v{vWr}, {vr(E(0),4)} offset:{U0}
  s_waitcnt lgkmcnt(0)
  s_barrier
""")
        stamp()
        if cpf == 1: conv_pf("cpf")
        A(f"  ds_read_b64 {vr(E(-2),2)}, v{vWr} offset:{U0 - 8}\n  ds_read_b64 {vr(E(4),2)}, v{vWr} offset:{U0 + 16}")
        for j in range(0, 3): A(f"  v_alignbit_b32 v{O(j)}, v{E(j+1)}, v{E(j)}, 16")
        A(f"  v_pk_mov_b32 {vr(WT+10,2)}, {vr(E(0),2)}, {vr(E(2),2)} op_sel:[1,0]")
        A("  s_waitcnt lgkmcnt(0)")
    for j in (-1, 3, -2, 4): A(f"  v_alignbit_b32 v{O(j)}, v{E(j+1)}, v{E(j)}, 16")
    A(f"  v_pk_mov_b32 {vr(WT+8,2)}, {vr(E(-2),2)}, {vr(E(0),2)} op_sel:[1,0]")
    def chainw(dst, src, x, y, off):
        for j in range(4): A(f"  v_pk_add_f16 v{W(dst,j)}, v{src(j)}, v{x(j)}")
        for j in range(4): A(f"  v_pk_add_f16 v{W(dst,j)}, v{W(dst,j)}, v{y(j)}")
        A(f"  ds_write_b128 v{vWr}, {vr(W(dst,0),4)} offset:{off}")
    A(f"  ds_write_b128 v{vWr}, {vr(WT+8,4)} offset:{U2}")
    chainw(0, lambda j: O(j-1), E, O, W3)
    chainw(1, lambda j: W(0,j), lambda j: E(j-1), lambda j: E(j+1), W5)
    A(f"  s_cmp_ge_u32 s3, 2\n  s_cbranch_scc1 {L}_prepdone")
    chainw(2, lambda j: W(1,j), lambda j: O(j-2), lambda j: O(j+1), W7)
    chainw(3, lambda j: W(2,j), lambda j: E(j-2), lambda j: E(j+2), W9)
    A(f"""
  s_cmp_lg_u32 s3, 0
  s_cbranch_scc1 {L}_prepdone
  v_pack_b32_f16 v{WT}, v{E(0)}, v{W(0,0)}
  v_pack_b32_f16 v{WT+1}, v{W(1,0)}, v{W(2,0)}
  v_lshlrev_b32 v{WT+2}, 16, v{E(0)}
  v_pack_b32_f16 v{WT+3}, v{W(0,0)}, v{W(1,0)}
  s_mov_b64 exec, 1
  ds_write_b64 v{vWr}, {vr(WT,2)} offset:{W9 - 8}
  ds_write_b64 v{vWr}, {vr(WT+2,2)} offset:{W7 - 8}
  ds_write_b32 v{vWr}, v{WT} offset:{W5 - 4}
  ds_write_b32 v{vWr}, v{WT+2} offset:{W3 - 4}
  s_mov_b64 exec, -1
{L}_prepdone:
  s_waitcnt lgkmcnt(0)
  s_barrier
""")
    stamp()
    if cpf == 2: conv_pf("cpf")
    if cpf == 4:
        A(f"  s_cmp_lt_u32 s2, {NLN + 384}\n  s_cbranch_scc1 {L}_cpf4")
        A(f"  s_and_b32 s42, s2, 7\n  s_sub_u32 s43, s2, {NLN + 384}\n  s_lshr_b32 s43, s43, 3\n  s_lshl_b32 s43, s43, 8\n  v_add_u32 v123, s43, v0")
        gen_prefetch(A, 1, 42, 123, 8192, 40, 44, 124, 126, half=True)
        A(f"{L}_cpf4:")
    def role(kind, tiles):
        lq = []
        def ds(tag, txt): A(txt); lq.append(tag)
        def lwait(tags):
            idxs = [i for i, t in enumerate(lq) if t in tags]
            if not idxs: return
            n = min(len(lq) - 1 - max(idxs), 15)
            A(f"  s_waitcnt lgkmcnt({n})"); del lq[:len(lq) - n]
        items = []
        if kind == "A":
            for e in list(range(-14, 113, 2)) + [16 * t - 63 for t in range(3, 8)]:
                ms = []
                if e & 1: ms.append(((e + 63) // 16, ("RC",), True))
                else:
                    t = -(-e // 16); k = 16 * t - e
                    ms.append((t, ("R0", k), True))
                    if k == 0: ms.append((t + 1, ("R0", 16), True))
                ms = [m for m in ms if m[0] in tiles]
                if ms: items.append(("u", e, ms))
        else:
            for P in ((4,) if kind == "B" else (8, 16)):
                s = 16 // P
                for J in range(-1, s * 7 - 8 + s + 3 + 1):
                    ms = [(t, ("T", P, J - s * t + 8), False) for t in range(8) if 0 <= J - s * t + 8 < s + 4]
                    items.append(("w", (P, J), ms))
        accr = {t: ACC + 4 * i for i, t in enumerate(tiles)}
        def load(idx):
            kd, x, _ = items[idx]
            r = DF + 4 * (idx % NDF)
            if kd == "u":
                ds(("D", idx), f"  ds_read_b128 {vr(r,4)}, v{vB0} offset:{32*(x+16)}")
            else:
                P, J = x
                va = vAb if P == 16 else vAa
                for h in range(2):
                    ds(("D", idx), f"  ds_read_b64_tr_b16 {vr(r+2*h,2)}, v{va} offset:{2*P*(16*(J+1)+4*h)}")
        assert PF + WB <= NDF + 1
        for idx in range(PF): load(idx)
        inited = set()
        for idx, (kd, x, ms) in enumerate(items):
            if idx + PF < len(items): load(idx + PF)
            r = DF + 4 * (idx % NDF)
            for (t, ttag, toepA) in ms:
                if ("D", idx) in lq: lwait({("D", idx + k) for k in range(WB)})
                acc = vr(accr[t], 4); c = acc if t in inited else "0"; inited.add(t)
                tr_ = vr(treg[ttag], 4)
                if toepA: A(f"  v_mfma_f32_16x16x32_f16 {acc}, {tr_}, {vr(r,4)}, {c}")
                else:     A(f"  v_mfma_f32_16x16x32_f16 {acc}, {vr(r,4)}, {tr_}, {c}")
        return accr
    exB = {t: EXS[t] for t in range(8)}
    exC = {t: EXS[7 + t] for t in range(1, 8)}
    A(f"  s_cmp_ge_u32 s3, 2\n  s_cbranch_scc1 {L}_rBC\n  s_cmp_eq_u32 s3, 1\n  s_cbranch_scc1 {L}_rA2")
    def finA(tiles):
        accr = role("A", tiles)
        if stamps: A(f"  s_memtime s[{62+2*nst[0]}:{63+2*nst[0]}]")
        A(f"  v_mov_b32 v2, s27\n  s_waitcnt lgkmcnt(0)\n  s_barrier")
        n = 0
        for i, t in enumerate(tiles):
            A(f"  ds_read_b128 {vr(DF+8*i,4)}, v{vEx} offset:{exB[t]}"); n += 1
            if t in exC: A(f"  ds_read_b128 {vr(DF+8*i+4,4)}, v{vEx} offset:{exC[t]}"); n += 1
        for i, t in enumerate(tiles):
            a = accr[t]
            n -= 2 if t in exC else 1
            A(f"  s_waitcnt lgkmcnt({n})")
            for r in (0, 2): A(f"  v_pk_add_f32 {vr(a+r,2)}, {vr(a+r,2)}, {vr(DF+8*i+r,2)}")
            if t in exC:
                for r in (0, 2): A(f"  v_pk_add_f32 {vr(a+r,2)}, {vr(a+r,2)}, {vr(DF+8*i+4+r,2)}")
            for r in (0, 2): A(f"  v_pk_mul_f32 {vr(a+r,2)}, {vr(a+r,2)}, v[2:3] op_sel_hi:[1,0]")
            o = TP + 4 * (i >> 1) + 2 * (i & 1)
            A(f"  v_cvt_pk_bf16_f32 v{o}, v{a}, v{a+1}\n  v_cvt_pk_bf16_f32 v{o+1}, v{a+2}, v{a+3}")
            if i & 1:
                b = TP + 4 * (i >> 1)
                A(f"  s_mov_b32 s20, {4 * (t - 1) * YS if ln2 else 16 * (t - 1) * US}\n  s_nop 0\n  v_permlane16_swap_b32 v{b}, v{b+2}\n  v_permlane16_swap_b32 v{b+1}, v{b+3}")
                A(f"  buffer_store_dwordx4 {vr(b,4)}, v{vY}, s[32:35], s20 offen {'sc1' if ln2 else ''}")
        if ln2:
            A(f"  v_mov_b32 v2, 1\n  s_mov_b64 exec, {(1 << R2) - 1}\n  s_waitcnt vmcnt(0)\n  global_store_short v{vFl}, v2, s[30:31] {sfl}\n  s_mov_b64 exec, -1")
        A(f"  s_branch {L}_fin")
    finA([0, 1, 2, 3])
    A(f"{L}_rA2:")
    finA([4, 5, 6, 7])
    A(f"{L}_rBC:\n  s_cmp_eq_u32 s3, 3\n  s_cbranch_scc1 {L}_rC")
    def finBC(kind, tiles, ex):
        accr = role(kind, tiles)
        if stamps: A(f"  s_memtime s[{62+2*nst[0]}:{63+2*nst[0]}]")
        A("  s_nop 1")
        for t in tiles:
            A(f"  ds_write_b128 v{vEx}, {vr(accr[t],4)} offset:{ex[t]}")
        A(f"  s_waitcnt lgkmcnt(0)\n  s_barrier\n  s_branch {L}_fin")
    finBC("B", list(range(8)), exB)
    A(f"{L}_rC:")
    finBC("C", list(range(1, 8)), exC)
    A(f"{L}_fin:")
    if stamps:
        nst[0] += 1
        A(f"  s_waitcnt vmcnt(0)\n  s_memtime s[{62+2*nst[0]}:{63+2*nst[0]}]\n  s_waitcnt lgkmcnt(0)"); nst[0] += 1
        A.srd(84, 38, 0x100000, 0x2040000)
        A(f"  s_lshl_b32 s83, s16, 2\n  s_add_u32 s83, s83, s3\n  s_lshl_b32 s83, s83, 5\n  v_mov_b32 v2, s83")
        for k in range(nst[0]):
            A(f"  s_sub_u32 s83, s{62+2*k}, s60\n  v_mov_b32 v3, s83\n  buffer_store_dword v3, v2, s[84:87], 0 offen offset:{4*k}")
    A("  s_endpgm")
    A(f"{L}_ln2:")
    if ln2:
        NQ, NE = 5, 20
        HROW = 336
        YB, HB = 0, 10240
        SB = HB + 4 * 8 * HROW + 256
        RX, RD, RY = 16, 26, 36
        X, U, Y, T = 46, 66, 86, 106
        P = range(NE // 2)
        A(f"""
  s_sub_u32 s16, s2, {NLN + 640}
  s_load_dwordx2 s[4:5], s[0:1], {KA['x']}
  s_load_dwordx2 s[28:29], s[0:1], {KA['Dsk']}
  s_load_dwordx4 s[36:39], s[0:1], {KA['dbg']}
  v_lshrrev_b32 v1, 6, v0
  v_and_b32 v2, 7, v0                  ; t
  v_readfirstlane_b32 s3, v1           ; wave
  v_and_b32 v1, 63, v0
  v_lshrrev_b32 v3, 3, v1              ; qq
  s_lshl_b32 s17, s16, 3
  v_add_u32 v4, s17, v2
  v_mul_u32_u24 v4, 1280, v4
  s_mul_i32 s17, s3, 320
  v_lshl_add_u32 v6, v3, 3, s17
  v_add_u32 v4, v4, v6                 ; x/h offset
  s_mov_b32 s14, {2048 * 1280}
  s_mov_b32 s15, 0x00020000
  s_mov_b32 s26, 1280
  s_mov_b32 s27, 0x00020000
  s_waitcnt lgkmcnt(0)
  s_mov_b32 s12, s4
  s_mov_b32 s13, s5
  s_mov_b32 s24, s28
  s_mov_b32 s25, s29
""")
        for i in range(NQ): A(f"  buffer_load_dwordx2 {vr(RX+2*i,2)}, v4, s[12:15], 0 offen offset:{64*i}")
        for i in range(NQ): A(f"  buffer_load_dwordx2 {vr(RD+2*i,2)}, v6, s[24:27], 0 offen offset:{64*i}")
        A.srd(8, 38, 32 * YS, WS_Y8)
        A.srd(32, 38, 2048 * 1280, WS_H)
        A.srd(40, 38, 8 * XT1, WS_HN8)
        A(f"""
  s_add_u32 s30, s38, {WS_SY + F2}
  s_addc_u32 s31, s39, 0
  s_mul_i32 s19, s3, 2560
  v_lshrrev_b32 v8, 4, v1
  v_lshlrev_b32 v8, 7, v8
  v_bfe_u32 v9, v1, 1, 1
  v_lshl_add_u32 v8, v9, 6, v8
  v_bfe_u32 v9, v1, 2, 2               ; r
  v_lshl_add_u32 v8, v9, 4, v8
  v_and_b32 v10, 1, v1
  v_lshl_add_u32 v8, v10, 3, v8
  v_add_u32 v8, s19, v8
  v_lshl_add_u32 v7, v1, 4, s19
  s_mul_i32 s44, s3, {8*HROW}
  s_add_u32 s44, s44, {HB}
  v_mul_u32_u24 v10, {HROW}, v2
  v_lshl_add_u32 v10, v3, 3, v10
  v_add_u32 v10, s44, v10
  v_mul_u32_u24 v11, {HROW}, v9
  v_lshrrev_b32 v12, 4, v1
  v_lshl_add_u32 v11, v12, 5, v11
  v_and_b32 v12, 3, v1
  v_lshl_add_u32 v11, v12, 3, v11
  v_add_u32 v11, s44, v11
  v_lshlrev_b32 v12, 5, v2
  v_add_u32 v12, {SB}, v12
  v_lshrrev_b32 v13, 5, v1
  v_lshl_add_u32 v13, v13, 2, v12
  s_lshl_b32 s45, s3, 3
  v_add_u32 v13, s45, v13
  s_mul_i32 s47, s16, 1280
  s_mul_i32 s46, s3, 160
  v_add_u32 v{T}, s46, v1
  s_lshr_b32 s18, s16, 3
  s_mul_i32 s18, s18, {YS}
  s_and_b32 s45, s16, 7
  s_lshl_b32 s45, s45, 4
  s_add_u32 s18, s18, s45
  v_lshlrev_b32 v5, 7, v{T}
  v_min_u32 v122, 39, v1
  v_lshlrev_b32 v122, 4, v122
  s_and_b32 s45, s16, {R2 - 1}
  s_mul_i32 s45, s45, 2560
  s_mul_i32 s48, s3, 640
  s_add_u32 s45, s45, s48
  v_add_u32 v122, s45, v122
  v_mov_b32 v123, 0
  s_mov_b32 s48, 0xff
  s_mov_b32 s49, 0xff
""")
        VO = 124
        for i in range(3):
            A(f"""
  v_mul_u32_u24 v{T+1}, 52429, v{T}
  v_lshrrev_b32 v{T+1}, 22, v{T+1}
  v_mul_u32_u24 v{T+1}, {XT1 - 1280}, v{T+1}
  v_lshl_add_u32 v{VO+i}, v{T}, 4, v{T+1}
  v_add_u32 v{T}, 64, v{T}
""")
        def unpack(dst, src):
            for k in P: A(f"  v_lshlrev_b32 v{dst+2*k}, 16, v{src+k}\n  v_and_b32 v{dst+2*k+1}, 0xffff0000, v{src+k}")
        def rnd(a):
            for k in P: A(f"  v_cvt_pk_bf16_f32 v{T+k}, v{a+2*k}, v{a+2*k+1}")
            unpack(a, T)
        def xreduce(s1, s2, off):
            A(f"""
  s_nop 1
  v_permlane32_swap_b32 v{s1}, v{s2}
  s_nop 1
  v_add_f32 v{s1}, v{s1}, v{s2}
  v_mov_b32 v{s2}, v{s1}
  s_nop 1
  v_permlane16_swap_b32 v{s1}, v{s2}
  s_nop 1
  v_add_f32 v{s1}, v{s1}, v{s2}
  s_nop 1
  v_add_f32 v{s1}, v{s1}, v{s1} row_ror:8
  s_mov_b64 exec, s[48:49]
  ds_write_b32 v13, v{s1} offset:{off}
  s_mov_b64 exec, -1
  s_waitcnt lgkmcnt(0)
  s_barrier
  ds_read_b128 {vr(T,4)}, v12 offset:{off}
  ds_read_b128 {vr(T+4,4)}, v12 offset:{off+16}
  s_waitcnt lgkmcnt(0)
  v_pk_add_f32 {vr(T,2)}, {vr(T,2)}, {vr(T+2,2)}
  v_pk_add_f32 {vr(T+4,2)}, {vr(T+4,2)}, {vr(T+6,2)}
  s_nop 0
  v_pk_add_f32 {vr(T,2)}, {vr(T,2)}, {vr(T+4,2)}
""")
        def sums(a, sq):
            S1, S2 = T + 8, T + 12
            A(f"  v_pk_add_f32 {vr(S1,2)}, {vr(a,2)}, {vr(a+2,2)}\n  v_pk_add_f32 {vr(S1+2,2)}, {vr(a+4,2)}, {vr(a+6,2)}")
            if sq: A(f"  v_pk_mul_f32 {vr(S2,2)}, {vr(a,2)}, {vr(a,2)}\n  v_pk_mul_f32 {vr(S2+2,2)}, {vr(a+2,2)}, {vr(a+2,2)}")
            for k in range(2, NE // 2):
                if k >= 4: A(f"  v_pk_add_f32 {vr(S1+2*(k&1),2)}, {vr(S1+2*(k&1),2)}, {vr(a+2*k,2)}")
                if sq: A(f"  v_pk_fma_f32 {vr(S2+2*(k&1),2)}, {vr(a+2*k,2)}, {vr(a+2*k,2)}, {vr(S2+2*(k&1),2)}")
            A(f"  v_pk_add_f32 {vr(S1,2)}, {vr(S1,2)}, {vr(S1+2,2)}")
            if sq: A(f"  v_pk_add_f32 {vr(S2,2)}, {vr(S2,2)}, {vr(S2+2,2)}")
            A(f"  s_nop 0\n  v_add_f32 v{S1}, v{S1}, v{S1+1}")
            if sq: A(f"  v_add_f32 v{S1+1}, v{S2}, v{S2+1}")
            else:  A(f"  v_mov_b32 v{S1+1}, 0")
            return S1, S1 + 1
        A(f"  s_waitcnt vmcnt({NQ})")
        unpack(X, RX)
        xreduce(*sums(X, False), 0)
        A(f"  v_mul_f32 v14, {fbits(1.0/640)}, v{T}          ; mean")
        for k in P: A(f"  v_pk_add_f32 {vr(U+2*k,2)}, {vr(X+2*k,2)}, v[14:15] op_sel_hi:[1,0] neg_lo:[0,1] neg_hi:[0,1]")
        xreduce(*sums(U, True), 256)
        A(f"""
  v_mul_f32 v15, {fbits(1.0/640)}, v{T+1}
  v_cvt_pk_bf16_f32 v15, v15, v14
  v_and_b32 v14, 0xffff0000, v15            ; m_bf
  v_lshlrev_b32 v15, 16, v15
  v_add_f32 v15, {fbits(1e-5)}, v15
  v_cvt_pk_bf16_f32 v15, v15, v15
  v_lshlrev_b32 v15, 16, v15
  v_sqrt_f32 v15, v15
  s_nop 0
  v_cvt_pk_bf16_f32 v15, v15, v15
  v_lshlrev_b32 v15, 16, v15
  v_rcp_f32 v15, v15                        ; rs
""")
        for k in P: A(f"  v_pk_add_f32 {vr(U+2*k,2)}, {vr(X+2*k,2)}, v[14:15] op_sel_hi:[1,0] neg_lo:[0,1] neg_hi:[0,1]")
        rnd(U)
        for k in P: A(f"  v_pk_mul_f32 {vr(U+2*k,2)}, {vr(U+2*k,2)}, v[14:15] op_sel:[0,1] op_sel_hi:[1,1]")
        rnd(U)
        A("  s_waitcnt vmcnt(0)")
        unpack(Y, RD)
        for k in P: A(f"  v_pk_mul_f32 {vr(U+2*k,2)}, {vr(U+2*k,2)}, {vr(Y+2*k,2)}")
        rnd(U)
        A(f"""
  s_mov_b32 s21, 100000
  s_mov_b32 s20, 0x10001
{L}_q0:
  global_load_dword v{T}, v123, s[36:37] sc1
  s_sub_u32 s21, s21, 1
  s_waitcnt vmcnt(0)
  v_cmp_eq_u32 vcc, 0, v{T}
  s_cmp_eq_u32 s21, 0
  s_cbranch_scc1 {L}_q2
  s_cbranch_vccz {L}_q1
  s_sleep 16
  s_branch {L}_q0
{L}_q1:
  global_load_dwordx4 {vr(T,4)}, v122, s[30:31] {pfl}
  s_sub_u32 s21, s21, 1
  s_waitcnt vmcnt(0)
  v_and_b32 v{T}, v{T}, v{T+1}
  v_and_b32 v{T+2}, v{T+2}, v{T+3}
  v_and_b32 v{T}, v{T}, v{T+2}
  v_cmp_ne_u32 vcc, s20, v{T}
  s_cmp_eq_u32 s21, 0
  s_cbranch_scc1 {L}_q2
  s_cbranch_vccz {L}_q2
  s_cmp_eq_u64 vcc, exec
  s_cbranch_scc1 {L}_q1b
  s_sleep {slp2}
  s_branch {L}_q1
{L}_q1b:
  s_sleep {slp3}
  s_branch {L}_q1
{L}_q2:
  s_add_u32 s45, s18, {64*128}
  s_add_u32 s46, s18, {128*128}
  buffer_load_dwordx4 {vr(Y,4)}, v5, s[8:11], s18 offen sc1
  buffer_load_dwordx4 {vr(Y+4,4)}, v5, s[8:11], s45 offen sc1
  s_mov_b32 exec_hi, 0
  buffer_load_dwordx4 {vr(Y+8,4)}, v5, s[8:11], s46 offen sc1
  s_mov_b32 exec_hi, -1
  s_waitcnt vmcnt(2)
  ds_write_b128 v7, {vr(Y,4)} offset:{YB}
  s_waitcnt vmcnt(1)
  ds_write_b128 v7, {vr(Y+4,4)} offset:{YB + 1024}
  s_waitcnt vmcnt(0)
  s_mov_b32 exec_hi, 0
  ds_write_b128 v7, {vr(Y+8,4)} offset:{YB + 2048}
  s_mov_b32 exec_hi, -1
""")
        for i in range(NQ): A(f"  ds_read_b64_tr_b16 {vr(RY+2*i,2)}, v8 offset:{YB + 512*i}")
        A("  s_waitcnt lgkmcnt(0)")
        unpack(Y, RY)
        for k in P: A(f"  v_pk_add_f32 {vr(Y+2*k,2)}, {vr(Y+2*k,2)}, {vr(U+2*k,2)}")
        rnd(Y)
        for k in P: A(f"  v_pk_add_f32 {vr(X+2*k,2)}, {vr(X+2*k,2)}, {vr(Y+2*k,2)}")
        for k in P: A(f"  v_cvt_pk_bf16_f32 v{RX+k}, v{X+2*k}, v{X+2*k+1}")
        for i in range(NQ): A(f"  buffer_store_dwordx2 {vr(RX+2*i,2)}, v4, s[32:35], 0 offen offset:{64*i} sc1")
        unpack(X, RX)
        for k in P: A(f"  v_pk_add_f32 {vr(X+2*k,2)}, {vr(X+2*k,2)}, v[14:15] op_sel_hi:[1,0] neg_lo:[0,1] neg_hi:[0,1]")
        xreduce(*sums(X, True), 512)
        a = T
        A(f"""
  v_mul_f32 v{a}, {fbits(1.0/640)}, v{a}
  v_mul_f32 v{a+1}, {fbits(1.0/640)}, v{a+1}
  v_fma_f32 v{a+1}, -v{a}, v{a}, v{a+1}       ; var2
  v_max_f32 v{a+1}, 0, v{a+1}
  v_add_f32 v{a+2}, v{a}, v14                 ; mean2
  v_cvt_pk_bf16_f32 v{a+3}, v{a+1}, v{a+2}
  v_lshlrev_b32 v{a+4}, 16, v{a+3}
  v_and_b32 v{a+3}, 0xffff0000, v{a+3}        ; m2_bf
  v_add_f32 v{a+4}, {fbits(1e-5)}, v{a+4}
  v_cvt_pk_bf16_f32 v{a+4}, v{a+4}, v{a+4}
  v_lshlrev_b32 v{a+4}, 16, v{a+4}
  v_sqrt_f32 v{a+4}, v{a+4}
  v_sub_f32 v{a+5}, v{a+3}, v14
  v_cvt_pk_bf16_f32 v{a+4}, v{a+4}, v{a+4}
  v_lshlrev_b32 v{a+4}, 16, v{a+4}
  v_rcp_f32 v{a+4}, v{a+4}                    ; r2
  v_sub_f32 v{a+6}, v{a}, v{a+5}
  v_mul_f32 v{a+6}, v{a+6}, v{a+4}            ; mean3
  v_mul_f32 v{a+7}, v{a+1}, v{a+4}
  v_mul_f32 v{a+7}, v{a+7}, v{a+4}            ; var3
  v_cvt_pk_bf16_f32 v{a+7}, v{a+7}, v{a+6}
  v_and_b32 v{a+6}, 0xffff0000, v{a+7}
  v_lshlrev_b32 v{a+7}, 16, v{a+7}
  v_add_f32 v{a+7}, {fbits(1e-5)}, v{a+7}
  v_cvt_pk_bf16_f32 v{a+7}, v{a+7}, v{a+7}
  v_lshlrev_b32 v{a+7}, 16, v{a+7}
  v_sqrt_f32 v{a+7}, v{a+7}
  v_fma_f32 v{a+6}, v{a+5}, v{a+4}, v{a+6}
  v_cvt_pk_bf16_f32 v{a+7}, v{a+7}, v{a+7}
  v_lshlrev_b32 v{a+7}, 16, v{a+7}
  v_rcp_f32 v{a+7}, v{a+7}                    ; r3
  s_nop 0
  v_mul_f32 v{a+8}, v{a+4}, v{a+7}
  v_mul_f32 v{a+10}, v{a+6}, v{a+7}
""")
        for k in P:
            A(f"  v_pk_fma_f32 {vr(X+2*k,2)}, {vr(X+2*k,2)}, {vr(a+8,2)}, {vr(a+10,2)} op_sel_hi:[1,0,0] neg_lo:[0,0,1] neg_hi:[0,0,1]")
        for k in P:
            A(f"  v_cvt_pk_bf16_f32 v{U+k}, v{X+2*k}, v{X+2*k+1}")
            if k & 1: A(f"  ds_write_b64 v10, {vr(U+k-1,2)} offset:{64*(k>>1)}")
        for i in range(3):
            A(f"  ds_read_b64_tr_b16 {vr(Y+4*i,2)}, v11 offset:{128*i}")
            A(f"  ds_read_b64_tr_b16 {vr(Y+4*i+2,2)}, v11 offset:{128*i + 4*HROW}")
        for i in range(3):
            A(f"  s_waitcnt lgkmcnt({4-2*i})")
            if i == 2: A("  s_mov_b32 exec_hi, 0")
            A(f"  buffer_store_dwordx4 {vr(Y+4*i,4)}, v{VO+i}, s[40:43], s47 offen sc1")
    A(f"{L}_done:\n  s_endpgm")
    A(".p2align 8\ncode_pf_begin:")
    A.kernel_desc(name, 128, 96 if stamps else 56)
    idx = [i * 4 for i in kimg.img] + [kimg.ZERO * 4] * (4096 - kimg.NEL)
    tbl = ".p2align 4\n.type kimg_idx,@object\nkimg_idx:\n"
    for i in range(0, 4096, 16):
        tbl += "  .short " + ", ".join(str(v) for v in idx[i:i+16]) + "\n"
    tbl += ".size kimg_idx, 8192"
    A.desc.append(tbl)
```

```python
from asmlib import *
def gen_pfx(A, off, nbytes, name):
    A.add_launch(name, 256, 256, 0)
    A.kernel_begin(name)
    A(f"""
  s_cmp_ge_u32 s2, 256
  s_cbranch_scc1 {name}_done
  s_load_dwordx2 s[4:5], s[0:1], {KA['ws']}
  s_lshl_b32 s17, s2, 8
  v_add_u32 v1, s17, v0
  v_lshlrev_b32 v1, 7, v1
  s_waitcnt lgkmcnt(0)
""")
    A.srd(8, 4, nbytes, off)
    A(f"  buffer_load_dword v2, v1, s[8:11], 0 offen\n  s_waitcnt vmcnt(0)\n{name}_done:\n  s_endpgm")
    A.kernel_desc(name, 16, 32)
```

```python
import sys
from asmlib import *
from k12 import gen_k12
from k3 import gen_k3
from gemm3 import gen_gemm
HEADER = open("sequential_preLN__ssm_conv_s4d__mixer_token_mlp__prompt.s.ref").read().split("\n")
HEADER = "\n".join(l for l in HEADER if l.startswith(";") and "@launch" not in l and "Override" not in l and "grid=ceil" not in l)
opt = dict(a.split('=') for a in sys.argv[1:])
I = lambda k, d: int(opt.get(k, d))
A = Asm()
gen_k12(A, nend=I('nend', 8), pend=opt.get('pend', ''), stamps=I('st1', 0), PF=I('PF', 5), WB=I('WB', 2), prio=I('prio', 1), slp=I('slp', 16), grp=I('grp', 0), cpf=I('cpf', 2), early=I('early', 1), REP=I('REP', 16), NLIN=I('NLIN', 8), ln2=I('ln2', 0), R2=I('R2', 16), slp2=I('slp2', 4), slp3=I('slp3', 32), pfl=opt.get('pfl', 'sc1').replace('_', ' '), sfl=opt.get('sfl', 'sc1').replace('_', ' '), small=I('small', 1), cpw2=I('cpw2', 0), dpp=I('dpp', 0), rot=I('rot', 0), bird=I('bird', 0), slpb=I('slpb', 2), merge=I('merge', 0), birdlim=I('birdlim', 384))
if not I('ln2', 0): gen_k3(A, NW=10, y16=1, wide=I('wide', 1), remap=I('remap', 1), ylast=I('ylast', 1), pf=opt.get('k3pf', ''))
kw = dict(stamps=I('st', 0), pfx=0, pfw=0, stag=0, map18=1, reps=I('reps', 2), mimic=I('mg', 0), ks2=I('ks2', 0), elate=I('elate', 0), lprio=I('lprio', 0))
from pfx import gen_pfx
if I('dx', 0): gen_pfx(A, WS_HN8, 8 * XT1, 'pfxa_kernel')
gen_gemm(A, 1, I('R', 5), pf2=I('pf2', 18), xpf=I('xpf', 0), **kw)
if I('dx', 0): gen_pfx(A, WS_G8, 8 * XT2, 'pfxb_kernel')
gen_gemm(A, 2, I('R', 5), **kw)
A('code_pf_end:')
print(A.text(HEADER))
```

```python
from asmlib import *
import kimg_v2 as kimg
from pf import gen_prefetch

LOG2E = 1.4426950408889634
def f32r(x):
    return struct.unpack("<f", struct.pack("<f", x))[0]
NLN = 128
WS_U8 = WS_UT
US = 640 * 32 + 128
WS_SY = 0x1D00000

def gen_k12(A, name="k12_kernel", nend=0, pend="", code=True, stamps=False, PF=5, WB=2, prio=1, slp=2, grp=0, cpf=0, early=1, REP=16, NLIN=8, ln2=0, R2=16, slp2=4, slp3=32, pfl='sc1', sfl='sc1', small=1, cpw2=0, dpp=0, rot=0, bird=0, slpb=2, merge=0, birdlim=384):
    RS = 1312
    TGS = 544
    TG, TE, KFO = 0, 48 * TGS, 64 * TGS
    LDS = 40960
    KI = 0
    AB = 6656
    U0 = AB + 576
    W9 = U0 + 4096 + 512
    W7 = W9 + 2048 + 528
    W5 = W7 + 2048 + 256
    W3 = W5 + 4096 + 272
    U2 = W3 + 4096 + 128
    AE = U2 + 4096
    assert kimg.IMG_BYTES <= AB and AE <= KFO + 0 and AE % 16 == 0, AE
    EXS = [1024 * i for i in range(6)] + [AE + 1024 * i for i in range((LDS - AE) // 1024)]
    assert len(EXS) >= 15
    NWG = 8 + NLN + 640 + (256 if ln2 else 0)
    YS = 640 * 128 + 128
    FPL = NLN // NLIN
    RSZ = NLIN * 128
    F2 = REP * RSZ
    SYN = F2 + (R2 * 2560 if ln2 else 0)
    BO = SYN
    SYN += bird * 128
    A.add_launch(name, NWG, 256, LDS)
    A.kernel_begin(name)
    L = name
    A(f"""
  s_cmp_ge_u32 s2, 8
  s_cbranch_scc1 {L}_main
  s_cmp_lg_u32 s2, 0
  s_cbranch_scc1 {L}_svc2
  s_load_dwordx4 s[4:7], s[0:1], {KA['dbg']}
  v_lshlrev_b32 v2, 4, v0
  v_pk_mov_b32 v[4:5], 0, 0
  v_pk_mov_b32 v[6:7], 0, 0
  s_mov_b32 s10, {SYN}
  s_mov_b32 s11, 0x00020000
  v_mov_b32 v3, 1
  s_waitcnt lgkmcnt(0)
  s_add_u32 s8, s6, {WS_SY}
  s_addc_u32 s9, s7, 0
""")
    for k in range(-(-SYN // 4096)):
        A(f"  s_mov_b32 s12, {4096*k}\n  buffer_store_dwordx4 v[4:7], v2, s[8:11], s12 offen sc1")
    A(f"""
  s_waitcnt vmcnt(0)
  s_barrier
  global_store_dword v4, v3, s[4:5] sc1
{L}_svc2:
  s_getpc_b64 s[20:21]
{L}_pc:
  s_sub_u32 s20, s20, {L}_pc-{L}
  s_subb_u32 s21, s21, 0
  s_mov_b32 s22, code_pf_end-{L}
  s_mov_b32 s23, 0x00020000
  v_lshlrev_b32 v2, 7, v0
  buffer_load_dword v12, v2, s[20:23], 0 offen
""")
    if small:
        A(f"""
  s_load_dwordx2 s[24:25], s[0:1], {KA['Dsk']}
  s_load_dwordx2 s[28:29], s[0:1], {KA['b1']}
  s_load_dwordx2 s[32:33], s[0:1], {KA['b2']}
  s_mov_b32 s26, 1280
  s_mov_b32 s27, 0x00020000
  s_mov_b32 s30, 3456
  s_mov_b32 s31, 0x00020000
  s_mov_b32 s34, 4096
  s_mov_b32 s35, 0x00020000
  s_waitcnt lgkmcnt(0)
  buffer_load_dword v13, v2, s[24:27], 0 offen
  buffer_load_dword v14, v2, s[28:31], 0 offen
  buffer_load_dword v15, v2, s[32:35], 0 offen
""")
    A(f"""
  s_endpgm
{L}_main:
  s_cmp_ge_u32 s2, {NWG}
  s_cbranch_scc1 {L}_done
  s_sub_u32 s2, s2, 8
  s_cmp_ge_u32 s2, {NLN + 640}
  s_cbranch_scc1 {L}_ln2
  s_cmp_ge_u32 s2, {NLN}
  s_cbranch_scc1 {L}_kgen
  ; ---------------- LN1 ----------------
  {'s_memtime s[60:61]' if stamps else ''}
  s_load_dwordx2 s[4:5], s[0:1], {KA['x']}
  s_load_dwordx2 s[6:7], s[0:1], {KA['ws']}
  s_load_dwordx2 s[28:29], s[0:1], {KA['dbg']}
  {'s_setprio 3' if prio else ''}
  s_lshl_b32 s16, s2, 4                ; t0
  v_lshrrev_b32 v1, 4, v0              ; row
  v_and_b32 v2, 15, v0                 ; q
  v_add_u32 v3, s16, v1
  v_mul_u32_u24 v3, 1280, v3
  v_lshl_add_u32 v3, v2, 4, v3
  s_waitcnt lgkmcnt(0)
""")
    A(f"""
  s_add_u32 s30, s6, {WS_SY}
  s_addc_u32 s31, s7, 0
""")
    A.srd(8, 4, 2048 * 1280)
    for i in range(5):
        A(f"  buffer_load_dwordx4 {vr(8+4*i,4)}, v3, s[8:11], 0 offen offset:{256*i}")
    A.srd(12, 6, 128 * US, WS_U8)
    A.srd(20, 6, 2048 * 8, WS_ST1)
    A(f"""
  v_mul_u32_u24 v4, {RS}, v1
  v_lshl_add_u32 v4, v2, 4, v4
  v_bfe_u32 v5, v0, 4, 1               ; th
  v_bfe_u32 v6, v0, 2, 2               ; r
  v_lshl_add_u32 v5, v5, 3, v6
  v_mul_u32_u24 v5, {RS}, v5
  v_bfe_u32 v6, v0, 5, 1               ; cgl
  v_lshl_add_u32 v5, v6, 5, v5
  v_and_b32 v7, 3, v0
  v_lshl_add_u32 v5, v7, 3, v5
  v_lshrrev_b32 v7, 6, v0              ; wave
  v_mul_u32_u24 v72, 320, v7
  v_add_u32 v5, v5, v72
  v_mul_u32_u24 v72, 160, v7
  v_lshl_add_u32 v72, v6, 4, v72
  v_add_u32 v72, v72, v2
  v_lshlrev_b32 v72, 5, v72
  v_and_b32 v6, 16, v0                 ; th*16
  s_mul_i32 s17, s2, {US}
  v_add3_u32 v6, v6, v72, s17
  v_add_u32 v7, s16, v1
  v_lshlrev_b32 v7, 3, v7
""")
    X = 32
    for i in range(5):
        A(f"  s_waitcnt vmcnt({4-i})")
        for k in range(4):
            A(f"  v_lshlrev_b32 v{X+8*i+2*k}, 16, v{8+4*i+k}")
            A(f"  v_and_b32 v{X+8*i+2*k+1}, 0xffff0000, v{8+4*i+k}")
        if i == 0:
            A(f"  v_pk_add_f32 v[72:73], {vr(X,2)}, {vr(X+2,2)}")
            A(f"  v_pk_add_f32 v[74:75], {vr(X+4,2)}, {vr(X+6,2)}")
        else:
            for k in range(4):
                a = 72 + 2 * (k & 1)
                A(f"  v_pk_add_f32 {vr(a,2)}, {vr(a,2)}, {vr(X+8*i+2*k,2)}")
    if stamps: A("  s_memtime s[62:63]")
    def rowsum(v):
        for sh in (8, 4, 2, 1):
            A(f"  s_nop 1\n  v_add_f32 v{v}, v{v}, v{v} row_ror:{sh}")
    A("  v_pk_add_f32 v[72:73], v[72:73], v[74:75]\n  s_nop 0\n  v_add_f32 v72, v72, v73")
    rowsum(72)
    A(f"  v_mul_f32 v72, {fbits(-1.0/640)}, v72     ; -mean")
    D = 80
    for k in range(20):
        A(f"  v_pk_add_f32 {vr(D+2*k,2)}, {vr(X+2*k,2)}, v[72:73] op_sel_hi:[1,0]")
    A(f"  v_pk_mul_f32 v[74:75], {vr(D,2)}, {vr(D,2)}")
    A(f"  v_pk_mul_f32 v[76:77], {vr(D+2,2)}, {vr(D+2,2)}")
    for k in range(2, 20):
        a = 74 + 2 * (k & 1)
        A(f"  v_pk_fma_f32 {vr(a,2)}, {vr(D+2*k,2)}, {vr(D+2*k,2)}, {vr(a,2)}")
    A(f"""
  v_cvt_pk_bf16_f32 v78, -v72, -v72
  v_pk_add_f32 v[74:75], v[74:75], v[76:77]
  v_and_b32 v78, 0xffff0000, v78            ; m_bf
  v_add_f32 v74, v74, v75
""")
    def rnd(k):
        A(f"  v_cvt_pk_bf16_f32 v{X+2*k+1}, v{X+2*k}, v{X+2*k+1}")
        A(f"  v_lshlrev_b32 v{X+2*k}, 16, v{X+2*k+1}\n  v_and_b32 v{X+2*k+1}, 0xffff0000, v{X+2*k+1}")
    chain = []
    for sh in (8, 4, 2, 1): chain.append(f"  v_add_f32 v74, v74, v74 row_ror:{sh}")
    chain += [f"  v_mul_f32 v74, {fbits(1.0/640)}, v74", "  v_cvt_pk_bf16_f32 v74, v74, v74", "  v_lshlrev_b32 v74, 16, v74",
              f"  v_add_f32 v74, {fbits(1e-5)}, v74", "  v_cvt_pk_bf16_f32 v74, v74, v74", "  v_lshlrev_b32 v74, 16, v74",
              "  v_sqrt_f32 v74, v74", "  v_cvt_pk_bf16_f32 v74, v74, v74", "  v_lshlrev_b32 v74, 16, v74", "  v_rcp_f32 v79, v74"]
    for k in range(20):
        A(f"  v_pk_add_f32 {vr(X+2*k,2)}, {vr(X+2*k,2)}, v[78:79] op_sel_hi:[1,0] neg_lo:[0,1] neg_hi:[0,1]")
        rnd(k)
        if k < len(chain): A(chain[k])
    for k in range(20):
        A(f"  v_pk_mul_f32 {vr(X+2*k,2)}, {vr(X+2*k,2)}, v[78:79] op_sel:[0,1] op_sel_hi:[1,1]")
    for k in range(20):
        rnd(k)
        A(f"  v_cvt_pk_f16_f32 v{8+k}, v{X+2*k}, v{X+2*k+1}")
        if k % 4 == 3:
            A(f"  ds_write_b128 v4, {vr(8+k-3,4)} offset:{256*(k//4)}")
    A(f"""
  s_movk_i32 s26, 0x1000
  v_mov_b32 v120, 0
  v_mov_b32 v121, 0
  v_readfirstlane_b32 s19, v0
  s_cmp_lg_u32 s19, 0
  s_cbranch_scc1 {L}_noin
  global_load_dword v121, v120, s[28:29] sc1
{L}_noin:
  v_cmp_eq_u32 vcc, 0, v2
  s_and_saveexec_b64 s[24:25], vcc
  buffer_store_dwordx2 v[78:79], v7, s[20:23], 0 offen
  s_mov_b64 exec, s[24:25]
  {'s_memtime s[64:65]' if stamps else ''}
  s_waitcnt lgkmcnt(0)
  s_barrier
""")
    for k in range(5):
        for h in range(2):
            A(f"  ds_read_b64_tr_b16 {vr(32+4*k+2*h,2)}, v5 offset:{64*k + 4*h*RS}")
    for k in range(5):
        A(f"  s_waitcnt lgkmcnt({8-2*k})")
        A(f"  buffer_store_dwordx4 {vr(32+4*k,4)}, v6, s[12:15], {'0' if k < 4 else 's26'} offen offset:{1024*(k&3)} sc1")
    A(f"""
  {'s_memtime s[66:67]' if stamps else ''}
  s_waitcnt vmcnt(0)
  {'s_memtime s[68:69]' if stamps else ''}
  s_barrier
  {'s_memtime s[70:71]' if stamps else ''}
  v_cmp_gt_u32 vcc, {REP}, v0
  s_and_saveexec_b64 s[24:25], vcc
  s_cbranch_execz {L}_done
  s_mov_b32 s21, 200000
{L}_ipoll:
  v_cmp_eq_u32 vcc, 0, v121
  s_sub_u32 s21, s21, 1
  s_cmp_lt_i32 s21, 1
  s_cbranch_scc1 {L}_iok
  s_cbranch_vccz {L}_iok
  s_sleep 8
  global_load_dword v121, v120, s[28:29] sc1
  s_waitcnt vmcnt(0)
  s_branch {L}_ipoll
{L}_iok:
  s_and_b32 s17, s2, {NLIN - 1}
  s_lshl_b32 s17, s17, 7
  s_lshr_b32 s18, s2, {NLIN.bit_length() - 1}
  s_lshl_b32 s18, s18, 2
  s_add_u32 s17, s17, s18
  v_mul_u32_u24 v1, {RSZ}, v0
  v_add_u32 v1, s17, v1
  v_mov_b32 v2, 1
  global_store_dword v1, v2, s[30:31] {sfl}
""")
    if bird:
        A(f"""
  s_cmp_ge_u32 s2, {bird}
  s_cbranch_scc1 {L}_nobird
  s_lshl_b32 s17, s2, 7
  s_add_u32 s17, s17, {BO}
  v_mov_b32 v1, s17
  global_store_dword v1, v2, s[30:31] sc1
{L}_nobird:
""")
    if stamps:
        A("  s_waitcnt vmcnt(0)\n  s_memtime s[72:73]\n  s_waitcnt lgkmcnt(0)")
        A.srd(84, 6, 0x100000, 0x2060000)
        A(f"  s_lshl_b32 s83, s2, 5\n  v_mov_b32 v4, s83")
        for k in range(6):
            A(f"  s_sub_u32 s83, s{62+2*k}, s60\n  v_mov_b32 v5, s83\n  buffer_store_dword v5, v4, s[84:87], 0 offen offset:{4*k}")
    A("  s_endpgm")
    Lhi = f32r(LOG2E); Llo = LOG2E - Lhi
    nst = [0]
    def stamp():
        if stamps:
            A(f"  s_memtime s[{62+2*nst[0]}:{63+2*nst[0]}]\n  s_waitcnt lgkmcnt(0)")
            nst[0] += 1
    A(f"""
{L}_kgen:
  {'s_setprio 2' if ln2 else ''}
  {'s_memtime s[60:61]' if stamps else ''}
""")
    if rot:
        A(f"  s_add_u32 s17, s2, 8\n  s_lshr_b32 s17, s17, 8\n  s_mul_i32 s17, s17, {64*rot}\n  v_add_u32 v0, s17, v0\n  v_and_b32 v0, 0xff, v0")
    A(f"""
  s_sub_u32 s16, s2, {NLN}
  s_and_b32 s17, s16, 7
  s_mul_i32 s17, s17, 80
  s_lshr_b32 s16, s16, 3
  s_add_u32 s16, s16, s17
  s_load_dwordx4 s[4:7], s[0:1], {KA['logA']}
  s_load_dwordx4 s[8:11], s[0:1], {KA['Cre']}
  s_load_dwordx2 s[12:13], s[0:1], {KA['logdt']}
  s_load_dwordx4 s[36:39], s[0:1], {KA['dbg']}
  s_load_dwordx2 s[40:41], s[0:1], {KA['w1']}
  s_load_dwordx2 s[50:51], s[0:1], {KA['w2']}
  s_getpc_b64 s[18:19]
  s_add_u32 s18, s18, kimg_idx@rel32@lo+4
  s_addc_u32 s19, s19, kimg_idx@rel32@hi+12
  v_lshrrev_b32 v1, 6, v0
  v_lshlrev_b32 v2, 4, v0
  v_readfirstlane_b32 s3, v1              ; wave
  global_load_dwordx4 v[60:63], v2, s[18:19]
  v_add_u32 v2, 0x1000, v2
  global_load_dwordx4 v[64:67], v2, s[18:19]
  v_and_b32 v1, 127, v0                   ; mode
  s_lshl_b32 s17, s16, 8
  v_lshl_add_u32 v2, v1, 1, s17
  v_xor_b32 v3, 128, v2
  s_lshl_b32 s20, s16, 1
  s_and_b32 s21, s20, 0xfffffffc
  s_waitcnt lgkmcnt(0)
  s_load_dword s22, s[12:13], s21
  global_load_ushort v4, v2, s[4:5]       ; logA
  global_load_ushort v5, v2, s[6:7]       ; Aim
  global_load_ushort v6, v2, s[8:9]       ; Cre
  global_load_ushort v7, v2, s[10:11]     ; Cim
  global_load_ushort v8, v3, s[8:9]
  global_load_ushort v9, v3, s[10:11]
  v_lshlrev_b32 v1, 2, v1
""")
    XV = 0
    if cpf == 3:
        A(f"  s_and_b32 s42, s2, 7\n  s_sub_u32 s43, s2, {NLN + 384}\n  s_lshr_b32 s43, s43, 3\n  s_lshl_b32 s43, s43, 8\n  s_and_b32 s43, s43, 0x1fff\n  v_add_u32 v100, s43, v0")
        A.lines.append("@PF")
        gen_prefetch(A, 1, 42, 100, 8192, 40, 44, 101, 103, half=True)
        ld = A.lines.pop(); mv = A.lines.pop()
        A(f"  s_cmp_lt_u32 s2, {NLN + 384}\n  s_cselect_b32 s46, 0, s46")
        A.lines.append(mv); A.lines.append(ld)
        A.lines.remove("@PF")
        XV = 1
    F = kimg.fam
    vB0 = vAa = 112; vTo, vTo2, vAb, vWr, vEx, vU, vY, vFA, vFB, vKF, vFl = 113, 114, 115, 116, 117, 118, 119, 120, 121, 122, 123
    vFd, vIn, vZ = 124, 126, 127
    TP, ACC, NDF, DF = 4, 48, 8, 80
    GI = 68
    def taddr(fam_, dst):
        if fam_ == "R0":
            A(f"  v_mul_u32_u24 v51, {2*F['R0'][1]}, v49\n  v_lshl_add_u32 v51, v50, 1, v51\n  v_lshl_add_u32 v{dst}, v15, 4, v51")
        elif fam_ == "T16":
            A(f"  v_mul_u32_u24 v51, {2*F['T16'][1]}, v49\n  v_lshl_add_u32 v51, v50, 1, v51\n  v_mul_u32_u24 v55, {2*kimg.TLEN[16]}, v53\n  v_add3_u32 v{dst}, v51, v55, v54")
        elif fam_ == "T8":
            A(f"  v_and_b32 v51, 1, v48\n  v_mul_u32_u24 v51, {2*F['T8'][1]}, v51\n  v_and_b32 v55, 14, v48\n  v_lshl_add_u32 v51, v55, 2, v51\n  v_mul_u32_u24 v55, {2*kimg.TLEN[8]}, v53\n  v_add3_u32 v{dst}, v51, v55, v54")
        else:
            A(f"  v_lshlrev_b32 v51, 3, v48\n  v_mul_u32_u24 v55, {2*kimg.TLEN[4]}, v53\n  v_add3_u32 v{dst}, v51, v55, v54")
    def aaddr(P, dst):
        ae, ao = {4: (W3, U2), 8: (W5, W3 - 8), 16: (W9, W7 - 16)}[P]
        A(f"  v_mul_u32_u24 v51, {ao - ae}, v53\n  v_mul_u32_u24 v55, {2*P}, v56\n  v_add3_u32 v51, v51, v55, v57\n  v_add_u32 v{dst}, {ae - 32*P}, v51")
    A(f"""
  v_and_b32 v13, 63, v0                ; lane
  v_and_b32 v14, 15, v0                ; n / b
  v_bfe_u32 v15, v0, 4, 2              ; g
  v_lshlrev_b32 v{vWr}, 4, v0
  v_lshlrev_b32 v{vEx}, 4, v13
  v_lshrrev_b32 v{vU}, 1, v0
  v_mul_u32_u24 v{vU}, {US}, v{vU}
  v_and_b32 v51, 1, v0
  v_lshl_add_u32 v{vU}, v51, 4, v{vU}
  s_lshl_b32 s29, s16, 5
  v_add_u32 v{vU}, s29, v{vU}
  v_mov_b32 v110, v{vU}
  v_subrev_u32 v51, {US - 24}, v{vU}
  v_cmp_eq_u32 vcc, 0, v13
  v_add_u32 v55, {US - 16}, v{vU}
  v_mov_b32 v56, 0x40000000
  v_cndmask_b32 v110, v110, v51, vcc
  v_cmp_eq_u32 vcc, 63, v13
  s_nop 1
  v_cndmask_b32 v110, v110, v55, vcc
  v_cmp_eq_u32 vcc, 0, v0
  s_nop 1
  v_cndmask_b32 v110, v110, v56, vcc
  v_mul_u32_u24 v{vFB}, {TGS}, v14
  v_lshl_add_u32 v{vFB}, v15, 4, v{vFB}
  s_mul_i32 s30, s3, {16*TGS}
  v_add_u32 v{vFA}, s30, v{vFB}
  v_mul_u32_u24 v{vKF}, 192, v14
  v_lshl_add_u32 v{vKF}, v15, 4, v{vKF}
  s_lshl_b32 s30, s3, 6
  v_add_u32 v{vKF}, s30, v{vKF}
  v_mov_b32 v{vZ}, 0
  s_and_b32 s30, s2, {max(bird, 1) - 1}
  s_lshl_b32 s30, s30, 7
  s_add_u32 s30, s30, {BO}
  v_mov_b32 v111, s30
  v_mov_b32 v{vFl}, 0
  v_mov_b32 v{vY}, 0
  v_sub_u32 v48, 15, v14               ; q
  v_and_b32 v49, 3, v48
  v_and_b32 v50, 12, v48
  v_and_b32 v52, 1, v15                ; hb
  v_lshrrev_b32 v53, 1, v15            ; pi
  s_cmp_ge_u32 s3, 2
  s_cbranch_scc1 {L}_aBC
  v_lshlrev_b32 v51, 5, v14
  v_lshl_add_u32 v51, v15, 4, v51
  v_add_u32 v{vB0}, {U0 - 544}, v51
""")
    if ln2:
        A(f"""
  v_lshrrev_b32 v51, 2, v14
  v_lshl_add_u32 v51, v52, 2, v51      ; 4*(g&1) + (n>>2)
  v_mul_u32_u24 v{vY}, {YS}, v51
  v_and_b32 v51, 3, v14
  v_lshl_add_u32 v{vY}, v51, 5, v{vY}
  v_lshl_add_u32 v{vY}, v53, 4, v{vY}
  s_lshl_b32 s30, s16, 7
  v_add_u32 v{vY}, s30, v{vY}
  v_mul_u32_u24 v{vFl}, 2560, v13
  s_lshl_b32 s30, s16, 2
  s_lshl_b32 s31, s3, 1
  s_add_u32 s30, s30, s31
  s_add_u32 s30, s30, {F2}
  v_add_u32 v{vFl}, s30, v{vFl}
""")
    else:
        A(f"""
  v_lshl_add_u32 v51, v52, 4, v14
  v_mul_u32_u24 v{vY}, {US}, v51
  v_lshl_add_u32 v{vY}, v53, 4, v{vY}
  v_add_u32 v{vY}, s29, v{vY}
""")
    taddr("R0", vTo)
    A(f"""
  s_branch {L}_adone
{L}_aBC:
  v_lshlrev_b32 v54, 4, v52
  v_bfe_u32 v56, v0, 2, 2
  v_lshl_add_u32 v56, v52, 3, v56      ; 8hb + r
  v_and_b32 v57, 3, v0
  v_lshlrev_b32 v57, 3, v57            ; 8*c4
  s_cmp_eq_u32 s3, 3
  s_cbranch_scc1 {L}_aC
""")
    taddr("T4", vTo); aaddr(4, vAa)
    A(f"  s_branch {L}_adone\n{L}_aC:")
    taddr("T8", vTo); taddr("T16", vTo2); aaddr(8, vAa); aaddr(16, vAb)
    A(f"""
  v_lshrrev_b32 v{vFl}, {(FPL // 2).bit_length() - 1}, v13
  v_lshlrev_b32 v{vFl}, 7, v{vFl}
  v_and_b32 v51, {FPL // 2 - 1}, v13
  v_lshl_add_u32 v{vFl}, v51, 3, v{vFl}
  s_and_b32 s30, s2, {REP - 1}
  s_mul_i32 s30, s30, {RSZ}
  v_add_u32 v{vFl}, s30, v{vFl}
{L}_adone:
  s_add_u32 s8, s38, {WS_U8}
  s_addc_u32 s9, s39, 0
  s_mov_b32 s10, {128 * US}
  s_mov_b32 s11, 0x00020000
  s_add_u32 s30, s38, {WS_SY}
  s_addc_u32 s31, s39, 0
  s_add_u32 s32, s38, {WS_Y8}
  s_addc_u32 s33, s39, 0
  s_mov_b32 s34, {32 * YS if ln2 else 128 * US}
  s_mov_b32 s35, 0x00020000
  s_waitcnt vmcnt({6 + XV})
""")
    for k in range(8):
        A(f"  v_and_b32 v{GI+2*k}, 0xffff, v{60+k}")
        A(f"  v_lshrrev_b32 v{GI+1+2*k}, 16, v{60+k}")
    A(f"""
  s_waitcnt lgkmcnt(0)
  s_and_b32 s20, s20, 2
  s_lshl_b32 s20, s20, 3
  s_lshr_b32 s22, s22, s20
  s_lshl_b32 s22, s22, 16
  s_mov_b32 s23, {fbits(Lhi)}
  s_mov_b32 s24, {fbits(Llo)}
  v_mov_b32 v10, s22
""")
    def exp_bf16(dst, src, t1, t2):
        A(f"""
  v_mul_f32 v{t1}, s23, v{src}
  v_fma_f32 v{t2}, v{src}, s23, -v{t1}
  v_fma_f32 v{t2}, v{src}, s24, v{t2}
  v_exp_f32 v{t1}, v{t1}
  v_mul_f32 v{t2}, {fbits(0.6931471805599453)}, v{t2}
  v_fma_f32 v{dst}, v{t1}, v{t2}, v{t1}
  v_cvt_pk_bf16_f32 v{dst}, v{dst}, v{dst}
  v_lshlrev_b32 v{dst}, 16, v{dst}
""")
    exp_bf16(10, 10, 11, 12)
    A(f"  s_waitcnt vmcnt({5 + XV})\n  v_lshlrev_b32 v4, 16, v4")
    exp_bf16(4, 4, 11, 12)
    A(f"""
  v_mul_f32 v4, v4, v10
  v_mul_f32 v4, {fbits(-LOG2E)}, v4
  s_waitcnt vmcnt({XV})
  v_lshlrev_b32 v5, 16, v5
  v_mul_f32 v5, v5, v10
  v_mul_f32 v5, {fbits(0.15915494309189535)}, v5
  v_lshlrev_b32 v6, 16, v6
  v_lshlrev_b32 v7, 16, v7
  v_lshlrev_b32 v8, 16, v8
  v_lshlrev_b32 v9, 16, v9
  v_max3_f32 v11, |v6|, |v7|, |v8|
  v_max_f32 v11, v11, |v9|
  v_mul_f32 v11, v11, v10
""")
    for sh in (8, 4, 2, 1):
        A(f"  s_nop 1\n  v_max_f32 v11, v11, v11 row_ror:{sh}")
    A(f"""
  s_nop 0
  v_readlane_b32 s25, v11, 0
  v_readlane_b32 s26, v11, 16
  v_readlane_b32 s27, v11, 32
  v_readlane_b32 s28, v11, 48
  v_mul_f32 v6, v6, v10
  v_mul_f32 v7, v7, v10
  s_max_u32 s25, s25, s26
  s_max_u32 s27, s27, s28
  s_max_u32 s25, s25, s27
  s_lshr_b32 s25, s25, 23
  s_max_u32 s25, s25, 1
  s_min_u32 s25, s25, 253
  s_sub_u32 s26, 254, s25
  s_lshl_b32 s26, s26, 23
  s_add_u32 s27, s25, 1
  s_lshl_b32 s27, s27, 23
  v_mul_f32 v6, s26, v6
  v_mul_f32 v7, s26, v7
""")
    def pw(dst, p, t):
        if p == 1:
            A(f"  v_exp_f32 v{t}, v4\n  v_fract_f32 v{t+1}, v5")
        else:
            A(f"  v_mul_f32 v{t}, {fbits(float(p))}, v4\n  v_mul_f32 v{t+1}, {fbits(float(p))}, v5\n  v_exp_f32 v{t}, v{t}\n  v_fract_f32 v{t+1}, v{t+1}")
        A(f"  v_cos_f32 v{dst}, v{t+1}\n  v_sin_f32 v{dst+1}, v{t+1}\n  s_nop 0\n  v_mul_f32 v{dst}, v{dst}, v{t}\n  v_mul_f32 v{dst+1}, v{dst+1}, v{t}")
    tmp = [0]
    def cmul(d, a, b):
        t = 52 + 2 * (tmp[0] & 3); tmp[0] += 1
        A(f"  v_pk_mul_f32 {vr(t,2)}, {vr(a,2)}, {vr(b,2)} op_sel:[1,1] op_sel_hi:[1,0]")
        A(f"  v_pk_fma_f32 {vr(d,2)}, {vr(a,2)}, {vr(b,2)}, {vr(t,2)} op_sel_hi:[0,1,1] neg_lo:[0,0,1]")
    ow = [0]
    def putG(row, a, neg=False):
        o = 48 + (ow[0] & 3); ow[0] += 1
        if neg: A(f"  v_cvt_pk_f16_f32 v{o}, -v{a}, v{a+1}")
        else:   A(f"  v_cvt_pk_f16_f32 v{o}, v{a}, -v{a+1}")
        A(f"  ds_write_b32 v1, v{o} offset:{TG + row*TGS}")
    def putE(col, a):
        o = 48 + (ow[0] & 3); ow[0] += 1
        A(f"  v_cvt_pk_f16_f32 v{o}, v{a}, v{a+1}")
        A(f"  ds_write_b32 v1, v{o} offset:{TE + col*TGS}")
    A(f"  s_cmp_ge_u32 s3, 2\n  s_cbranch_scc1 {L}_part1")
    Wp = lambda j: 12 + 2 * (j - 1)
    pw(Wp(1), 1, 44); pw(28, 128, 40)
    putG(0, 6)
    cmul(Wp(2), Wp(1), Wp(1)); cmul(30, 6, 28)
    cmul(Wp(3), Wp(2), Wp(1)); cmul(Wp(4), Wp(2), Wp(2)); cmul(32, 30, 28)
    putG(8, 30)
    cmul(Wp(5), Wp(4), Wp(1)); cmul(Wp(6), Wp(4), Wp(2)); cmul(Wp(7), Wp(4), Wp(3)); cmul(Wp(8), Wp(4), Wp(4)); cmul(34, 32, 28)
    putG(16, 32); putG(20, 34)
    o = [36, 38, 40, 42]; k = 0
    for j in range(1, 8):
        for hb, row0 in ((6, 0), (30, 8)):
            r = o[k & 3]; k += 1
            cmul(r, hb, Wp(j)); putG(row0 + j, r)
    for jj, j in enumerate((2, 4, 6)):
        for hb, row0 in ((32, 16), (34, 20)):
            r = o[k & 3]; k += 1
            cmul(r, hb, Wp(j)); putG(row0 + jj + 1, r)
    A(f"  v_pk_add_f32 {vr(Wp(7),2)}, {vr(Wp(7),2)}, {vr(Wp(8),2)} neg_lo:[0,1] neg_hi:[0,1]")
    A(f"  v_pk_add_f32 {vr(Wp(6),2)}, {vr(Wp(6),2)}, {vr(Wp(8),2)} neg_lo:[0,1] neg_hi:[0,1]")
    cmul(36, 30, Wp(7)); putG(41, 36)
    cmul(38, 34, Wp(6)); putG(42, 38)
    A(f"  s_branch {L}_tabdone\n{L}_part1:")
    pw(12, 8, 44); pw(28, 128, 40); pw(30, 512, 44); pw(32, 4, 40)
    A(f"  v_mov_b32 v48, 0x3c00\n  ds_write_b32 v1, v48 offset:{TE}")
    A(f"  v_mov_b32 v49, 0\n  ds_write_b32 v1, v49 offset:{TG + kimg.ROW_ZERO*TGS}")
    putE(1, 12)
    cmul(14, 12, 12); cmul(34, 6, 30)
    putE(2, 14)
    cmul(20, 14, 12); cmul(16, 14, 14)
    putE(3, 20); putE(4, 16)
    cmul(22, 16, 12); cmul(24, 16, 14); cmul(26, 16, 20); cmul(18, 16, 16)
    putE(5, 22); putE(6, 24); putE(7, 26); putE(8, 18)
    Ereg = {1: 12, 2: 14, 3: 20, 4: 16, 5: 22, 6: 24, 7: 26}
    hcur = 34
    for a in range(4, 17):
        hn = 70 - hcur
        if a < 16: cmul(hn, hcur, 28)
        if a < 8:
            putG(24 + 2 * (a - 4), hcur)
            cmul(40, hcur, 32); putG(25 + 2 * (a - 4), 40)
        elif a < 16:
            putG(32 + (a - 8), hcur)
            if a == 8: putG(kimg.ROW_N1024, hcur, neg=True)
        else:
            putG(40, hcur)
        b = a - 4 + 1
        if 1 <= b <= 7:
            cmul(42, 18, Ereg[b]); putE(8 + b, 42)
        hcur = hn
    A(f"""
{L}_tabdone:
  s_waitcnt lgkmcnt(0)
  s_barrier
  s_cmp_ge_u32 s3, 3
  s_cbranch_scc1 {L}_w3a
""")
    for ks in range(4):
        A(f"  ds_read_b128 {vr(12+8*ks,4)}, v{vFA} offset:{TG + 64*ks}")
        A(f"  ds_read_b128 {vr(16+8*ks,4)}, v{vFB} offset:{TE + 64*ks}")
    for ks in range(8):
        b = 12 + 8 * (ks & 3)
        A(f"  s_waitcnt lgkmcnt({6 if ks < 5 else 2*(7-ks)})")
        A(f"  v_mfma_f32_16x16x32_f16 v[44:47], {vr(b,4)}, {vr(b+4,4)}, {'0' if ks == 0 else 'v[44:47]'}")
        if ks < 4:
            A(f"  ds_read_b128 {vr(b,4)}, v{vFA} offset:{TG + 64*(ks+4)}")
            A(f"  ds_read_b128 {vr(b+4,4)}, v{vFB} offset:{TE + 64*(ks+4)}")
    A(f"  s_nop 7\n  ds_write_b128 v{vKF}, v[44:47] offset:{KFO}\n  s_branch {L}_nomfma\n{L}_w3a:\n  global_load_dword v{vIn}, v{vZ}, s[36:37] sc1\n{L}_nomfma:")
    A("  v_pk_mov_b32 v[56:57], 0, 0\n  v_pk_mov_b32 v[58:59], 0, 0")
    A("  s_waitcnt lgkmcnt(0)\n  s_barrier")
    stamp()
    n2 = kimg.NEL // 8 - 256
    for k in range(8): A(f"  ds_read_b32 v{28+k}, v{GI+k} offset:{KFO}")
    A(f"  s_cmp_ge_u32 s3, 3\n  s_cbranch_scc1 {L}_pads")
    for k in range(8): A(f"  ds_read_b32 v{36+k}, v{GI+8+k} offset:{KFO}")
    A(f"  v_cmp_gt_u32 vcc, {n2}, v0")
    for k in range(4):
        A(f"  s_waitcnt lgkmcnt({14-2*k})\n  v_cvt_pk_f16_f32 v{44+k}, v{28+2*k}, v{29+2*k}")
    A(f"  ds_write_b128 v{vWr}, v[44:47] offset:{KI}")
    for k in range(4):
        A(f"  s_waitcnt lgkmcnt({7-2*k})\n  v_cvt_pk_f16_f32 v{48+k}, v{36+2*k}, v{37+2*k}")
    A(f"""
  s_and_saveexec_b64 s[24:25], vcc
  ds_write_b128 v{vWr}, v[48:51] offset:{KI + 4096}
  s_mov_b64 exec, -1
  s_branch {L}_img1
{L}_pads:
  s_mov_b32 exec_hi, 0xf
  ds_write_b128 v{vEx}, v[56:59] offset:{U0 - 576}
  ds_write_b128 v{vEx}, v[56:59] offset:{W7 - 576}
  s_mov_b32 exec_hi, 0
  ds_write_b128 v{vEx}, v[56:59] offset:{W9 - 512}
  s_mov_b32 exec_lo, 0x1ffff
  ds_write_b128 v{vEx}, v[56:59] offset:{W5 - 272}
  ds_write_b128 v{vEx}, v[56:59] offset:{W3 - 272}
  ds_write_b128 v{vEx}, v[56:59] offset:{U2 - 272}
  s_mov_b64 exec, -1
  s_mov_b32 s21, 200000
  s_waitcnt vmcnt(0)
{L}_poll0:                             ; the flag lines are meaningful only once the init flag is up
  v_cmp_eq_u32 vcc, 0, v{vIn}
  s_sub_u32 s21, s21, 1
  s_cmp_lt_i32 s21, 1
  s_cbranch_scc1 {L}_poll1a
  s_cbranch_vccz {L}_poll1a
  s_sleep 16
  global_load_dword v{vIn}, v{vZ}, s[36:37] sc1
  s_waitcnt vmcnt(0)
  s_branch {L}_poll0
{L}_poll1a:
""")
    if merge:
        A(f"""
  s_cmp_ge_u32 s2, {NLN + birdlim}
  s_cbranch_scc1 {L}_nb1
  global_load_dword v{vIn}, v111, s[30:31] sc1
  s_branch {L}_nb2
{L}_nb1:
  global_load_dwordx2 {vr(vFd,2)}, v{vFl}, s[30:31] {pfl}
{L}_nb2:
""")
    A("  s_waitcnt lgkmcnt(6)")
    for k in range(4): A(f"  v_cvt_pk_f16_f32 v{44+k}, v{28+2*k}, v{29+2*k}")
    if merge:
        assert bird and dpp
        SRC_, E0 = 80, 82
        A(f"""
  ds_write_b128 v{vWr}, v[44:47] offset:{KI}
  s_cmp_ge_u32 s2, {NLN + birdlim}
  s_cbranch_scc1 {L}_poll
{L}_bpoll:
  s_sub_u32 s21, s21, 1
  s_waitcnt vmcnt(0)
  v_cmp_ne_u32 vcc, 1, v{vIn}
  s_cmp_lt_i32 s21, 1
  s_cbranch_scc1 {L}_img1
  s_cbranch_vccz {L}_bok
  s_sleep {slpb}
  global_load_dword v{vIn}, v111, s[30:31] sc1
  s_branch {L}_bpoll
{L}_bok:
  global_load_dwordx2 {vr(vFd,2)}, v{vFl}, s[30:31] {pfl}
{L}_poll:
  s_sub_u32 s21, s21, 1
  s_waitcnt vmcnt(0)
  v_and_b32 v{vFd}, v{vFd}, v{vFd+1}
  v_cmp_ne_u32 vcc, 1, v{vFd}
  s_cmp_lt_i32 s21, 1
  s_cbranch_scc1 {L}_img1
  s_cbranch_vccz {L}_img1
  s_sleep {slp}
  global_load_dwordx2 {vr(vFd,2)}, v{vFl}, s[30:31] {pfl}
  s_branch {L}_poll
{L}_img1:
  s_waitcnt lgkmcnt(0)
""")
        stamp()
        A("  s_barrier")
        stamp()
        A(f"  buffer_load_dwordx4 {vr(E0,4)}, v{vU}, s[8:11], 0 offen sc1\n  s_mov_b32 exec_lo, 1\n  s_brev_b32 exec_hi, 1\n  buffer_load_dwordx2 {vr(SRC_,2)}, v110, s[8:11], 0 offen sc1\n  s_mov_b64 exec, -1")
        def tread(reg, va, off):
            A(f"  ds_read_b64 {vr(reg,2)}, v{va} offset:{off}\n  ds_read_b64 {vr(reg+2,2)}, v{va} offset:{off+8}")
        treg = {}
        A(f"  s_cmp_ge_u32 s3, 2\n  s_cbranch_scc1 {L}_tBC")
        for k in range(0, 17, 2):
            treg[("R0", k)] = TP + 2 * k; tread(TP + 2 * k, vTo, KI + 32 * (16 - k))
        treg[("RC",)] = TP + 36; tread(TP + 36, vTo, KI + 2 * kimg.RC_OFF)
        A(f"  s_branch {L}_polled\n{L}_tBC:\n  s_cmp_eq_u32 s3, 3\n  s_cbranch_scc1 {L}_tC")
        for kap in range(8):
            treg[("T", 4, kap)] = TP + 4 * kap; tread(TP + 4 * kap, vTo, KI + 2 * F["T4"][0] + 32 * kap)
        A(f"  s_branch {L}_polled\n{L}_tC:")
        for kap in range(6):
            treg[("T", 8, kap)] = TP + 4 * kap; tread(TP + 4 * kap, vTo, KI + 2 * F["T8"][0] + 32 * kap)
        for kap in range(5):
            treg[("T", 16, kap)] = TP + 24 + 4 * kap; tread(TP + 24 + 4 * kap, vTo2, KI + 2 * F["T16"][0] + 32 * kap)
        A(f"{L}_polled:")
    else:
        A(f"""
  ds_write_b128 v{vWr}, v[44:47] offset:{KI}
  {f'global_load_dwordx2 {vr(vFd,2)}, v{vFl}, s[30:31] {pfl}' if (early and not bird) else ''}
  {f'global_load_dword v{vIn}, v111, s[30:31] sc1' if bird else ''}
{L}_img1:
  s_waitcnt lgkmcnt(0)
  s_barrier
""")
        def tread(reg, va, off):
            A(f"  ds_read_b64 {vr(reg,2)}, v{va} offset:{off}\n  ds_read_b64 {vr(reg+2,2)}, v{va} offset:{off+8}")
        treg = {}
        A(f"  s_cmp_ge_u32 s3, 2\n  s_cbranch_scc1 {L}_tBC")
        for k in range(0, 17, 2):
            treg[("R0", k)] = TP + 2 * k; tread(TP + 2 * k, vTo, KI + 32 * (16 - k))
        treg[("RC",)] = TP + 36; tread(TP + 36, vTo, KI + 2 * kimg.RC_OFF)
        A(f"  s_branch {L}_polled\n{L}_tBC:\n  s_cmp_eq_u32 s3, 3\n  s_cbranch_scc1 {L}_tC")
        for kap in range(8):
            treg[("T", 4, kap)] = TP + 4 * kap; tread(TP + 4 * kap, vTo, KI + 2 * F["T4"][0] + 32 * kap)
        A(f"  s_branch {L}_polled\n{L}_tC:")
        if not early: A(f"  global_load_dwordx2 {vr(vFd,2)}, v{vFl}, s[30:31] {pfl}")
        for kap in range(6):
            treg[("T", 8, kap)] = TP + 4 * kap; tread(TP + 4 * kap, vTo, KI + 2 * F["T8"][0] + 32 * kap)
        for kap in range(5):
            treg[("T", 16, kap)] = TP + 24 + 4 * kap; tread(TP + 24 + 4 * kap, vTo2, KI + 2 * F["T16"][0] + 32 * kap)
        if bird:
            A(f"""
{L}_bpoll:
  s_sub_u32 s21, s21, 1
  s_waitcnt vmcnt(0)
  v_cmp_ne_u32 vcc, 1, v{vIn}
  s_cmp_lt_i32 s21, 1
  s_cbranch_scc1 {L}_polled
  s_cbranch_vccz {L}_bok
  s_sleep {slpb}
  global_load_dword v{vIn}, v111, s[30:31] sc1
  s_branch {L}_bpoll
{L}_bok:
  global_load_dwordx2 {vr(vFd,2)}, v{vFl}, s[30:31] {pfl}
""")
        A(f"""
{L}_poll:
  s_sub_u32 s21, s21, 1
  s_waitcnt vmcnt(0)
  v_and_b32 v{vFd}, v{vFd}, v{vFd+1}
  v_cmp_ne_u32 vcc, 1, v{vFd}
  s_cmp_lt_i32 s21, 1
  s_cbranch_scc1 {L}_polled
  s_cbranch_vccz {L}_polled
  s_sleep {slp}
  global_load_dwordx2 {vr(vFd,2)}, v{vFl}, s[30:31] {pfl}
  s_branch {L}_poll
{L}_polled:
""")
        stamp()
        A("  s_barrier")
        stamp()
    def conv_pf(lab):
        A(f"  s_cmp_lt_u32 s3, 2\n  s_cbranch_scc1 {L}_{lab}")
        A(f"  s_and_b32 s42, s2, 7\n  s_sub_u32 s43, s2, {NLN}\n  s_lshr_b32 s43, s43, 3\n  s_lshl_b32 s43, s43, 7\n  s_sub_u32 s43, s43, 128\n  v_add_u32 v123, s43, v0")
        gen_prefetch(A, 1, 42, 123, 80 * 128, 40, 44, 124, 126, half=True)
        if cpw2 == 2:
            A.srd(44, 50, 1728 * 4096)
            A(f"  s_lshl_b32 s48, s42, 9\n  v_lshrrev_b32 v124, 2, v123\n  v_lshlrev_b32 v124, 12, v124\n  v_and_b32 v125, 3, v123\n  v_lshl_add_u32 v124, v125, 7, v124\n  buffer_load_dword v127, v124, s[44:47], s48 offen")
        A(f"{L}_{lab}:")
    SRC, OO, WA, WT = 80, 88, 96, 48
    E = lambda j: SRC + 2 + j
    O = lambda j: OO + 2 + j
    W = lambda a, j: WA + 4 * a + j
    if dpp:
        if not merge: A(f"  buffer_load_dwordx4 {vr(E(0),4)}, v{vU}, s[8:11], 0 offen sc1\n  buffer_load_dwordx2 {vr(E(-2),2)}, v110, s[8:11], 0 offen sc1")
        A(f"""
  s_waitcnt vmcnt(1)
  ds_write_b128 v{vWr}, {vr(E(0),4)} offset:{U0}
""")
        for j in range(0, 3): A(f"  v_alignbit_b32 v{O(j)}, v{E(j+1)}, v{E(j)}, 16")
        A(f"  v_pk_mov_b32 {vr(WT+10,2)}, {vr(E(0),2)}, {vr(E(2),2)} op_sel:[1,0]")
        A(f"  s_waitcnt vmcnt(0)\n  v_mov_b32 v{E(4)}, v{E(-2)}\n  v_mov_b32 v{E(5)}, v{E(-1)}")
        stamp()
        if cpf == 1: conv_pf("cpf")
        A(f"""
  v_mov_b32 v{E(-2)}, v{E(2)} wave_shr:1
  v_mov_b32 v{E(-1)}, v{E(3)} wave_shr:1
  v_mov_b32 v{E(4)}, v{E(0)} wave_shl:1
  v_mov_b32 v{E(5)}, v{E(1)} wave_shl:1
""")
    else:
        A(f"""
  buffer_load_dwordx4 {vr(E(0),4)}, v{vU}, s[8:11], 0 offen sc1
  s_waitcnt vmcnt(0)
  ds_write_b128 v{vWr}, {vr(E(0),4)} offset:{U0}
  s_waitcnt lgkmcnt(0)
  s_barrier
""")
        stamp()
        if cpf == 1: conv_pf("cpf")
        A(f"  ds_read_b64 {vr(E(-2),2)}, v{vWr} offset:{U0 - 8}\n  ds_read_b64 {vr(E(4),2)}, v{vWr} offset:{U0 + 16}")
        for j in range(0, 3): A(f"  v_alignbit_b32 v{O(j)}, v{E(j+1)}, v{E(j)}, 16")
        A(f"  v_pk_mov_b32 {vr(WT+10,2)}, {vr(E(0),2)}, {vr(E(2),2)} op_sel:[1,0]")
        A("  s_waitcnt lgkmcnt(0)")
    for j in (-1, 3, -2, 4): A(f"  v_alignbit_b32 v{O(j)}, v{E(j+1)}, v{E(j)}, 16")
    A(f"  v_pk_mov_b32 {vr(WT+8,2)}, {vr(E(-2),2)}, {vr(E(0),2)} op_sel:[1,0]")
    def chainw(dst, src, x, y, off):
        for j in range(4): A(f"  v_pk_add_f16 v{W(dst,j)}, v{src(j)}, v{x(j)}")
        for j in range(4): A(f"  v_pk_add_f16 v{W(dst,j)}, v{W(dst,j)}, v{y(j)}")
        A(f"  ds_write_b128 v{vWr}, {vr(W(dst,0),4)} offset:{off}")
    A(f"  ds_write_b128 v{vWr}, {vr(WT+8,4)} offset:{U2}")
    chainw(0, lambda j: O(j-1), E, O, W3)
    chainw(1, lambda j: W(0,j), lambda j: E(j-1), lambda j: E(j+1), W5)
    A(f"  s_cmp_ge_u32 s3, 2\n  s_cbranch_scc1 {L}_prepdone")
    chainw(2, lambda j: W(1,j), lambda j: O(j-2), lambda j: O(j+1), W7)
    chainw(3, lambda j: W(2,j), lambda j: E(j-2), lambda j: E(j+2), W9)
    A(f"""
  s_cmp_lg_u32 s3, 0
  s_cbranch_scc1 {L}_prepdone
  v_pack_b32_f16 v{WT}, v{E(0)}, v{W(0,0)}
  v_pack_b32_f16 v{WT+1}, v{W(1,0)}, v{W(2,0)}
  v_lshlrev_b32 v{WT+2}, 16, v{E(0)}
  v_pack_b32_f16 v{WT+3}, v{W(0,0)}, v{W(1,0)}
  s_mov_b64 exec, 1
  ds_write_b64 v{vWr}, {vr(WT,2)} offset:{W9 - 8}
  ds_write_b64 v{vWr}, {vr(WT+2,2)} offset:{W7 - 8}
  ds_write_b32 v{vWr}, v{WT} offset:{W5 - 4}
  ds_write_b32 v{vWr}, v{WT+2} offset:{W3 - 4}
  s_mov_b64 exec, -1
{L}_prepdone:
  s_waitcnt lgkmcnt(0)
  s_barrier
""")
    stamp()
    if cpf == 2: conv_pf("cpf")
    if cpf == 4:
        A(f"  s_cmp_lt_u32 s2, {NLN + 384}\n  s_cbranch_scc1 {L}_cpf4")
        A(f"  s_and_b32 s42, s2, 7\n  s_sub_u32 s43, s2, {NLN + 384}\n  s_lshr_b32 s43, s43, 3\n  s_lshl_b32 s43, s43, 8\n  v_add_u32 v123, s43, v0")
        gen_prefetch(A, 1, 42, 123, 8192, 40, 44, 124, 126, half=True)
        A(f"{L}_cpf4:")
    def role(kind, tiles):
        lq = []
        def ds(tag, txt): A(txt); lq.append(tag)
        def lwait(tags):
            idxs = [i for i, t in enumerate(lq) if t in tags]
            if not idxs: return
            n = min(len(lq) - 1 - max(idxs), 15)
            A(f"  s_waitcnt lgkmcnt({n})"); del lq[:len(lq) - n]
        items = []
        if kind == "A":
            for e in list(range(-14, 113, 2)) + [16 * t - 63 for t in range(3, 8)]:
                ms = []
                if e & 1: ms.append(((e + 63) // 16, ("RC",), True))
                else:
                    t = -(-e // 16); k = 16 * t - e
                    ms.append((t, ("R0", k), True))
                    if k == 0: ms.append((t + 1, ("R0", 16), True))
                ms = [m for m in ms if m[0] in tiles]
                if ms: items.append(("u", e, ms))
        else:
            for P in ((4,) if kind == "B" else (8, 16)):
                s = 16 // P
                for J in range(-1, s * 7 - 8 + s + 3 + 1):
                    ms = [(t, ("T", P, J - s * t + 8), False) for t in range(8) if 0 <= J - s * t + 8 < s + 4]
                    items.append(("w", (P, J), ms))
        accr = {t: ACC + 4 * i for i, t in enumerate(tiles)}
        def load(idx):
            kd, x, _ = items[idx]
            r = DF + 4 * (idx % NDF)
            if kd == "u":
                ds(("D", idx), f"  ds_read_b128 {vr(r,4)}, v{vB0} offset:{32*(x+16)}")
            else:
                P, J = x
                va = vAb if P == 16 else vAa
                for h in range(2):
                    ds(("D", idx), f"  ds_read_b64_tr_b16 {vr(r+2*h,2)}, v{va} offset:{2*P*(16*(J+1)+4*h)}")
        assert PF + WB <= NDF + 1
        for idx in range(PF): load(idx)
        inited = set()
        for idx, (kd, x, ms) in enumerate(items):
            if idx + PF < len(items): load(idx + PF)
            r = DF + 4 * (idx % NDF)
            for (t, ttag, toepA) in ms:
                if ("D", idx) in lq: lwait({("D", idx + k) for k in range(WB)})
                acc = vr(accr[t], 4); c = acc if t in inited else "0"; inited.add(t)
                tr_ = vr(treg[ttag], 4)
                if toepA: A(f"  v_mfma_f32_16x16x32_f16 {acc}, {tr_}, {vr(r,4)}, {c}")
                else:     A(f"  v_mfma_f32_16x16x32_f16 {acc}, {vr(r,4)}, {tr_}, {c}")
        return accr
    exB = {t: EXS[t] for t in range(8)}
    exC = {t: EXS[7 + t] for t in range(1, 8)}
    A(f"  s_cmp_ge_u32 s3, 2\n  s_cbranch_scc1 {L}_rBC\n  s_cmp_eq_u32 s3, 1\n  s_cbranch_scc1 {L}_rA2")
    def finA(tiles):
        accr = role("A", tiles)
        if stamps: A(f"  s_memtime s[{62+2*nst[0]}:{63+2*nst[0]}]")
        A(f"  v_mov_b32 v2, s27\n  s_waitcnt lgkmcnt(0)\n  s_barrier")
        n = 0
        for i, t in enumerate(tiles):
            A(f"  ds_read_b128 {vr(DF+8*i,4)}, v{vEx} offset:{exB[t]}"); n += 1
            if t in exC: A(f"  ds_read_b128 {vr(DF+8*i+4,4)}, v{vEx} offset:{exC[t]}"); n += 1
        for i, t in enumerate(tiles):
            a = accr[t]
            n -= 2 if t in exC else 1
            A(f"  s_waitcnt lgkmcnt({n})")
            for r in (0, 2): A(f"  v_pk_add_f32 {vr(a+r,2)}, {vr(a+r,2)}, {vr(DF+8*i+r,2)}")
            if t in exC:
                for r in (0, 2): A(f"  v_pk_add_f32 {vr(a+r,2)}, {vr(a+r,2)}, {vr(DF+8*i+4+r,2)}")
            for r in (0, 2): A(f"  v_pk_mul_f32 {vr(a+r,2)}, {vr(a+r,2)}, v[2:3] op_sel_hi:[1,0]")
            o = TP + 4 * (i >> 1) + 2 * (i & 1)
            A(f"  v_cvt_pk_bf16_f32 v{o}, v{a}, v{a+1}\n  v_cvt_pk_bf16_f32 v{o+1}, v{a+2}, v{a+3}")
            if i & 1:
                b = TP + 4 * (i >> 1)
                A(f"  s_mov_b32 s20, {4 * (t - 1) * YS if ln2 else 16 * (t - 1) * US}\n  s_nop 0\n  v_permlane16_swap_b32 v{b}, v{b+2}\n  v_permlane16_swap_b32 v{b+1}, v{b+3}")
                A(f"  buffer_store_dwordx4 {vr(b,4)}, v{vY}, s[32:35], s20 offen {'sc1' if ln2 else ''}")
        if ln2:
            A(f"  v_mov_b32 v2, 1\n  s_mov_b64 exec, {(1 << R2) - 1}\n  s_waitcnt vmcnt(0)\n  global_store_short v{vFl}, v2, s[30:31] {sfl}\n  s_mov_b64 exec, -1")
        A(f"  s_branch {L}_fin")
    finA([0, 1, 2, 3])
    A(f"{L}_rA2:")
    finA([4, 5, 6, 7])
    A(f"{L}_rBC:\n  s_cmp_eq_u32 s3, 3\n  s_cbranch_scc1 {L}_rC")
    def finBC(kind, tiles, ex):
        accr = role(kind, tiles)
        if stamps: A(f"  s_memtime s[{62+2*nst[0]}:{63+2*nst[0]}]")
        A("  s_nop 1")
        for t in tiles:
            A(f"  ds_write_b128 v{vEx}, {vr(accr[t],4)} offset:{ex[t]}")
        A(f"  s_waitcnt lgkmcnt(0)\n  s_barrier\n  s_branch {L}_fin")
    finBC("B", list(range(8)), exB)
    A(f"{L}_rC:")
    finBC("C", list(range(1, 8)), exC)
    A(f"{L}_fin:")
    if stamps:
        nst[0] += 1
        A(f"  s_waitcnt vmcnt(0)\n  s_memtime s[{62+2*nst[0]}:{63+2*nst[0]}]\n  s_waitcnt lgkmcnt(0)"); nst[0] += 1
        A.srd(84, 38, 0x100000, 0x2040000)
        A(f"  s_lshl_b32 s83, s16, 2\n  s_add_u32 s83, s83, s3\n  s_lshl_b32 s83, s83, 5\n  v_mov_b32 v2, s83")
        for k in range(nst[0]):
            A(f"  s_sub_u32 s83, s{62+2*k}, s60\n  v_mov_b32 v3, s83\n  buffer_store_dword v3, v2, s[84:87], 0 offen offset:{4*k}")
    A("  s_endpgm")
    A(f"{L}_ln2:")
    if ln2:
        NQ, NE = 5, 20
        HROW = 336
        YB, HB = 0, 10240
        SB = HB + 4 * 8 * HROW + 256
        RX, RD, RY = 16, 26, 36
        X, U, Y, T = 46, 66, 86, 106
        P = range(NE // 2)
        A(f"""
  s_sub_u32 s16, s2, {NLN + 640}
  s_load_dwordx2 s[4:5], s[0:1], {KA['x']}
  s_load_dwordx2 s[28:29], s[0:1], {KA['Dsk']}
  s_load_dwordx4 s[36:39], s[0:1], {KA['dbg']}
  v_lshrrev_b32 v1, 6, v0
  v_and_b32 v2, 7, v0                  ; t
  v_readfirstlane_b32 s3, v1           ; wave
  v_and_b32 v1, 63, v0
  v_lshrrev_b32 v3, 3, v1              ; qq
  s_lshl_b32 s17, s16, 3
  v_add_u32 v4, s17, v2
  v_mul_u32_u24 v4, 1280, v4
  s_mul_i32 s17, s3, 320
  v_lshl_add_u32 v6, v3, 3, s17
  v_add_u32 v4, v4, v6                 ; x/h offset
  s_mov_b32 s14, {2048 * 1280}
  s_mov_b32 s15, 0x00020000
  s_mov_b32 s26, 1280
  s_mov_b32 s27, 0x00020000
  s_waitcnt lgkmcnt(0)
  s_mov_b32 s12, s4
  s_mov_b32 s13, s5
  s_mov_b32 s24, s28
  s_mov_b32 s25, s29
""")
        for i in range(NQ): A(f"  buffer_load_dwordx2 {vr(RX+2*i,2)}, v4, s[12:15], 0 offen offset:{64*i}")
        for i in range(NQ): A(f"  buffer_load_dwordx2 {vr(RD+2*i,2)}, v6, s[24:27], 0 offen offset:{64*i}")
        A.srd(8, 38, 32 * YS, WS_Y8)
        A.srd(32, 38, 2048 * 1280, WS_H)
        A.srd(40, 38, 8 * XT1, WS_HN8)
        A(f"""
  s_add_u32 s30, s38, {WS_SY + F2}
  s_addc_u32 s31, s39, 0
  s_mul_i32 s19, s3, 2560
  v_lshrrev_b32 v8, 4, v1
  v_lshlrev_b32 v8, 7, v8
  v_bfe_u32 v9, v1, 1, 1
  v_lshl_add_u32 v8, v9, 6, v8
  v_bfe_u32 v9, v1, 2, 2               ; r
  v_lshl_add_u32 v8, v9, 4, v8
  v_and_b32 v10, 1, v1
  v_lshl_add_u32 v8, v10, 3, v8
  v_add_u32 v8, s19, v8
  v_lshl_add_u32 v7, v1, 4, s19
  s_mul_i32 s44, s3, {8*HROW}
  s_add_u32 s44, s44, {HB}
  v_mul_u32_u24 v10, {HROW}, v2
  v_lshl_add_u32 v10, v3, 3, v10
  v_add_u32 v10, s44, v10
  v_mul_u32_u24 v11, {HROW}, v9
  v_lshrrev_b32 v12, 4, v1
  v_lshl_add_u32 v11, v12, 5, v11
  v_and_b32 v12, 3, v1
  v_lshl_add_u32 v11, v12, 3, v11
  v_add_u32 v11, s44, v11
  v_lshlrev_b32 v12, 5, v2
  v_add_u32 v12, {SB}, v12
  v_lshrrev_b32 v13, 5, v1
  v_lshl_add_u32 v13, v13, 2, v12
  s_lshl_b32 s45, s3, 3
  v_add_u32 v13, s45, v13
  s_mul_i32 s47, s16, 1280
  s_mul_i32 s46, s3, 160
  v_add_u32 v{T}, s46, v1
  s_lshr_b32 s18, s16, 3
  s_mul_i32 s18, s18, {YS}
  s_and_b32 s45, s16, 7
  s_lshl_b32 s45, s45, 4
  s_add_u32 s18, s18, s45
  v_lshlrev_b32 v5, 7, v{T}
  v_min_u32 v122, 39, v1
  v_lshlrev_b32 v122, 4, v122
  s_and_b32 s45, s16, {R2 - 1}
  s_mul_i32 s45, s45, 2560
  s_mul_i32 s48, s3, 640
  s_add_u32 s45, s45, s48
  v_add_u32 v122, s45, v122
  v_mov_b32 v123, 0
  s_mov_b32 s48, 0xff
  s_mov_b32 s49, 0xff
""")
        VO = 124
        for i in range(3):
            A(f"""
  v_mul_u32_u24 v{T+1}, 52429, v{T}
  v_lshrrev_b32 v{T+1}, 22, v{T+1}
  v_mul_u32_u24 v{T+1}, {XT1 - 1280}, v{T+1}
  v_lshl_add_u32 v{VO+i}, v{T}, 4, v{T+1}
  v_add_u32 v{T}, 64, v{T}
""")
        def unpack(dst, src):
            for k in P: A(f"  v_lshlrev_b32 v{dst+2*k}, 16, v{src+k}\n  v_and_b32 v{dst+2*k+1}, 0xffff0000, v{src+k}")
        def rnd(a):
            for k in P: A(f"  v_cvt_pk_bf16_f32 v{T+k}, v{a+2*k}, v{a+2*k+1}")
            unpack(a, T)
        def xreduce(s1, s2, off):
            A(f"""
  s_nop 1
  v_permlane32_swap_b32 v{s1}, v{s2}
  s_nop 1
  v_add_f32 v{s1}, v{s1}, v{s2}
  v_mov_b32 v{s2}, v{s1}
  s_nop 1
  v_permlane16_swap_b32 v{s1}, v{s2}
  s_nop 1
  v_add_f32 v{s1}, v{s1}, v{s2}
  s_nop 1
  v_add_f32 v{s1}, v{s1}, v{s1} row_ror:8
  s_mov_b64 exec, s[48:49]
  ds_write_b32 v13, v{s1} offset:{off}
  s_mov_b64 exec, -1
  s_waitcnt lgkmcnt(0)
  s_barrier
  ds_read_b128 {vr(T,4)}, v12 offset:{off}
  ds_read_b128 {vr(T+4,4)}, v12 offset:{off+16}
  s_waitcnt lgkmcnt(0)
  v_pk_add_f32 {vr(T,2)}, {vr(T,2)}, {vr(T+2,2)}
  v_pk_add_f32 {vr(T+4,2)}, {vr(T+4,2)}, {vr(T+6,2)}
  s_nop 0
  v_pk_add_f32 {vr(T,2)}, {vr(T,2)}, {vr(T+4,2)}
""")
        def sums(a, sq):
            S1, S2 = T + 8, T + 12
            A(f"  v_pk_add_f32 {vr(S1,2)}, {vr(a,2)}, {vr(a+2,2)}\n  v_pk_add_f32 {vr(S1+2,2)}, {vr(a+4,2)}, {vr(a+6,2)}")
            if sq: A(f"  v_pk_mul_f32 {vr(S2,2)}, {vr(a,2)}, {vr(a,2)}\n  v_pk_mul_f32 {vr(S2+2,2)}, {vr(a+2,2)}, {vr(a+2,2)}")
            for k in range(2, NE // 2):
                if k >= 4: A(f"  v_pk_add_f32 {vr(S1+2*(k&1),2)}, {vr(S1+2*(k&1),2)}, {vr(a+2*k,2)}")
                if sq: A(f"  v_pk_fma_f32 {vr(S2+2*(k&1),2)}, {vr(a+2*k,2)}, {vr(a+2*k,2)}, {vr(S2+2*(k&1),2)}")
            A(f"  v_pk_add_f32 {vr(S1,2)}, {vr(S1,2)}, {vr(S1+2,2)}")
            if sq: A(f"  v_pk_add_f32 {vr(S2,2)}, {vr(S2,2)}, {vr(S2+2,2)}")
            A(f"  s_nop 0\n  v_add_f32 v{S1}, v{S1}, v{S1+1}")
            if sq: A(f"  v_add_f32 v{S1+1}, v{S2}, v{S2+1}")
            else:  A(f"  v_mov_b32 v{S1+1}, 0")
            return S1, S1 + 1
        A(f"  s_waitcnt vmcnt({NQ})")
        unpack(X, RX)
        xreduce(*sums(X, False), 0)
        A(f"  v_mul_f32 v14, {fbits(1.0/640)}, v{T}          ; mean")
        for k in P: A(f"  v_pk_add_f32 {vr(U+2*k,2)}, {vr(X+2*k,2)}, v[14:15] op_sel_hi:[1,0] neg_lo:[0,1] neg_hi:[0,1]")
        xreduce(*sums(U, True), 256)
        A(f"""
  v_mul_f32 v15, {fbits(1.0/640)}, v{T+1}
  v_cvt_pk_bf16_f32 v15, v15, v14
  v_and_b32 v14, 0xffff0000, v15            ; m_bf
  v_lshlrev_b32 v15, 16, v15
  v_add_f32 v15, {fbits(1e-5)}, v15
  v_cvt_pk_bf16_f32 v15, v15, v15
  v_lshlrev_b32 v15, 16, v15
  v_sqrt_f32 v15, v15
  s_nop 0
  v_cvt_pk_bf16_f32 v15, v15, v15
  v_lshlrev_b32 v15, 16, v15
  v_rcp_f32 v15, v15                        ; rs
""")
        for k in P: A(f"  v_pk_add_f32 {vr(U+2*k,2)}, {vr(X+2*k,2)}, v[14:15] op_sel_hi:[1,0] neg_lo:[0,1] neg_hi:[0,1]")
        rnd(U)
        for k in P: A(f"  v_pk_mul_f32 {vr(U+2*k,2)}, {vr(U+2*k,2)}, v[14:15] op_sel:[0,1] op_sel_hi:[1,1]")
        rnd(U)
        A("  s_waitcnt vmcnt(0)")
        unpack(Y, RD)
        for k in P: A(f"  v_pk_mul_f32 {vr(U+2*k,2)}, {vr(U+2*k,2)}, {vr(Y+2*k,2)}")
        rnd(U)
        A(f"""
  s_mov_b32 s21, 100000
  s_mov_b32 s20, 0x10001
{L}_q0:
  global_load_dword v{T}, v123, s[36:37] sc1
  s_sub_u32 s21, s21, 1
  s_waitcnt vmcnt(0)
  v_cmp_eq_u32 vcc, 0, v{T}
  s_cmp_lt_i32 s21, 1
  s_cbranch_scc1 {L}_q2
  s_cbranch_vccz {L}_q1
  s_sleep 16
  s_branch {L}_q0
{L}_q1:
  global_load_dwordx4 {vr(T,4)}, v122, s[30:31] {pfl}
  s_sub_u32 s21, s21, 1
  s_waitcnt vmcnt(0)
  v_and_b32 v{T}, v{T}, v{T+1}
  v_and_b32 v{T+2}, v{T+2}, v{T+3}
  v_and_b32 v{T}, v{T}, v{T+2}
  v_cmp_ne_u32 vcc, s20, v{T}
  s_cmp_lt_i32 s21, 1
  s_cbranch_scc1 {L}_q2
  s_cbranch_vccz {L}_q2
  s_cmp_eq_u64 vcc, exec
  s_cbranch_scc1 {L}_q1b
  s_sleep {slp2}
  s_branch {L}_q1
{L}_q1b:
  s_sleep {slp3}
  s_branch {L}_q1
{L}_q2:
  s_add_u32 s45, s18, {64*128}
  s_add_u32 s46, s18, {128*128}
  buffer_load_dwordx4 {vr(Y,4)}, v5, s[8:11], s18 offen sc1
  buffer_load_dwordx4 {vr(Y+4,4)}, v5, s[8:11], s45 offen sc1
  s_mov_b32 exec_hi, 0
  buffer_load_dwordx4 {vr(Y+8,4)}, v5, s[8:11], s46 offen sc1
  s_mov_b32 exec_hi, -1
  s_waitcnt vmcnt(2)
  ds_write_b128 v7, {vr(Y,4)} offset:{YB}
  s_waitcnt vmcnt(1)
  ds_write_b128 v7, {vr(Y+4,4)} offset:{YB + 1024}
  s_waitcnt vmcnt(0)
  s_mov_b32 exec_hi, 0
  ds_write_b128 v7, {vr(Y+8,4)} offset:{YB + 2048}
  s_mov_b32 exec_hi, -1
""")
        for i in range(NQ): A(f"  ds_read_b64_tr_b16 {vr(RY+2*i,2)}, v8 offset:{YB + 512*i}")
        A("  s_waitcnt lgkmcnt(0)")
        unpack(Y, RY)
        for k in P: A(f"  v_pk_add_f32 {vr(Y+2*k,2)}, {vr(Y+2*k,2)}, {vr(U+2*k,2)}")
        rnd(Y)
        for k in P: A(f"  v_pk_add_f32 {vr(X+2*k,2)}, {vr(X+2*k,2)}, {vr(Y+2*k,2)}")
        for k in P: A(f"  v_cvt_pk_bf16_f32 v{RX+k}, v{X+2*k}, v{X+2*k+1}")
        for i in range(NQ): A(f"  buffer_store_dwordx2 {vr(RX+2*i,2)}, v4, s[32:35], 0 offen offset:{64*i} sc1")
        unpack(X, RX)
        for k in P: A(f"  v_pk_add_f32 {vr(X+2*k,2)}, {vr(X+2*k,2)}, v[14:15] op_sel_hi:[1,0] neg_lo:[0,1] neg_hi:[0,1]")
        xreduce(*sums(X, True), 512)
        a = T
        A(f"""
  v_mul_f32 v{a}, {fbits(1.0/640)}, v{a}
  v_mul_f32 v{a+1}, {fbits(1.0/640)}, v{a+1}
  v_fma_f32 v{a+1}, -v{a}, v{a}, v{a+1}       ; var2
  v_max_f32 v{a+1}, 0, v{a+1}
  v_add_f32 v{a+2}, v{a}, v14                 ; mean2
  v_cvt_pk_bf16_f32 v{a+3}, v{a+1}, v{a+2}
  v_lshlrev_b32 v{a+4}, 16, v{a+3}
  v_and_b32 v{a+3}, 0xffff0000, v{a+3}        ; m2_bf
  v_add_f32 v{a+4}, {fbits(1e-5)}, v{a+4}
  v_cvt_pk_bf16_f32 v{a+4}, v{a+4}, v{a+4}
  v_lshlrev_b32 v{a+4}, 16, v{a+4}
  v_sqrt_f32 v{a+4}, v{a+4}
  v_sub_f32 v{a+5}, v{a+3}, v14
  v_cvt_pk_bf16_f32 v{a+4}, v{a+4}, v{a+4}
  v_lshlrev_b32 v{a+4}, 16, v{a+4}
  v_rcp_f32 v{a+4}, v{a+4}                    ; r2
  v_sub_f32 v{a+6}, v{a}, v{a+5}
  v_mul_f32 v{a+6}, v{a+6}, v{a+4}            ; mean3
  v_mul_f32 v{a+7}, v{a+1}, v{a+4}
  v_mul_f32 v{a+7}, v{a+7}, v{a+4}            ; var3
  v_cvt_pk_bf16_f32 v{a+7}, v{a+7}, v{a+6}
  v_and_b32 v{a+6}, 0xffff0000, v{a+7}
  v_lshlrev_b32 v{a+7}, 16, v{a+7}
  v_add_f32 v{a+7}, {fbits(1e-5)}, v{a+7}
  v_cvt_pk_bf16_f32 v{a+7}, v{a+7}, v{a+7}
  v_lshlrev_b32 v{a+7}, 16, v{a+7}
  v_sqrt_f32 v{a+7}, v{a+7}
  v_fma_f32 v{a+6}, v{a+5}, v{a+4}, v{a+6}
  v_cvt_pk_bf16_f32 v{a+7}, v{a+7}, v{a+7}
  v_lshlrev_b32 v{a+7}, 16, v{a+7}
  v_rcp_f32 v{a+7}, v{a+7}                    ; r3
  s_nop 0
  v_mul_f32 v{a+8}, v{a+4}, v{a+7}
  v_mul_f32 v{a+10}, v{a+6}, v{a+7}
""")
        for k in P:
            A(f"  v_pk_fma_f32 {vr(X+2*k,2)}, {vr(X+2*k,2)}, {vr(a+8,2)}, {vr(a+10,2)} op_sel_hi:[1,0,0] neg_lo:[0,0,1] neg_hi:[0,0,1]")
        for k in P:
            A(f"  v_cvt_pk_bf16_f32 v{U+k}, v{X+2*k}, v{X+2*k+1}")
            if k & 1: A(f"  ds_write_b64 v10, {vr(U+k-1,2)} offset:{64*(k>>1)}")
        for i in range(3):
            A(f"  ds_read_b64_tr_b16 {vr(Y+4*i,2)}, v11 offset:{128*i}")
            A(f"  ds_read_b64_tr_b16 {vr(Y+4*i+2,2)}, v11 offset:{128*i + 4*HROW}")
        for i in range(3):
            A(f"  s_waitcnt lgkmcnt({4-2*i})")
            if i == 2: A("  s_mov_b32 exec_hi, 0")
            A(f"  buffer_store_dwordx4 {vr(Y+4*i,4)}, v{VO+i}, s[40:43], s47 offen sc1")
    A(f"{L}_done:\n  s_endpgm")
    A(".p2align 8\ncode_pf_begin:")
    A.kernel_desc(name, 128, 96 if stamps else 56)
    idx = [i * 4 for i in kimg.img] + [kimg.ZERO * 4] * (4096 - kimg.NEL)
    tbl = ".p2align 4\n.type kimg_idx,@object\nkimg_idx:\n"
    for i in range(0, 4096, 16):
        tbl += "  .short " + ", ".join(str(v) for v in idx[i:i+16]) + "\n"
    tbl += ".size kimg_idx, 8192"
    A.desc.append(tbl)
```
